```python
import torch

def _softmax(x, axis=-1):
    return torch.softmax(x, dim=axis)
def _gelu(x):
    return torch.nn.functional.gelu(x, approximate="tanh")
def _silu(x):
    return torch.nn.functional.silu(x)
def _sigmoid(x):
    return torch.sigmoid(x)
def _layernorm(x, axis=-1, eps=1e-5):
    m = x.mean(dim=axis, keepdim=True)
    v = x.var(dim=axis, keepdim=True, unbiased=False)
    return (x - m) / torch.sqrt(v + eps)
def _scatter_add(tgt, idx, src, axis=0):
    return tgt.clone().index_add_(axis, idx, src)
def _segment_sum(src, seg, n):
    out = torch.zeros((n,) + src.shape[1:], dtype=src.dtype)
    return out.index_add_(0, seg, src)
def _pad(x, pw):
    flat = tuple(v for pair in reversed(pw) for v in pair)
    return torch.nn.functional.pad(x, flat)

kernel_name = 'parallel_sum__mha_block_cached__glu_gated_bilinear__decode'

def setup_inputs():

    _w = (lambda a: (lambda t: t.to(torch.bfloat16) if t.is_floating_point() else t)(torch.as_tensor(a)))
    def _A_setup():
        B, Sq, D = 8, 1, 1024
        H, Sk, Dh = 32, 4096, 128
        return {
            "x": _w((lambda *s: torch.randn(*s, dtype=torch.bfloat16) * 0.05)(B, Sq, D)),
            "k_cache": _w((lambda *s: torch.randn(*s, dtype=torch.bfloat16) * 1.6)(B, H, Sk, Dh)),
            "v_cache": _w((lambda *s: torch.randn(*s, dtype=torch.bfloat16) * 0.8)(B, H, Sk, Dh)),
            "wq": _w((lambda *s: torch.randn(*s, dtype=torch.bfloat16) * 1.6)(D, H * Dh) * (D ** -0.5)),
            "wo": _w((lambda *s: torch.randn(*s, dtype=torch.bfloat16) * 0.8)(H * Dh, D) * ((H * Dh) ** -0.5)),
        }
    _A_in = _A_setup()

    def _B_setup():
        B, S, D, F = 8, 1, 1024, 3584
        return {
            "x": _w((lambda *s: torch.randn(*s, dtype=torch.bfloat16) * 0.05)(B, S, D)),
            "w_gate": _w((lambda *s: torch.randn(*s, dtype=torch.bfloat16) * 0.4)(D, F) * (D ** -0.5)),
            "w_up": _w((lambda *s: torch.randn(*s, dtype=torch.bfloat16) * 0.4)(D, F) * (D ** -0.5)),
            "w_down": _w((lambda *s: torch.randn(*s, dtype=torch.bfloat16) * 0.4)(F, D) * (F ** -0.5)),
        }
    _B_in = _B_setup()

    return {
        "A_x": _A_in["x"],
        "A_k_cache": _A_in["k_cache"],
        "A_v_cache": _A_in["v_cache"],
        "A_wq": _A_in["wq"],
        "A_wo": _A_in["wo"],
        "B_x": _B_in["x"],
        "B_w_gate": _B_in["w_gate"],
        "B_w_up": _B_in["w_up"],
        "B_w_down": _B_in["w_down"],
    }

def reference(A_x, A_k_cache, A_v_cache, A_wq, A_wo, B_x, B_w_gate, B_w_up, B_w_down):
    def _A_ref(x, k_cache, v_cache, wq, wo):
        B, Sq, D = x.shape
        H, Dh = 32, 128
        q = (lambda x, *d: x.permute(*d))((x @ wq).reshape(B, Sq, H, Dh), 0, 2, 1, 3)
        scores = torch.einsum("bhqd,bhkd->bhqk", q, k_cache) * (Dh ** -0.5)
        p = _softmax(scores, axis=-1)
        o = torch.einsum("bhqk,bhkd->bhqd", p, v_cache)
        return (lambda x, *d: x.permute(*d))(o, 0, 2, 1, 3).reshape(B, Sq, H * Dh) @ wo

    def _B_ref(x, w_gate, w_up, w_down):
        g = torch.einsum("bsd,df->bsf", x, w_gate)
        u = torch.einsum("bsd,df->bsf", x, w_up)
        h = g * u
        return torch.einsum("bsf,fd->bsd", h, w_down)

    x = A_x
    xn = _layernorm(x, axis=-1)
    return x + _A_ref(xn, A_k_cache, A_v_cache, A_wq, A_wo) + _B_ref(xn, B_w_gate, B_w_up, B_w_down)
```

```python
import sys, struct
KN = 'parallel_sum__mha_block_cached__glu_gated_bilinear__decode_kernel'

def f2u(x): return struct.unpack('<I', struct.pack('<f', x))[0]

L_WQ = 0x00000
L_S = 0x00000
L_GATE = 0x08000
L_WO = 0x08000
L_UP = 0x10000
L_DOWN = 0x18000
L_XQ = 0x20000
L_XF = 0x20800
L_QL = 0x21800
L_HL = 0x21900
L_DP = 0x21D00
L_MW = 0x22500
L_FW = 0x22510
L_FF = 0x22520
L_CNT = 0x22620
L_NONCE = 0x22640
LDS_SIZE = 0x22800
W_BSTRIDE = 0x80000
W_QP = 0x00000
W_AP = 0x20000
W_FP = 0x40000
W_GU = 0x400000
W_OX = 0x500000
W_ST = 0x520000
W_SIZE = 0x600000
W_STAMP = 0x20000000

class Gen:
    def __init__(self, depth=5, pdepth=5, stamps=False, wpol='nt'):
        self.L = []; self.depth = depth; self.pdepth = pdepth; self.stamps = stamps; self.uid = 0; self.wpol = wpol
    def e(self, s):
        for l in s.split('\n'): self.L.append('    ' + l.strip() if not l.strip().endswith(':') else l.strip())
    def c(self, s): self.L.append('    ; ' + s)
    def lab(self, p='L'):
        self.uid += 1; return f'{p}_{self.uid}'
    def srd(self, d, plo, phi, off_lo=None, size=None, size_sgpr=None):
        e = self.e
        if off_lo is None:
            e(f's_mov_b32 s{d}, s{plo}\ns_mov_b32 s{d+1}, s{phi}')
        else:
            e(f's_add_u32 s{d}, s{plo}, s{off_lo}\ns_addc_u32 s{d+1}, s{phi}, 0')
        if size_sgpr is not None: e(f's_mov_b32 s{d+2}, s{size_sgpr}')
        else: e(f's_mov_b32 s{d+2}, {size:#x}')
        e(f's_mov_b32 s{d+3}, 0x20000')
    def stamp(self, idx):
        if self.stamps:
            self.e(f's_memrealtime s[{64+2*idx}:{65+2*idx}]\ns_waitcnt lgkmcnt(0)')
    def flush_stamps(self, idxs, vt):
        if not self.stamps: return
        e = self.e
        e(f's_add_u32 s96, s26, {W_STAMP:#x}\ns_addc_u32 s97, s27, 0\ns_mov_b32 s98, 0x10000\ns_mov_b32 s99, 0x20000')
        e(f's_lshl_b32 s60, s2, 7\nv_mov_b32 v{vt+2}, s60')
        for i in idxs:
            e(f'v_mov_b32 v{vt}, s{64+2*i}\nv_mov_b32 v{vt+1}, s{65+2*i}')
            e(f'buffer_store_dwordx2 v[{vt}:{vt+1}], v{vt+2}, s[96:99], 0 offen offset:{i*8}\ns_nop 1')
    def ror_reduce(self, op, v, steps=(8, 4, 2, 1)):
        for s in steps:
            self.e(f's_nop 1\n{op}_dpp v{v}, v{v}, v{v} row_ror:{s} row_mask:0xf bank_mask:0xf')
    def swap_reduce(self, op, v, t, which):
        self.e(f'v_mov_b32 v{t}, v{v}\ns_nop 1\nv_permlane{which}_swap_b32 v{v}, v{t}\ns_nop 0\n{op} v{v}, v{v}, v{t}')
    def rnd_bf16(self, v, t=None):
        self.e(f'v_cvt_pk_bf16_f32 v{v}, v{v}, v{v}\nv_and_b32 v{v}, 0xffff0000, v{v}')
    def arrive(self, cnt, vaddr_zero, vt, sret):
        e = self.e
        e(f's_mov_b64 exec, 1\nv_mov_b32 v{vt}, 1')
        e(f'ds_add_rtn_u32 v{vt}, v{vaddr_zero}, v{vt} offset:{cnt*4}')
        e(f's_waitcnt lgkmcnt(0)\nv_readfirstlane_b32 s{sret}, v{vt}\ns_mov_b64 exec, -1')
    def lds_wait(self, cnt, target, vaddr_zero, vt, st, sleep=0):
        e = self.e; l = self.lab('L_w'); d = self.lab('L_wd')
        e(f's_mov_b32 s{st+1}, 0')
        e(f'{l}:')
        e(f'ds_read_b32 v{vt}, v{vaddr_zero} offset:{cnt*4}')
        e(f's_waitcnt lgkmcnt(0)\nv_readfirstlane_b32 s{st}, v{vt}')
        e(f's_cmp_ge_u32 s{st}, {target}\ns_cbranch_scc1 {d}')
        if sleep: e(f's_sleep {sleep}')
        e(f's_add_u32 s{st+1}, s{st+1}, 1\ns_cmp_lt_u32 s{st+1}, 0x100000\ns_cbranch_scc1 {l}')
        e(f'{d}:')

    def build(self):
        e, c = self.e, self.c
        D = self.depth; PD = self.pdepth; WP = self.wpol
        hdr = open('parallel_sum__mha_block_cached__glu_gated_bilinear__decode.s.ref').read().split('; @launch')[0]
        self.L.append(hdr.rstrip('\n'))
        self.L.append(f'; @launch grid=(256,1,1) block=(512,1,1) lds={LDS_SIZE}')
        self.L.append('.amdgcn_target "amdgcn-amd-amdhsa--gfx950"\n.text')
        self.L.append(f'.globl {KN}\n.p2align 8\n.type {KN},@function\n{KN}:')
        e('s_cmp_ge_u32 s2, 256\ns_cbranch_scc1 L_end')
        e('s_load_dwordx16 s[4:19], s[0:1], 0\ns_load_dwordx8 s[20:27], s[0:1], 64')
        if self.stamps: e('s_memrealtime s[64:65]')
        e('v_and_b32 v1, 63, v0\nv_lshrrev_b32 v2, 6, v0')
        e('s_lshr_b32 s44, s2, 5\ns_and_b32 s45, s2, 31')
        e('v_readfirstlane_b32 s3, v2')
        e('s_lshl_b32 s46, s45, 3\ns_add_u32 s46, s46, s44\ns_lshr_b32 s47, s46, 2\ns_and_b32 s48, s46, 3')
        e('s_cmp_ge_u32 s3, 4\ns_cbranch_scc1 L_aux')
        self.stream()
        e('L_aux:')
        self.aux()
        e('L_end:\ns_endpgm')
        self.L.append('.section .rodata,"a"\n.p2align 6')
        self.L.append(f'.amdhsa_kernel {KN}\n  .amdhsa_next_free_vgpr 256\n  .amdhsa_next_free_sgpr 102\n  .amdhsa_accum_offset 256')
        self.L.append('  .amdhsa_group_segment_fixed_size 0\n  .amdhsa_kernarg_size 96\n  .amdhsa_user_sgpr_count 2\n  .amdhsa_user_sgpr_kernarg_segment_ptr 1\n  .amdhsa_system_sgpr_workgroup_id_x 1\n.end_amdhsa_kernel')
        return '\n'.join(self.L) + '\n'

    def stream(self):
        e, c = self.e, self.c
        D = self.depth; PD = self.pdepth; WP = self.wpol
        vP, vV, vGU, vDN, vSa, vMax, vS, vA, vB, vT, vNM, vSn, vPp = 2, 6, 10, 11, 12, 13, 14, 15, 16, 17, 18, 19, 20
        vCnt = 21
        DD = [24, 28]; Q = 32; MK = 48; AA = 52; O = 56; RING = 64
        c('=== stream waves (0..3) ===')
        e(f'v_mov_b32 v{vCnt}, {L_CNT:#x}')
        e('s_cmp_lg_u32 s3, 0\ns_cbranch_scc1 L_s_nozero')
        e(f'v_mov_b32 v{vT}, 0\nv_lshlrev_b32 v{vA}, 2, v1\nv_and_b32 v{vA}, 31, v{vA}\nv_add_u32 v{vA}, v{vCnt}, v{vA}')
        e(f'ds_write_b32 v{vA}, v{vT}')
        e('L_s_nozero:')
        e(f'v_and_b32 v{vP}, 3, v1\nv_lshlrev_b32 v{vP}, 4, v{vP}')
        e(f'v_bfe_u32 v{vT}, v1, 2, 2\nv_lshl_add_u32 v{vP}, v{vT}, 8, v{vP}')
        e(f'v_lshrrev_b32 v{vT}, 4, v1\nv_lshl_add_u32 v{vP}, v{vT}, 6, v{vP}')
        e('s_lshl_b32 s49, s3, 12')
        e(f'v_add_u32 v{vP}, s49, v{vP}')
        e(f'v_lshlrev_b32 v{vV}, 4, v1\nv_add_u32 v{vV}, s49, v{vV}')
        for u in range(1, 4):
            e(f'v_add_u32 v{vP+u}, {u*16384:#x}, v{vP}\nv_add_u32 v{vV+u}, {u*16384:#x}, v{vV}')
        e('s_lshl_b32 s50, s2, 20')
        e('s_waitcnt lgkmcnt(0)')
        self.srd(40, 6, 7, 50, 0x100000)
        e('s_mov_b32 s51, 0')
        def kload(j, so='s51'):
            e(f'buffer_load_dwordx4 v[{RING+4*j}:{RING+4*j+3}], v{vP+j//4}, s[40:43], {so} offen offset:{(j%4)*1024} nt')
        for j in range(PD): kload(j)
        e('s_barrier')
        e('s_cmp_ge_u32 s46, 224\ns_cbranch_scc1 L_s_nodma')
        e(f'v_lshrrev_b32 v{vT}, 3, v1\nv_mul_u32_u24 v{vGU}, 7168, v{vT}\nv_and_b32 v{vT}, 7, v1\nv_lshl_add_u32 v{vGU}, v{vT}, 4, v{vGU}')
        e(f'v_lshrrev_b32 v{vT}, 5, v1\nv_lshlrev_b32 v{vDN}, 11, v{vT}\nv_and_b32 v{vT}, 31, v1\nv_lshl_add_u32 v{vDN}, v{vT}, 4, v{vDN}')
        e(f's_mul_i32 s52, s48, {256*7168}\ns_lshl_b32 s53, s47, 7\ns_add_u32 s52, s52, s53\ns_sub_u32 s53, {1024*7168}, s52')
        self.srd(28, 16, 17, 52, size_sgpr=53)
        self.srd(32, 18, 19, 52, size_sgpr=53)
        e(f's_lshl_b32 s52, s47, 17\ns_lshl_b32 s53, s48, 9\ns_add_u32 s52, s52, s53\ns_sub_u32 s53, {3584*2048}, s52')
        self.srd(36, 20, 21, 52, size_sgpr=53)
        e(f's_lshl_b32 s54, s3, 13')
        for (srd, vo, lbase, step) in ((28, vGU, L_GATE, 8*7168), (32, vGU, L_UP, 8*7168), (36, vDN, L_DOWN, 4096)):
            e(f's_add_u32 m0, s54, {lbase:#x}\ns_mul_i32 s55, s3, {8*step}')
            for i in range(8):
                e(f's_waitcnt vmcnt({PD-1})')
                e(f'buffer_load_dwordx4 v{vo}, s[{srd}:{srd+3}], s55 offen {WP} lds')
                if i < 7: e(f's_add_u32 m0, m0, 0x400\ns_add_u32 s55, s55, {step}')
        e('L_s_nodma:')
        for j in range(PD, 16):
            e(f's_waitcnt vmcnt({PD-1})'); kload(j)
        for u in range(1, 4):
            m = 0x11111111 << u
            e(f's_mov_b32 s{54+2*u}, {m:#x}\ns_mov_b32 s{55+2*u}, {m:#x}')
        e(f'v_and_b32 v{vT}, 1, v1\nv_cmp_eq_u32 vcc, 1, v{vT}\nv_mov_b32 v{vA}, 0xffff\nv_mov_b32 v{vB}, 0xffff0000')
        e(f'v_cndmask_b32 v{vA}, v{vA}, v{vB}, vcc')
        e(f'v_bfe_u32 v{vT}, v1, 1, 3')
        for i in range(4):
            e(f'v_cmp_eq_u32 vcc, {i}, v{vT}\ns_nop 1\nv_cndmask_b32 v{MK+i}, 0, v{vA}, vcc')
        e(f'v_lshlrev_b32 v{vSa}, 2, v1\nv_add_u32 v{vSa}, s49, v{vSa}')
        if L_S: e(f'v_add_u32 v{vSa}, {L_S:#x}, v{vSa}')
        e(f'v_mov_b32 v{vMax}, 0xff800000')
        for i in range(4): e(f'v_mov_b32 v{O+i}, 0')
        e(f'v_and_b32 v{vA}, 3, v1\nv_lshrrev_b32 v{vT}, 4, v1\nv_lshl_add_u32 v{vA}, v{vT}, 2, v{vA}\nv_lshlrev_b32 v{vA}, 4, v{vA}\nv_add_u32 v{vA}, {L_QL:#x}, v{vA}')
        e(f'v_bfe_u32 v{vT}, v1, 2, 2')
        self.stamp(1)
        e('s_barrier')
        e(f'ds_read_b128 v[{AA}:{AA+3}], v{vA}')
        e('s_waitcnt lgkmcnt(0)')
        for t in range(4):
            e(f'v_cmp_eq_u32 vcc, {t}, v{vT}\ns_nop 1')
            for i in range(4): e(f'v_cndmask_b32 v{Q+4*t+i}, 0, v{AA+i}, vcc')
        self.stamp(2)
        e('s_mov_b32 s52, 0')
        c('---- K loop ----')
        e('L_kloop:')
        e('s_add_u32 s51, s51, 0x10000')
        e('s_cmp_lg_u32 s52, 15\ns_cbranch_scc1 L_k_go')
        e('s_add_u32 s40, s8, s50\ns_addc_u32 s41, s9, 0\ns_mov_b32 s51, 0')
        for u in range(4): e(f'v_mov_b32 v{vP+u}, v{vV+u}')
        e('L_k_go:')
        def reduce(u):
            d = DD[u & 1]
            q1, q2, q3 = (u + 1) & 3, (u + 2) & 3, (u + 3) & 3
            e(f'v_add_f32_dpp v{vA}, v{d+q1}, v{d+q2} quad_perm:[{q1},{q1},{q1},{q1}] row_mask:0xf bank_mask:0xf')
            e(f'v_add_f32_dpp v{vB}, v{d+q3}, v{d+u} quad_perm:[{q3},{q3},{q3},{q3}] row_mask:0xf bank_mask:0xf')
            e('s_nop 0')
            dst = vS if u == 0 else vB
            e(f'v_add_f32_dpp v{dst}, v{vA}, v{vB} quad_perm:[{q2},{q2},{q2},{q2}] row_mask:0xf bank_mask:0xf')
            if u: e(f'v_cndmask_b32 v{vS}, v{vS}, v{vB}, s[{54+2*u}:{55+2*u}]')
        for u in range(4):
            d = DD[u & 1]
            for t in range(4):
                j = 4 * u + t
                cc = '0' if t == 0 else f'v[{d}:{d+3}]'
                e(f'v_mfma_f32_16x16x32_bf16 v[{d}:{d+3}], v[{RING+4*j}:{RING+4*j+3}], v[{Q+4*t}:{Q+4*t+3}], {cc}')
                if t == 2 and u > 0: reduce(u - 1)
                e(f's_waitcnt vmcnt({D-1})'); kload(j)
        e('s_nop 5')
        reduce(3)
        e(f'v_cvt_pk_bf16_f32 v{vS}, v{vS}, v{vS}\nv_lshlrev_b32 v{vS}, 16, v{vS}\nv_mul_f32 v{vS}, {f2u(128.0**-0.5):#x}, v{vS}')
        self.rnd_bf16(vS)
        e(f'v_max_f32 v{vMax}, v{vMax}, v{vS}\nds_write_b32 v{vSa}, v{vS}\nv_add_u32 v{vSa}, 0x100, v{vSa}')
        e('s_add_u32 s52, s52, 1\ns_cmp_lt_u32 s52, 16\ns_cbranch_scc1 L_kloop')
        c('---- transition ----')
        e(f'v_add_u32 v{vSa}, -4096, v{vSa}')
        e(f'ds_read_b32 v{vSn}, v{vSa}')
        self.ror_reduce('v_max_f32', vMax)
        self.swap_reduce('v_max_f32', vMax, vT, 16)
        self.swap_reduce('v_max_f32', vMax, vT, 32)
        LOG2E = f2u(1.4426950408889634)
        e(f's_mov_b32 s53, {LOG2E:#x}')
        e(f'v_mul_f32 v{vNM}, {f2u(-1.4426950408889634):#x}, v{vMax}')
        e(f's_lshl_b32 s54, s3, 2\ns_add_u32 s54, s54, {L_MW:#x}\nv_mov_b32 v{vT}, s54')
        e(f'ds_write_b32 v{vT}, v{vMax}')
        e(f's_mov_b64 exec, 1\nv_mov_b32 v{vT}, 1\nds_add_u32 v{vCnt}, v{vT} offset:{7*4}\ns_mov_b64 exec, -1')
        self.stamp(3)
        e('s_mov_b32 s52, 0')
        c('---- V loop ----')
        e('L_vloop:')
        e('s_add_u32 s51, s51, 0x10000')
        e('s_cmp_eq_u32 s52, 15\ns_cselect_b32 s42, 0, s42')
        e(f'v_add_u32 v{vSa}, 0x100, v{vSa}')
        e('s_waitcnt lgkmcnt(0)')
        e(f'v_fma_f32 v{vT}, v{vSn}, s53, v{vNM}')
        e(f'ds_read_b32 v{vSn}, v{vSa}')
        e(f'v_exp_f32 v{vT}, v{vT}\ns_nop 0\nv_cvt_pk_bf16_f32 v{vPp}, v{vT}, v{vT}\ns_nop 1')
        for u in range(4):
            for t in range(4):
                j = 4 * u + t
                for i in range(4):
                    e(f'v_and_b32_dpp v{AA+i}, v{vPp}, v{MK+i} row_newbcast:{4*t+u} row_mask:0xf bank_mask:0xf')
                e('s_nop 1')
                e(f'v_mfma_f32_16x16x32_bf16 v[{O}:{O+3}], v[{AA}:{AA+3}], v[{RING+4*j}:{RING+4*j+3}], v[{O}:{O+3}]')
                e(f's_waitcnt vmcnt({D-1})'); kload(j)
        e('s_add_u32 s52, s52, 1\ns_cmp_lt_u32 s52, 16\ns_cbranch_scc1 L_vloop')
        c('---- stream epilogue ----')
        e(f'v_and_b32 v{vA}, 15, v1\nv_lshlrev_b32 v{vA}, 5, v{vA}\nv_lshrrev_b32 v{vT}, 4, v1\nv_lshl_add_u32 v{vA}, v{vT}, 4, v{vA}')
        e(f's_lshl_b32 s54, s3, 9\ns_add_u32 s54, s54, {L_DP:#x}\nv_add_u32 v{vA}, s54, v{vA}')
        e('s_mov_b32 exec_hi, 0')
        e(f'ds_write_b128 v{vA}, v[{O}:{O+3}]')
        e('s_mov_b64 exec, -1')
        self.srd(36, 26, 27, None, W_SIZE)
        e('s_waitcnt lgkmcnt(0)')
        self.stamp(4)
        e('s_barrier')
        e('s_cmp_eq_u32 s3, 0\ns_cbranch_scc1 L_final\ns_cmp_lg_u32 s3, 1\ns_cbranch_scc1 L_end')
        c('---- wave 1: combine o and publish ----')
        e(f'v_lshlrev_b32 v{vA}, 3, v1\nv_add_u32 v{vA}, {L_DP:#x}, v{vA}\nv_mov_b32 v{vB}, {L_FW:#x}')
        e(f'ds_read_b128 v[{Q}:{Q+3}], v{vB}')
        for w in range(4): e(f'ds_read_b64 v[{Q+4+2*w}:{Q+5+2*w}], v{vA} offset:{w*512}')
        e(f's_lshl_b32 s54, s46, 8\ns_add_u32 s54, s54, {W_OX:#x}\nv_lshlrev_b32 v{vT}, 2, v1')
        e('s_waitcnt lgkmcnt(0)')
        e(f'v_mul_f32 v{vA}, v{Q}, v{Q+4}\nv_mul_f32 v{vB}, v{Q}, v{Q+5}')
        for w in range(1, 4): e(f'v_fmac_f32 v{vA}, v{Q+w}, v{Q+4+2*w}\nv_fmac_f32 v{vB}, v{Q+w}, v{Q+5+2*w}')
        e(f'v_cvt_pk_bf16_f32 v{vA}, v{vA}, v{vB}')
        e(f'v_min_u32 v{vA}, 0xfffffffe, v{vA}')
        e(f'buffer_store_dword v{vA}, v{vT}, s[36:39], s54 offen sc1')
        self.stamp(5)
        self.flush_stamps([5], 100)
        e('s_endpgm')
        c('---- wave 0: final reduction ----')
        e('L_final:')
        R = RING
        e(f'v_and_b32 v{vA}, 7, v1\nv_lshlrev_b32 v{vA}, 4, v{vA}\nv_add_u32 v{vA}, {L_FF:#x}, v{vA}')
        e(f'ds_read_b128 v[{Q}:{Q+3}], v{vA}\nds_read_b128 v[{Q+4}:{Q+7}], v{vA} offset:128')
        e(f's_mul_i32 s54, s44, {W_BSTRIDE:#x}\ns_lshl_b32 s55, s45, 12\ns_add_u32 s54, s54, s55\ns_add_u32 s54, s54, {W_AP:#x}')
        e(f'v_lshlrev_b32 v{vT}, 4, v1')
        self.srd(32, 22, 23, None, 0x4000)
        e('s_mov_b32 s55, 0\ns_waitcnt vmcnt(0)')
        e('L_fpoll:')
        for i in range(4): e(f'buffer_load_dwordx4 v[{R+4*i}:{R+4*i+3}], v{vT}, s[36:39], s54 offen offset:{i*1024} sc1')
        e('s_add_u32 s55, s55, 1\ns_waitcnt vmcnt(0)')
        e(f'v_max3_u32 v{vA}, v{R}, v{R+1}, v{R+2}\nv_max3_u32 v{vB}, v{R+3}, v{R+4}, v{R+5}')
        e(f'v_max3_u32 v{vA}, v{vA}, v{R+6}, v{R+7}\nv_max3_u32 v{vB}, v{vB}, v{R+8}, v{R+9}')
        e(f'v_max3_u32 v{vA}, v{vA}, v{R+10}, v{R+11}\nv_max3_u32 v{vB}, v{vB}, v{R+12}, v{R+13}')
        e(f'v_max3_u32 v{vA}, v{vA}, v{R+14}, v{R+15}\nv_max_u32 v{vA}, v{vA}, v{vB}')
        e(f'v_cmp_eq_u32 vcc, -1, v{vA}')
        e('s_cmp_ge_u32 s55, 0x10000\ns_cbranch_scc1 L_fgo\ns_cbranch_vccnz L_fpoll\nL_fgo:')
        self.colsum(R, 4, vT)
        e('s_waitcnt lgkmcnt(0)')
        for i in range(4): self.rnd_bf16(R + i)
        for i in range(4): e(f'v_add_f32 v{R+i}, v{Q+4+i}, v{R+i}')
        for i in range(4): self.rnd_bf16(R + i)
        for i in range(4): e(f'v_add_f32 v{R+i}, v{Q+i}, v{R+i}')
        e(f'v_cvt_pk_bf16_f32 v{R}, v{R}, v{R+1}\nv_cvt_pk_bf16_f32 v{R+1}, v{R+2}, v{R+3}')
        e(f's_lshl_b32 s54, s2, 6\nv_lshlrev_b32 v{vT}, 3, v1\ns_mov_b64 exec, 0xff')
        e(f'buffer_store_dwordx2 v[{R}:{R+1}], v{vT}, s[32:35], s54 offen')
        e('s_mov_b64 exec, -1')
        self.stamp(6)
        self.flush_stamps([0, 1, 2, 3, 4, 6], 100)
        e('s_endpgm')

    def colsum(self, R, n, vt):
        e = self.e
        for i in range(1, n):
            for k in range(4): e(f'v_add_f32 v{R+k}, v{R+k}, v{R+4*i+k}')
        e('s_nop 1')
        for k in range(4): e(f'v_add_f32_dpp v{R+k}, v{R+k}, v{R+k} row_ror:8 row_mask:0xf bank_mask:0xf')
        for which in (16, 32):
            for k in range(4): e(f'v_mov_b32 v{R+4+k}, v{R+k}')
            e('s_nop 0')
            for k in range(4): e(f'v_permlane{which}_swap_b32 v{R+k}, v{R+4+k}')
            for k in range(4): e(f'v_add_f32 v{R+k}, v{R+k}, v{R+4+k}')

    def aux(self):
        e, c = self.e, self.c
        WP = self.wpol
        vCnt, vT, vT2, vG, vC, vC7, vSt, vTr, vL16, vX = 2, 3, 4, 5, 6, 7, 8, 9, 10, 11
        X = 16
        U = 32
        XQ = 64
        XFr = 68
        c('=== aux waves (4..7) ===')
        e('s_sub_u32 s3, s3, 4')
        e(f'v_mov_b32 v{vCnt}, {L_CNT:#x}')
        e(f'v_lshrrev_b32 v{vG}, 4, v1\nv_and_b32 v{vC}, 15, v1\nv_and_b32 v{vC7}, 7, v1\nv_lshlrev_b32 v{vL16}, 4, v1')
        e(f'v_lshrrev_b32 v{vT}, 5, v1\nv_lshlrev_b32 v{vT}, 11, v{vT}\nv_and_b32 v{vT2}, 31, v1')
        e(f's_lshl_b32 s49, s3, 12\nv_add_u32 v{vT}, s49, v{vT}')
        e(f'v_lshl_add_u32 v{vX}, v{vT2}, 4, v{vT}')
        e(f'v_lshl_add_u32 v{vTr}, v{vT2}, 3, v{vT}')
        vWq = 15; NV = 66
        e(f'v_lshlrev_b32 v{vWq}, 13, v{vG}\nv_lshl_add_u32 v{vWq}, v{vC}, 4, v{vWq}')
        e('s_lshl_b32 s50, s44, 20\ns_lshl_b32 s51, s45, 8\ns_add_u32 s50, s50, s51\ns_sub_u32 s51, 0x800000, s50')
        e('s_lshl_b32 s52, s44, 8\ns_lshl_b32 s53, s48, 9')
        e(f's_lshl_b32 s54, s3, 13\ns_add_u32 m0, s54, {L_WQ:#x}\ns_lshl_b32 s55, s3, 18')
        e('s_memrealtime s[62:63]')
        e(f'v_lshrrev_b32 v{vT}, 3, v{vC}\nv_lshlrev_b32 v{vSt}, 6, v{vT}\nv_lshl_add_u32 v{vSt}, v{vG}, 4, v{vSt}\nv_lshl_add_u32 v{vSt}, v{vC7}, 19, v{vSt}')
        e('s_waitcnt lgkmcnt(0)')
        self.srd(40, 24, 25, None, 256)
        e(f'v_mov_b32 v{vT2}, 0')
        e('s_or_b32 s56, s2, s3\ns_cmp_lg_u32 s56, 0\ns_cbranch_scc1 L_a_nononce')
        e(f's_or_b32 s62, s62, 1\ns_or_b32 s63, s63, 0x80000000\nv_mov_b32 v{NV}, s62\nv_mov_b32 v{NV+1}, s63\ns_mov_b64 exec, 1')
        e(f'buffer_store_dwordx2 v[{NV}:{NV+1}], v{vT2}, s[40:43], 0 offen sc1\ns_mov_b64 exec, -1')
        e('L_a_nononce:')
        self.srd(28, 4, 5, None, 0x4000)
        self.srd(32, 10, 11, 50, size_sgpr=51)
        for i in range(4): e(f'buffer_load_dwordx4 v[{X+4*i}:{X+4*i+3}], v{vX}, s[28:31], 0 offen offset:{i*512}')
        e(f'buffer_load_dwordx2 v[{XQ}:{XQ+1}], v{vTr}, s[28:31], s52 offen')
        e(f'buffer_load_dwordx4 v[{XFr}:{XFr+3}], v{vX}, s[28:31], s53 offen')
        for i in range(8):
            e(f'buffer_load_dwordx4 v{vWq}, s[32:35], s55 offen {WP} lds')
            if i < 7: e('s_add_u32 m0, m0, 0x400\ns_add_u32 s55, s55, 0x8000\ns_nop 0')
        self.srd(36, 26, 27, None, W_SIZE)
        c('clear own AP slots + OX slot with the sentinel')
        for k in range(4): e(f'v_mov_b32 v{U+k}, -1')
        e(f's_lshl_b32 s61, s44, 14\ns_lshl_b32 s55, s3, 12\ns_add_u32 s61, s61, s55\ns_lshl_b32 s55, s45, 7\ns_add_u32 s61, s61, s55\ns_add_u32 s61, s61, {W_AP:#x}')
        e(f'buffer_store_dwordx4 v[{U}:{U+3}], v{vSt}, s[36:39], s61 offen sc1')
        e(f's_lshl_b32 s54, s46, 8\ns_lshl_b32 s55, s3, 6\ns_add_u32 s54, s54, s55\ns_add_u32 s54, s54, {W_OX:#x}\ns_mov_b64 exec, 15')
        e(f'buffer_store_dwordx4 v[{U}:{U+3}], v{vL16}, s[36:39], s54 offen sc1\ns_mov_b64 exec, -1')
        e('s_barrier')
        self.stamp(14)
        c('LN stats')
        e('s_waitcnt vmcnt(12)')
        self.stamp(15)
        for i in range(16):
            e(f'v_lshlrev_b32 v{U+2*i}, 16, v{X+i}\nv_and_b32 v{U+2*i+1}, 0xffff0000, v{X+i}')
        S0 = 12
        e(f'v_pk_add_f32 v[{S0}:{S0+1}], v[{U}:{U+1}], v[{U+2}:{U+3}]\nv_pk_add_f32 v[{S0+2}:{S0+3}], v[{U+4}:{U+5}], v[{U+6}:{U+7}]')
        for i in range(4, 16):
            a = S0 + 2 * (i & 1)
            e(f'v_pk_add_f32 v[{a}:{a+1}], v[{a}:{a+1}], v[{U+2*i}:{U+2*i+1}]')
        e(f'v_pk_add_f32 v[{S0}:{S0+1}], v[{S0}:{S0+1}], v[{S0+2}:{S0+3}]\nv_add_f32 v{S0}, v{S0}, v{S0+1}')
        self.ror_reduce('v_add_f32', S0)
        self.swap_reduce('v_add_f32', S0, vT, 16)
        M = X
        e(f'v_mul_f32 v{M}, {f2u(-1.0/1024):#x}, v{S0}\nv_mov_b32 v{M+1}, v{M}')
        for i in range(16): e(f'v_pk_add_f32 v[{U+2*i}:{U+2*i+1}], v[{U+2*i}:{U+2*i+1}], v[{M}:{M+1}]')
        e(f'v_pk_mul_f32 v[{S0}:{S0+1}], v[{U}:{U+1}], v[{U}:{U+1}]\nv_pk_mul_f32 v[{S0+2}:{S0+3}], v[{U+2}:{U+3}], v[{U+2}:{U+3}]')
        for i in range(2, 16):
            a = S0 + 2 * (i & 1)
            e(f'v_pk_fma_f32 v[{a}:{a+1}], v[{U+2*i}:{U+2*i+1}], v[{U+2*i}:{U+2*i+1}], v[{a}:{a+1}]')
        e(f'v_pk_add_f32 v[{S0}:{S0+1}], v[{S0}:{S0+1}], v[{S0+2}:{S0+3}]\nv_add_f32 v{S0}, v{S0}, v{S0+1}')
        self.ror_reduce('v_add_f32', S0)
        self.swap_reduce('v_add_f32', S0, vT, 16)
        RR, RC = S0, S0 + 1
        e(f'v_mul_f32 v{RR}, {f2u(1.0/1024):#x}, v{S0}'); self.rnd_bf16(RR)
        e(f'v_add_f32 v{RR}, {f2u(1e-5):#x}, v{RR}'); self.rnd_bf16(RR)
        e(f'v_sqrt_f32 v{RR}, v{RR}\ns_nop 0'); self.rnd_bf16(RR)
        e(f'v_rcp_f32 v{RC}, v{RR}')
        self.rnd_bf16(M)
        def norm(src, n):
            for i in range(n):
                a, b2, q0, q1 = U, U + 1, U + 2, U + 3
                e(f'v_lshlrev_b32 v{a}, 16, v{src+i}\nv_and_b32 v{b2}, 0xffff0000, v{src+i}')
                e(f'v_add_f32 v{a}, v{a}, v{M}\nv_add_f32 v{b2}, v{b2}, v{M}')
                e(f'v_cvt_pk_bf16_f32 v{b2}, v{a}, v{b2}')
                e(f'v_lshlrev_b32 v{a}, 16, v{b2}\nv_and_b32 v{b2}, 0xffff0000, v{b2}')
                e(f'v_mul_f32 v{q0}, v{a}, v{RC}\nv_mul_f32 v{q1}, v{b2}, v{RC}')
                e(f'v_fma_f32 v{a}, -v{q0}, v{RR}, v{a}\nv_fma_f32 v{b2}, -v{q1}, v{RR}, v{b2}')
                e(f'v_fmac_f32 v{q0}, v{a}, v{RC}\nv_fmac_f32 v{q1}, v{b2}, v{RC}')
                e(f'v_cvt_pk_bf16_f32 v{src+i}, v{q0}, v{q1}')
        e('s_cmp_lg_u32 s3, 0\ns_cbranch_scc1 L_a_nn1')
        e(f'buffer_load_dwordx2 v[{NV}:{NV+1}], v{vT2}, s[40:43], 0 offen sc1')
        e('L_a_nn1:')
        e('s_waitcnt vmcnt(10)')
        norm(XQ, 2)
        e(f'v_lshlrev_b32 v{vT}, 3, v1\ns_lshl_b32 s54, s3, 9\ns_add_u32 s54, s54, {L_XQ:#x}\nv_add_u32 v{vT}, s54, v{vT}')
        e(f'ds_write_b64 v{vT}, v[{XQ}:{XQ+1}]')
        e('s_waitcnt vmcnt(0)')
        e('s_cmp_lg_u32 s3, 0\ns_cbranch_scc1 L_a_nn2\ns_mov_b32 s57, 0')
        e('L_npoll:')
        e(f'v_readfirstlane_b32 s56, v{NV+1}\ns_cmp_lg_u32 s56, 0\ns_cbranch_scc1 L_ngo')
        e(f'buffer_load_dwordx2 v[{NV}:{NV+1}], v{vT2}, s[40:43], 0 offen sc1')
        e('s_add_u32 s57, s57, 1\ns_waitcnt vmcnt(0)\ns_cmp_lt_u32 s57, 0x10000\ns_cbranch_scc1 L_npoll\nL_ngo:')
        e(f'ds_write_b64 v{vCnt}, v[{NV}:{NV+1}] offset:{L_NONCE-L_CNT}')
        e('L_a_nn2:')
        e('s_waitcnt lgkmcnt(0)')
        self.arrive(0, vCnt, vT, 56)
        e(f'v_bfe_u32 v{vT}, v1, 2, 2\nv_lshl_add_u32 v{vT}, v{vG}, 3, v{vT}')
        e(f'v_mov_b32 v{vX}, v{vT}')
        e(f'v_and_b32 v{vT2}, 3, v1\nv_lshlrev_b32 v{vT2}, 3, v{vT2}')
        e(f'v_lshl_add_u32 v{vTr}, v{vT}, 8, v{vT2}\ns_lshl_b32 s54, s3, 6\nv_add_u32 v{vTr}, s54, v{vTr}')
        e('s_mov_b32 s58, 0xff00ff00\ns_mov_b32 s59, 0xff00ff00')
        vBa = 14
        e(f'v_lshlrev_b32 v{vBa}, 8, v{vC7}\nv_lshl_add_u32 v{vBa}, v{vG}, 4, v{vBa}\nv_add_u32 v{vBa}, {L_XQ:#x}, v{vBa}')
        self.lds_wait(0, 4, vCnt, vT, 56)
        self.stamp(8)
        c('q partial')
        e(f'ds_read_b64 v[{NV}:{NV+1}], v{vCnt} offset:{L_NONCE-L_CNT}')
        BB = 80; AW = 96; D0 = 72; D1 = 76
        for kk in range(4): e(f'ds_read_b128 v[{BB+4*kk}:{BB+4*kk+3}], v{vBa} offset:{kk*64}')
        def tile128(base):
            for ct in range(2):
                for kk in range(4):
                    for hh in range(2):
                        r = AW + (ct * 4 + kk) * 4 + hh * 2
                        e(f'ds_read_b64_tr_b16 v[{r}:{r+1}], v{vTr} offset:{base + kk*8192 + hh*1024 + ct*32}')
                if ct == 0: e('s_waitcnt lgkmcnt(6)')
        def mm128():
            for kk in range(4):
                for ct in range(2):
                    d = (D0, D1)[ct]; r = AW + (ct * 4 + kk) * 4
                    cc = '0' if kk == 0 else f'v[{d}:{d+3}]'
                    e(f'v_mfma_f32_16x16x32_bf16 v[{d}:{d+3}], v[{r}:{r+3}], v[{BB+4*kk}:{BB+4*kk+3}], {cc}')
        def merge(da, db):
            for i in range(4): e(f'v_cndmask_b32 v{da+i}, v{da+i}, v{db+i}, s[58:59]')
        tile128(L_WQ)
        e(f's_lshl_b32 s54, s45, 12\ns_lshl_b32 s55, s44, 9\ns_add_u32 s54, s54, s55\ns_lshl_b32 s55, s3, 7\ns_add_u32 s54, s54, s55')
        e('s_waitcnt lgkmcnt(0)')
        mm128()
        e('s_nop 7')
        merge(D0, D1)
        e(f'buffer_store_dwordx4 v[{D0}:{D0+3}], v{vSt}, s[36:39], s54 offen sc1')
        norm(XFr, 4)
        e(f's_lshl_b32 s54, s3, 10\ns_add_u32 s54, s54, {L_XF:#x}\nv_add_u32 v{vT}, s54, v{vL16}')
        e(f'ds_write_b128 v{vT}, v[{XFr}:{XFr+3}]')
        e('s_waitcnt vmcnt(0)')
        def signal(cnt, idx):
            self.arrive(cnt, vCnt, vT, 56)
            l = self.lab('L_ns')
            e(f's_cmp_lg_u32 s56, 3\ns_cbranch_scc1 {l}')
            e(f's_lshl_b32 s56, s46, 7\ns_add_u32 s56, s56, {W_ST:#x}\ns_mov_b64 exec, 1\nv_mov_b32 v{vT2}, 0')
            e(f'buffer_store_dwordx2 v[{NV}:{NV+1}], v{vT2}, s[36:39], s56 offen offset:{idx*8} sc1\ns_mov_b64 exec, -1')
            e(f'{l}:')
        def tagpoll(name, vaddr, soff, idx, sleep):
            e(f's_mov_b32 s57, 0\n{name}:')
            e(f'buffer_load_dwordx2 v[{U}:{U+1}], v{vaddr}, s[36:39], {soff} offen offset:{idx*8} sc1')
            e(f's_add_u32 s57, s57, 1\ns_waitcnt vmcnt(0)')
            e(f'v_cmp_ne_u64 vcc, v[{U}:{U+1}], v[{NV}:{NV+1}]')
            e(f's_cbranch_vccz {name}_go')
            if sleep: e(f's_sleep {sleep}')
            e(f's_cmp_lt_u32 s57, 0x10000\ns_cbranch_scc1 {name}\n{name}_go:')
        signal(1, 0)
        self.stamp(9)
        e('s_cmp_lg_u32 s3, 0\ns_cbranch_scc1 L_a_b1')
        c('wave a=0: gather q')
        e(f's_lshl_b32 s54, s45, 10\ns_add_u32 s54, s54, {W_ST:#x}\nv_lshlrev_b32 v{vT2}, 7, v{vC7}')
        tagpoll('L_qpoll', vT2, 's54', 0, 0)
        e(f's_mul_i32 s54, s44, {W_BSTRIDE:#x}\ns_lshl_b32 s55, s45, 12\ns_add_u32 s54, s54, s55')
        for i in range(4): e(f'buffer_load_dwordx4 v[{U+4*i}:{U+4*i+3}], v{vL16}, s[36:39], s54 offen offset:{i*1024} sc1')
        e(f'v_and_b32 v{vT}, 31, v1\nv_lshlrev_b32 v{vT}, 3, v{vT}\nv_add_u32 v{vT}, {L_QL:#x}, v{vT}')
        e('s_waitcnt vmcnt(0)')
        for i in range(1, 4):
            for k in range(4): e(f'v_add_f32 v{U+k}, v{U+k}, v{U+4*i+k}')
        for k in range(4): e(f'v_mov_b32 v{U+4+k}, v{U+k}')
        e('s_nop 0')
        for k in range(4): e(f'v_permlane32_swap_b32 v{U+k}, v{U+4+k}')
        for k in range(4): e(f'v_add_f32 v{U+k}, v{U+k}, v{U+4+k}')
        e(f'v_cvt_pk_bf16_f32 v{U}, v{U}, v{U+1}\nv_cvt_pk_bf16_f32 v{U+1}, v{U+2}, v{U+3}')
        e(f'ds_write_b64 v{vT}, v[{U}:{U+1}]')
        e('L_a_b1:')
        e('s_waitcnt lgkmcnt(0)')
        self.stamp(10)
        e('s_barrier')
        c('FFN stage 1')
        e('s_cmp_ge_u32 s46, 224\ns_cbranch_scc1 L_a_s1done')
        B1 = 80; A1 = 112
        e(f'v_lshlrev_b32 v{vBa}, 9, v{vC7}\nv_lshl_add_u32 v{vBa}, v{vG}, 4, v{vBa}\nv_add_u32 v{vBa}, {L_XF:#x}, v{vBa}')
        for kk in range(8): e(f'ds_read_b128 v[{B1+4*kk}:{B1+4*kk+3}], v{vBa} offset:{kk*64}')
        vT3 = 15
        e(f'v_and_b32 v{vT2}, 3, v1\nv_lshlrev_b32 v{vT2}, 3, v{vT2}\nv_lshl_add_u32 v{vT3}, v{vX}, 7, v{vT2}')
        e(f's_lshl_b32 s54, s3, 5\ns_add_u32 s54, s54, {L_GATE:#x}\nv_add_u32 v{vT3}, s54, v{vT3}')
        e('s_waitcnt lgkmcnt(0)')
        for mat in range(2):
            for kk in range(8):
                for hh in range(2):
                    r = A1 + (mat * 8 + kk) * 4 + hh * 2
                    e(f'ds_read_b64_tr_b16 v[{r}:{r+1}], v{vT3} offset:{mat*0x8000 + kk*4096 + hh*512}')
                if kk % 4 == 3: e('s_waitcnt lgkmcnt(0)')
        for kk in range(8):
            for mat in range(2):
                d = (D0, D1)[mat]; r = A1 + (mat * 8 + kk) * 4
                cc = '0' if kk == 0 else f'v[{d}:{d+3}]'
                e(f'v_mfma_f32_16x16x32_bf16 v[{d}:{d+3}], v[{r}:{r+3}], v[{B1+4*kk}:{B1+4*kk+3}], {cc}')
        e('s_nop 7')
        merge(D0, D1)
        e(f's_lshl_b32 s54, s46, 12\ns_lshl_b32 s55, s3, 10\ns_add_u32 s54, s54, s55\ns_add_u32 s54, s54, {W_GU:#x}')
        e(f'buffer_store_dwordx4 v[{D0}:{D0+3}], v{vL16}, s[36:39], s54 offen sc1')
        e('L_a_s1done:')
        e('s_waitcnt vmcnt(0)')
        signal(2, 1)
        self.lds_wait(2, 4, vCnt, vT, 56)
        c('wo tile DMA')
        e('s_lshl_b32 s50, s45, 18\ns_lshl_b32 s51, s44, 8\ns_add_u32 s50, s50, s51\ns_sub_u32 s51, 0x800000, s50')
        self.srd(32, 12, 13, 50, size_sgpr=51)
        e(f'v_lshlrev_b32 v{vT}, 11, v{vG}\nv_lshl_add_u32 v{vT}, v{vC}, 4, v{vT}')
        e(f's_lshl_b32 s54, s3, 13\ns_add_u32 m0, s54, {L_WO:#x}\ns_lshl_b32 s55, s3, 16\ns_nop 0')
        for i in range(8):
            e(f'buffer_load_dwordx4 v{vT}, s[32:35], s55 offen {WP} lds')
            if i < 7: e('s_add_u32 m0, m0, 0x400\ns_add_u32 s55, s55, 0x2000\ns_nop 0')
        c('FFN stage 2')
        e('s_cmp_ge_u32 s46, 224\ns_cbranch_scc1 L_a_s2done')
        e(f's_lshl_b32 s54, s47, 9\ns_add_u32 s54, s54, {W_ST:#x}\nv_and_b32 v{vT2}, 3, v1\nv_lshlrev_b32 v{vT2}, 7, v{vT2}')
        tagpoll('L_gpoll', vT2, 's54', 1, 24)
        e(f's_lshl_b32 s54, s47, 14\ns_lshl_b32 s55, s3, 10\ns_add_u32 s54, s54, s55\ns_add_u32 s54, s54, {W_GU:#x}')
        for k in range(4):
            e(f'buffer_load_dwordx4 v[{U+4*k}:{U+4*k+3}], v{vL16}, s[36:39], s54 offen sc1')
            if k < 3: e('s_add_u32 s54, s54, 0x1000')
        e(f'v_lshlrev_b32 v{vT}, 7, v{vC7}\nv_lshl_add_u32 v{vT}, v{vG}, 3, v{vT}\ns_lshl_b32 s54, s3, 5\ns_add_u32 s54, s54, {L_HL:#x}\nv_add_u32 v{vT}, s54, v{vT}')
        e('s_waitcnt vmcnt(0)')
        for i in range(1, 4):
            for k in range(4): e(f'v_add_f32 v{U+k}, v{U+k}, v{U+4*i+k}')
        for k in range(4): self.rnd_bf16(U + k)
        e('s_nop 1')
        for k in range(4): e(f'v_mul_f32_dpp v{U+4+k}, v{U+k}, v{U+k} row_ror:8 row_mask:0xf bank_mask:0xf')
        e(f'v_cvt_pk_bf16_f32 v{U}, v{U+4}, v{U+5}\nv_cvt_pk_bf16_f32 v{U+1}, v{U+6}, v{U+7}')
        e(f'ds_write_b64 v{vT}, v[{U}:{U+1}]')
        e('s_waitcnt lgkmcnt(0)')
        self.arrive(3, vCnt, vT, 56)
        e(f'v_and_b32 v{vT2}, 3, v1\nv_lshlrev_b32 v{vT2}, 3, v{vT2}\nv_lshl_add_u32 v{vT3}, v{vX}, 9, v{vT2}')
        e(f's_lshl_b32 s54, s3, 7\ns_add_u32 s54, s54, {L_DOWN:#x}\nv_add_u32 v{vT3}, s54, v{vT3}')
        for ct in range(4):
            for kk in range(2):
                for hh in range(2):
                    r = A1 + (ct * 2 + kk) * 4 + hh * 2
                    e(f'ds_read_b64_tr_b16 v[{r}:{r+1}], v{vT3} offset:{kk*16384 + hh*2048 + ct*32}')
            if ct % 2 == 1: e('s_waitcnt lgkmcnt(0)')
        e(f'v_lshlrev_b32 v{vBa}, 7, v{vC7}\nv_lshl_add_u32 v{vBa}, v{vG}, 4, v{vBa}\nv_add_u32 v{vBa}, {L_HL:#x}, v{vBa}')
        self.lds_wait(3, 4, vCnt, vT, 56)
        for kk in range(2): e(f'ds_read_b128 v[{B1+4*kk}:{B1+4*kk+3}], v{vBa} offset:{kk*64}')
        e('s_waitcnt lgkmcnt(0)')
        DS = [D0, D1, 88, 92]
        for kk in range(2):
            for ct in range(4):
                d = DS[ct]; r = A1 + (ct * 2 + kk) * 4
                cc = '0' if kk == 0 else f'v[{d}:{d+3}]'
                e(f'v_mfma_f32_16x16x32_bf16 v[{d}:{d+3}], v[{r}:{r+3}], v[{B1+4*kk}:{B1+4*kk+3}], {cc}')
        e('s_nop 7')
        merge(DS[0], DS[1]); merge(DS[2], DS[3])
        e(f's_lshl_b32 s54, s48, 16\ns_lshl_b32 s55, s3, 14\ns_add_u32 s54, s54, s55\ns_lshl_b32 s55, s47, 7\ns_add_u32 s54, s54, s55\ns_add_u32 s54, s54, {W_FP:#x}')
        e(f'buffer_store_dwordx4 v[{DS[0]}:{DS[0]+3}], v{vSt}, s[36:39], s54 offen sc1')
        e('s_add_u32 s54, s54, 0x2000')
        e(f'buffer_store_dwordx4 v[{DS[2]}:{DS[2]+3}], v{vSt}, s[36:39], s54 offen sc1')
        e('L_a_s2done:')
        e('s_waitcnt vmcnt(0)')
        signal(4, 2)
        self.lds_wait(4, 4, vCnt, vT, 56)
        self.stamp(11)
        c('preload wo operands')
        tile128(L_WO)
        e('s_cmp_eq_u32 s3, 1\ns_cbranch_scc1 L_a_stats\ns_cmp_lg_u32 s3, 0\ns_cbranch_scc1 L_a_b2')
        c('wave a=0: wait for every workgroup, reduce FFN partials')
        e(f's_lshr_b32 s54, s45, 2\ns_lshl_b32 s54, s54, 7\ns_add_u32 s54, s54, {W_ST:#x}\nv_and_b32 v{vT2}, 31, v1\nv_lshlrev_b32 v{vT2}, 10, v{vT2}')
        tagpoll('L_c1poll', vT2, 's54', 0, 64)
        e(f's_lshr_b32 s54, s45, 3\ns_lshl_b32 s54, s54, 7\ns_add_u32 s54, s54, {W_ST:#x}\nv_min_u32 v{vT2}, 55, v1\nv_lshlrev_b32 v{vT2}, 9, v{vT2}')
        tagpoll('L_c3poll', vT2, 's54', 2, 64)
        e(f's_mul_i32 s54, s44, {W_BSTRIDE:#x}\ns_lshl_b32 s55, s45, 13\ns_add_u32 s54, s54, s55\ns_add_u32 s54, s54, {W_FP:#x}\ns_add_u32 s55, s54, 0x1000')
        for i in range(7):
            so = 's54' if i < 4 else 's55'
            e(f'buffer_load_dwordx4 v[{U+4*i}:{U+4*i+3}], v{vL16}, s[36:39], {so} offen offset:{(i%4)*1024} sc1')
        e(f's_lshl_b32 s54, s2, 6\nv_lshlrev_b32 v{vT}, 3, v{vC7}')
        e(f'buffer_load_dwordx2 v[{XQ}:{XQ+1}], v{vT}, s[28:31], s54 offen')
        e('s_waitcnt vmcnt(0)')
        self.colsum(U, 7, vT)
        for k in range(4): self.rnd_bf16(U + k)
        e(f'v_lshlrev_b32 v{U+4}, 16, v{XQ}\nv_and_b32 v{U+5}, 0xffff0000, v{XQ}\nv_lshlrev_b32 v{U+6}, 16, v{XQ+1}\nv_and_b32 v{U+7}, 0xffff0000, v{XQ+1}')
        e(f'v_lshlrev_b32 v{vT}, 4, v{vC7}\nv_add_u32 v{vT}, {L_FF:#x}, v{vT}')
        e(f'ds_write_b128 v{vT}, v[{U}:{U+3}]\nds_write_b128 v{vT}, v[{U+4}:{U+7}] offset:128')
        self.stamp(12)
        e('s_branch L_a_b2')
        c('wave a=1: softmax statistics')
        e('L_a_stats:')
        self.lds_wait(7, 4, vCnt, vT, 56, sleep=32)
        SV = 128
        e(f'v_mov_b32 v{vT}, {L_MW:#x}\nds_read_b128 v[{U}:{U+3}], v{vT}')
        vSl = vL16
        for i in range(16):
            e(f'ds_read_b128 v[{SV+4*i}:{SV+4*i+3}], v{vSl} offset:{L_S + i*1024}')
            if i % 8 == 7: e('s_waitcnt lgkmcnt(0)')
        e(f'v_max3_f32 v{vT}, v{U}, v{U+1}, v{U+2}\nv_max_f32 v{vT}, v{vT}, v{U+3}')
        e(f'v_mul_f32 v{vT}, {f2u(-1.4426950408889634):#x}, v{vT}\ns_mov_b32 s53, {f2u(1.4426950408889634):#x}')
        for i in range(64): e(f'v_fma_f32 v{SV+i}, v{SV+i}, s53, v{vT}')
        for i in range(64): e(f'v_exp_f32 v{SV+i}, v{SV+i}')
        for k in range(4): e(f'v_fma_f32 v{U+k}, v{U+k}, s53, v{vT}')
        for k in range(4): e(f'v_exp_f32 v{U+k}, v{U+k}')
        n = 32
        while n >= 2:
            for i in range(0, n, 2): e(f'v_pk_add_f32 v[{SV+i}:{SV+i+1}], v[{SV+i}:{SV+i+1}], v[{SV+n+i}:{SV+n+i+1}]')
            n //= 2
        e(f'v_add_f32 v{SV}, v{SV}, v{SV+1}')
        self.ror_reduce('v_add_f32', SV)
        self.swap_reduce('v_add_f32', SV, vT, 16)
        self.swap_reduce('v_add_f32', SV, vT, 32)
        e(f'v_rcp_f32 v{SV}, v{SV}\ns_nop 0')
        for k in range(4): e(f'v_mul_f32 v{U+k}, v{U+k}, v{SV}')
        e(f'v_mov_b32 v{vT}, {L_FW:#x}\nds_write_b128 v{vT}, v[{U}:{U+3}]')
        e('L_a_b2:')
        e(f'v_lshlrev_b32 v{vBa}, 8, v{vC7}\nv_lshl_add_u32 v{vBa}, v{vG}, 4, v{vBa}')
        e(f's_lshl_b32 s52, s45, 11\ns_add_u32 s52, s52, {W_OX:#x}')
        e('s_mov_b32 s57, 0\ns_waitcnt lgkmcnt(0)')
        e('s_barrier')
        e('L_opoll:')
        for kk in range(4): e(f'buffer_load_dwordx4 v[{BB+4*kk}:{BB+4*kk+3}], v{vBa}, s[36:39], s52 offen offset:{kk*64} sc1')
        e('s_add_u32 s57, s57, 1\ns_waitcnt vmcnt(0)')
        R = BB
        e(f'v_max3_u32 v{vT}, v{R}, v{R+1}, v{R+2}\nv_max3_u32 v{vT2}, v{R+3}, v{R+4}, v{R+5}')
        e(f'v_max3_u32 v{vT}, v{vT}, v{R+6}, v{R+7}\nv_max3_u32 v{vT2}, v{vT2}, v{R+8}, v{R+9}')
        e(f'v_max3_u32 v{vT}, v{vT}, v{R+10}, v{R+11}\nv_max3_u32 v{vT2}, v{vT2}, v{R+12}, v{R+13}')
        e(f'v_max3_u32 v{vT}, v{vT}, v{R+14}, v{R+15}\nv_max_u32 v{vT}, v{vT}, v{vT2}')
        e(f'v_cmp_eq_u32 vcc, -1, v{vT}')
        e('s_cmp_ge_u32 s57, 0x10000\ns_cbranch_scc1 L_ogo\ns_cbranch_vccnz L_opoll\nL_ogo:')
        mm128()
        e('s_nop 7')
        merge(D0, D1)
        for i in range(4): e(f'v_min_u32 v{D0+i}, 0xfffffffe, v{D0+i}')
        e(f'buffer_store_dwordx4 v[{D0}:{D0+3}], v{vSt}, s[36:39], s61 offen sc1')
        if self.stamps:
            self.stamp(13)
            e('s_cmp_lg_u32 s3, 0\ns_cbranch_scc1 L_end')
            self.flush_stamps([8, 9, 10, 11, 12, 13, 14, 15], 200)

if __name__ == '__main__':
    import argparse
    ap = argparse.ArgumentParser()
    ap.add_argument('out'); ap.add_argument('--depth', type=int, default=5); ap.add_argument('--pdepth', type=int, default=5)
    ap.add_argument('--stamps', action='store_true'); ap.add_argument('--wpol', default='nt')
    a = ap.parse_args()
    open(a.out, 'w').write(Gen(a.depth, a.pdepth, a.stamps, a.wpol.replace('none', '')).build())
```

```python
import sys, struct
KN = 'parallel_sum__mha_block_cached__glu_gated_bilinear__decode_kernel'

def f2u(x): return struct.unpack('<I', struct.pack('<f', x))[0]

L_WQ = 0x00000
L_S = 0x00000
L_GATE = 0x08000
L_WO = 0x08000
L_UP = 0x10000
L_DOWN = 0x18000
L_XQ = 0x20000
L_XF = 0x20800
L_OL = 0x20800
L_QL = 0x21800
L_HL = 0x21900
L_DP = 0x22100
L_MW = 0x22900
L_FW = 0x22910
L_FF = 0x22920
L_CNT = 0x229a0
L_ZERO = 0x229e0
L_NONCE = 0x22a20
LDS_SIZE = 0x22a80
W_BSTRIDE = 0x80000
W_QP = 0x00000
W_AP = 0x20000
W_GU = 0x400000
W_OX = 0x500000
W_H = 0x520000
W_CT = 0x540000
W_SIZE = 0x600000
W_STAMP = 0x20000000

TB = 12
TMASK = (1 << TB) - 1

class Gen:
    def __init__(self, depth=5, pdepth=5, stamps=False, wpol='nt', edepth=31, usw=28, prio=0, prof=False, skip=0, ddepth=0, thr=48, cstart=6, dbg='', cper=4, table='0000000000112234', qsleep=0, gwait=2, hwait=4, csleep=4, burst=0, xs='sc1', xl='sc1', qj=0, qpol='sc1', fpol='sc1'):
        self.qj = qj; self.qpol = qpol.replace('+', ' '); self.fpol = fpol.replace('+', ' ')
        self.xs = xs.replace('+', ' '); self.xl = xl.replace('+', ' ')
        self.burst = burst
        self.qsleep = qsleep; self.gwait = gwait; self.hwait = hwait; self.csleep = csleep
        self.cper = cper; self.table = [int(ch, 16) for ch in table]
        self.dbg = set(dbg.split(','))
        self.skip = skip; self.ddepth = ddepth; self.thr = thr; self.cstart = cstart
        self.edepth = edepth; self.usw = usw; self.prio = prio; self.prof = prof
        self.L = []; self.depth = depth; self.pdepth = pdepth; self.stamps = stamps; self.uid = 0; self.wpol = wpol
    def e(self, s):
        for l in s.split('\n'): self.L.append('    ' + l.strip() if not l.strip().endswith(':') else l.strip())
    def c(self, s): self.L.append('    ; ' + s)
    def lab(self, p='L'):
        self.uid += 1; return f'{p}_{self.uid}'
    def srd(self, d, plo, phi, off_lo=None, size=None, size_sgpr=None):
        e = self.e
        if off_lo is None:
            e(f's_mov_b32 s{d}, s{plo}\ns_mov_b32 s{d+1}, s{phi}')
        else:
            e(f's_add_u32 s{d}, s{plo}, s{off_lo}\ns_addc_u32 s{d+1}, s{phi}, 0')
        if size_sgpr is not None: e(f's_mov_b32 s{d+2}, s{size_sgpr}')
        else: e(f's_mov_b32 s{d+2}, {size:#x}')
        e(f's_mov_b32 s{d+3}, 0x20000')
    def stamp(self, idx):
        if self.stamps:
            self.e(f's_memrealtime s[{64+2*idx}:{65+2*idx}]\ns_waitcnt lgkmcnt(0)')
    def flush_stamps(self, idxs, vt):
        if not self.stamps: return
        e = self.e
        e(f's_add_u32 s96, s26, {W_STAMP:#x}\ns_addc_u32 s97, s27, 0\ns_mov_b32 s98, 0x10000\ns_mov_b32 s99, 0x20000')
        e(f's_lshl_b32 s60, s2, 7\nv_mov_b32 v{vt+2}, s60')
        for i in idxs:
            e(f'v_mov_b32 v{vt}, s{64+2*i}\nv_mov_b32 v{vt+1}, s{65+2*i}')
            e(f'buffer_store_dwordx2 v[{vt}:{vt+1}], v{vt+2}, s[96:99], 0 offen offset:{i*8}\ns_nop 1')
    def ror_reduce(self, op, v, steps=(8, 4, 2, 1)):
        for s in steps:
            self.e(f's_nop 1\n{op}_dpp v{v}, v{v}, v{v} row_ror:{s} row_mask:0xf bank_mask:0xf')
    def swap_reduce(self, op, v, t, which):
        self.e(f'v_mov_b32 v{t}, v{v}\ns_nop 1\nv_permlane{which}_swap_b32 v{v}, v{t}\ns_nop 0\n{op} v{v}, v{v}, v{t}')
    def rnd_bf16(self, v, t=None):
        self.e(f'v_cvt_pk_bf16_f32 v{v}, v{v}, v{v}\nv_and_b32 v{v}, 0xffff0000, v{v}')
    def arrive(self, cnt, vaddr_zero, vt, sret):
        e = self.e
        e(f's_mov_b64 exec, 1\nv_mov_b32 v{vt}, 1')
        e(f'ds_add_rtn_u32 v{vt}, v{vaddr_zero}, v{vt} offset:{cnt*4}')
        e(f's_waitcnt lgkmcnt(0)\nv_readfirstlane_b32 s{sret}, v{vt}\ns_mov_b64 exec, -1')
    def lds_wait(self, cnt, target, vaddr_zero, vt, st, sleep=0):
        e = self.e; l = self.lab('L_w'); d = self.lab('L_wd')
        e(f's_mov_b32 s{st+1}, 0')
        e(f'{l}:')
        e(f'ds_read_b32 v{vt}, v{vaddr_zero} offset:{cnt*4}')
        e(f's_waitcnt lgkmcnt(0)\nv_readfirstlane_b32 s{st}, v{vt}')
        e(f's_cmp_ge_u32 s{st}, {target}\ns_cbranch_scc1 {d}')
        if sleep: e(f's_sleep {sleep}')
        e(f's_add_u32 s{st+1}, s{st+1}, 1\ns_cmp_lt_u32 s{st+1}, 0x100000\ns_cbranch_scc1 {l}')
        e(f'{d}:')

    def build(self):
        e, c = self.e, self.c
        D = self.depth; PD = self.pdepth; WP = self.wpol
        hdr = open('parallel_sum__mha_block_cached__glu_gated_bilinear__decode.s.ref').read().split('; @launch')[0]
        self.L.append(hdr.rstrip('\n'))
        self.L.append(f'; @launch grid=(256,1,1) block=(512,1,1) lds={LDS_SIZE}')
        self.L.append('.amdgcn_target "amdgcn-amd-amdhsa--gfx950"\n.text')
        self.L.append(f'.globl {KN}\n.p2align 8\n.type {KN},@function\n{KN}:')
        e('s_cmp_ge_u32 s2, 256\ns_cbranch_scc1 L_end')
        if self.stamps: e('s_memrealtime s[64:65]')
        e('v_cmp_gt_u32 vcc, 32, v0\ns_cbranch_vccz L_nozero')
        e(f'v_lshlrev_b32 v1, 2, v0\nv_and_b32 v1, 63, v1\nv_mov_b32 v2, 0\nds_write_b32 v1, v2 offset:{L_CNT & 0xffff}' if False else
          f'v_lshlrev_b32 v1, 2, v0\nv_and_b32 v1, 127, v1\nv_add_u32 v1, {L_CNT:#x}, v1\nv_mov_b32 v2, 0\nds_write_b32 v1, v2\ns_waitcnt lgkmcnt(0)')
        e('L_nozero:')
        e('s_load_dwordx16 s[4:19], s[0:1], 0\ns_load_dwordx8 s[20:27], s[0:1], 64')
        e('v_and_b32 v1, 63, v0\nv_lshrrev_b32 v2, 6, v0')
        e('s_lshr_b32 s44, s2, 5\ns_and_b32 s45, s2, 31')
        e('v_readfirstlane_b32 s3, v2')
        e('s_lshl_b32 s46, s45, 3\ns_add_u32 s46, s46, s44\ns_lshr_b32 s47, s46, 2\ns_and_b32 s48, s46, 3')
        e('s_barrier')
        e('s_cmp_ge_u32 s3, 4\ns_cbranch_scc1 L_aux')
        self.stream()
        e('L_aux:')
        self.aux()
        e('L_end:\ns_endpgm')
        self.L.append('.section .rodata,"a"\n.p2align 6')
        self.L.append(f'.amdhsa_kernel {KN}\n  .amdhsa_next_free_vgpr 256\n  .amdhsa_next_free_sgpr 102\n  .amdhsa_accum_offset 256')
        self.L.append('  .amdhsa_group_segment_fixed_size 0\n  .amdhsa_kernarg_size 96\n  .amdhsa_user_sgpr_count 2\n  .amdhsa_user_sgpr_kernarg_segment_ptr 1\n  .amdhsa_system_sgpr_workgroup_id_x 1\n.end_amdhsa_kernel')
        out = []
        for l in '\n'.join(self.L).split('\n'):
            if 's[36:39]' in l and l.rstrip().endswith(' sc1') and 'atomic' not in l:
                if 'store' in l: l = l.rstrip()[:-4] + ' ' + self.xs
                else: l = l.rstrip()[:-4] + ' ' + self.xl
            out.append(l)
        return '\n'.join(out) + '\n'

    def stream(self):
        e, c = self.e, self.c
        D = self.depth; PD = self.pdepth; WP = self.wpol; DP = self.ddepth
        vP, vV, vGU, vDN, vSa, vMax, vS, vA, vB, vT, vNM, vSn, vPp = 2, 6, 10, 11, 12, 13, 14, 15, 16, 17, 18, 19, 20
        vCnt = 21; vDec = 10; vPr = 11; vIt = 60
        DD = [24, 28]; Q = 32; MK = 48; AA = 52; O = 56; RING = 64
        NS = 32
        c('=== stream waves (0..3) ===')
        if self.prio: e(f's_setprio {self.prio}')
        e(f'v_mov_b32 v{vCnt}, {L_CNT:#x}')
        e(f'v_and_b32 v{vP}, 3, v1\nv_lshlrev_b32 v{vP}, 4, v{vP}')
        e(f'v_bfe_u32 v{vT}, v1, 2, 2\nv_lshl_add_u32 v{vP}, v{vT}, 8, v{vP}')
        e(f'v_lshrrev_b32 v{vT}, 4, v1\nv_lshl_add_u32 v{vP}, v{vT}, 6, v{vP}')
        e('s_lshl_b32 s49, s3, 12')
        e(f'v_add_u32 v{vP}, s49, v{vP}')
        for u in range(1, 4): e(f'v_add_u32 v{vP+u}, {u*16384:#x}, v{vP}')
        e('s_lshl_b32 s50, s2, 20')
        e('s_mov_b32 s51, 0\ns_mov_b32 s55, 0x10000')
        e('s_waitcnt lgkmcnt(0)')
        self.srd(40, 6, 7, 50, 0x100000)
        def kload(j):
            so = 's51' if j < 16 else 's55'
            e(f'buffer_load_dwordx4 v[{RING+4*j}:{RING+4*j+3}], v{vP+(j%16)//4}, s[40:43], {so} offen offset:{(j%4)*1024} nt')
        def pst(i):
            if self.prof: e(f's_memrealtime s[62:63]\ns_waitcnt lgkmcnt(0)\nv_writelane_b32 v22, s62, {36+i}')
        B0 = self.burst or PD
        pst(0)
        for j in range(B0): kload(j)
        pst(1)
        e(f'v_lshlrev_b32 v{vV}, 4, v1\nv_add_u32 v{vV}, s49, v{vV}')
        for u in range(1, 4): e(f'v_add_u32 v{vV+u}, {u*16384:#x}, v{vV}')
        def dma(srd, vo, n, step):
            for i in range(n):
                e(f's_waitcnt vmcnt({PD-1})')
                e(f'buffer_load_dwordx4 v{vo}, s[{srd}:{srd+3}], s54 offen {WP} lds')
                if i < n - 1: e(f's_add_u32 m0, m0, 0x400\ns_add_u32 s54, s54, {step}')
        e('s_cmp_ge_u32 s46, 224\ns_cbranch_scc1 L_s_nodma')
        e(f'v_lshrrev_b32 v{vT}, 3, v1\nv_mul_u32_u24 v{vGU}, 7168, v{vT}\nv_and_b32 v{vT}, 7, v1\nv_lshl_add_u32 v{vGU}, v{vT}, 4, v{vGU}')
        e(f's_mul_i32 s52, s48, {256*7168}\ns_lshl_b32 s53, s47, 7\ns_add_u32 s52, s52, s53\ns_sub_u32 s53, {1024*7168}, s52')
        if 'cgu' in self.dbg:
            e(f'v_lshlrev_b32 v{vGU}, 4, v1\ns_lshl_b32 s52, s46, 15\ns_sub_u32 s53, {1024*7168}, s52')
        self.srd(28, 16, 17, 52, size_sgpr=53)
        self.srd(32, 18, 19, 52, size_sgpr=53)
        e(f's_lshl_b32 s56, s3, 13')
        for (srd, lbase) in ((28, L_GATE), (32, L_UP)):
            if 'cgu' in self.dbg:
                e(f's_add_u32 m0, s56, {lbase:#x}\ns_mul_i32 s54, s3, 8192')
                dma(srd, vGU, 8, 1024)
                continue
            e(f's_add_u32 m0, s56, {lbase:#x}\ns_mul_i32 s54, s3, {64*7168}')
            dma(srd, vGU, 8, 8*7168)
            pst(2 if srd == 28 else 3)
        e('L_s_nodma:')
        e(f'v_lshrrev_b32 v{vT}, 4, v1\nv_lshlrev_b32 v{vDN}, 11, v{vT}\nv_and_b32 v{vT}, 15, v1\nv_lshl_add_u32 v{vDN}, v{vT}, 4, v{vDN}')
        e(f's_mul_i32 s52, s45, {112*2048}\ns_lshl_b32 s53, s44, 8\ns_add_u32 s52, s52, s53\ns_sub_u32 s53, {3584*2048}, s52')
        if 'cdn' in self.dbg:
            e(f'v_lshlrev_b32 v{vDN}, 4, v1\ns_mul_i32 s52, s2, 28672\ns_sub_u32 s53, {3584*2048}, s52')
            self.srd(36, 20, 21, 52, size_sgpr=53)
            e(f's_mul_i32 s56, s3, 7168\ns_add_u32 m0, s56, {L_DOWN:#x}\ns_mul_i32 s54, s3, 7168')
            dma(36, vDN, 7, 1024)
        else:
            self.srd(36, 20, 21, 52, size_sgpr=53)
            e(f's_mul_i32 s56, s3, 7168\ns_add_u32 m0, s56, {L_DOWN:#x}\ns_mul_i32 s54, s3, {28*2048}')
            dma(36, vDN, 7, 4*2048)
        pst(4)
        for u in range(1, 4):
            m = 0x11111111 << u
            e(f's_mov_b32 s{54+2*u}, {m:#x}\ns_mov_b32 s{55+2*u}, {m:#x}')
        e(f'v_and_b32 v{vT}, 1, v1\nv_cmp_eq_u32 vcc, 1, v{vT}\nv_mov_b32 v{vA}, 0xffff\nv_mov_b32 v{vB}, 0xffff0000')
        e(f'v_cndmask_b32 v{vA}, v{vA}, v{vB}, vcc')
        e(f'v_bfe_u32 v{vT}, v1, 1, 3')
        for i in range(4):
            e(f'v_cmp_eq_u32 vcc, {i}, v{vT}\ns_nop 1\nv_cndmask_b32 v{MK+i}, 0, v{vA}, vcc')
        e(f'v_lshlrev_b32 v{vSa}, 2, v1\nv_add_u32 v{vSa}, s49, v{vSa}')
        if L_S: e(f'v_add_u32 v{vSa}, {L_S:#x}, v{vSa}')
        e(f'v_mov_b32 v{vMax}, 0xff800000')
        for i in range(4): e(f'v_mov_b32 v{O+i}, 0')
        e(f'v_mov_b32 v{vDec}, 0\ns_lshl_b32 s54, s3, 2\nv_add_u32 v{vPr}, s54, v{vCnt}')
        e(f'v_and_b32 v{vA}, 3, v1\nv_lshrrev_b32 v{vT}, 4, v1\nv_lshl_add_u32 v{vA}, v{vT}, 2, v{vA}\nv_lshlrev_b32 v{vA}, 4, v{vA}\nv_add_u32 v{vA}, {L_QL:#x}, v{vA}')
        e(f'v_bfe_u32 v{vT}, v1, 2, 2\nv_mov_b32 v{vB}, {L_ZERO:#x}')
        for t in range(4):
            e(f'v_cmp_eq_u32 vcc, {t}, v{vT}\ns_nop 1\nv_cndmask_b32 v{AA+t}, v{vB}, v{vA}, vcc')
        for j in range(B0, NS):
            e(f's_waitcnt vmcnt({PD-1})'); kload(j)
            if j == 19: pst(5)
            if j == self.qj: e(f'ds_write_b32 v{vPr}, v{vCnt} offset:48')
        pst(6)
        self.stamp(1)
        e('s_barrier')
        for t in range(4): e(f'ds_read_b128 v[{Q+4*t}:{Q+4*t+3}], v{AA+t}')
        e('s_waitcnt lgkmcnt(0)')
        self.stamp(2)
        e('s_mov_b32 s52, 0')
        def halftop(isv):
            if self.prof: e('s_mov_b32 m0, s52\ns_nop 0\nv_writelane_b32 v22, s62, m0')
            e(f'v_mov_b32 v{vIt}, s52\nds_write_b32 v{vPr}, v{vIt} offset:32')
            if DP:
                e(f'v_readfirstlane_b32 s54, v{vDec}\ns_nop 0')
                e(f'ds_read_b32 v{vDec}, v{vCnt} offset:20')
                e('s_cmp_lt_u32 s52, s54\ns_cselect_b64 vcc, -1, 0')
            if isv: e(f's_cmp_ge_u32 s52, {self.usw}')
        def gate(isv):
            lm = self.lab('L_m'); lx = self.lab('L_x')
            if isv: e(f's_cbranch_scc1 {lx}')
            if DP: e(f's_cbranch_vccnz {lm}')
            e(f's_waitcnt vmcnt({D-1})')
            if DP: e(f'{lm}:\ns_waitcnt vmcnt({DP-1})')
            if isv: e(f'{lx}:\ns_waitcnt vmcnt({self.edepth-1})')
        c('---- K loop ----')
        e('L_kloop:')
        e('s_add_u32 s51, s51, 0x20000\ns_add_u32 s55, s55, 0x20000')
        e('s_cmp_lg_u32 s52, 14\ns_cbranch_scc1 L_k_go')
        e('s_add_u32 s40, s8, s50\ns_addc_u32 s41, s9, 0\ns_mov_b32 s51, 0\ns_mov_b32 s55, 0x10000')
        for u in range(4): e(f'v_mov_b32 v{vP+u}, v{vV+u}')
        e('L_k_go:')
        def reduce(u):
            d = DD[u & 1]
            q1, q2, q3 = (u + 1) & 3, (u + 2) & 3, (u + 3) & 3
            e(f'v_add_f32_dpp v{vA}, v{d+q1}, v{d+q2} quad_perm:[{q1},{q1},{q1},{q1}] row_mask:0xf bank_mask:0xf')
            e(f'v_add_f32_dpp v{vB}, v{d+q3}, v{d+u} quad_perm:[{q3},{q3},{q3},{q3}] row_mask:0xf bank_mask:0xf')
            e('s_nop 0')
            dst = vS if u == 0 else vB
            e(f'v_add_f32_dpp v{dst}, v{vA}, v{vB} quad_perm:[{q2},{q2},{q2},{q2}] row_mask:0xf bank_mask:0xf')
            if u: e(f'v_cndmask_b32 v{vS}, v{vS}, v{vB}, s[{54+2*u}:{55+2*u}]')
        for hf in range(2):
            if self.prof: e('s_memrealtime s[62:63]')
            if DP or self.prof: e('s_waitcnt lgkmcnt(0)')
            halftop(False)
            for u in range(4):
                d = DD[u & 1]
                for t in range(4):
                    j = 16 * hf + 4 * u + t
                    cc = '0' if t == 0 else f'v[{d}:{d+3}]'
                    e(f'v_mfma_f32_16x16x32_bf16 v[{d}:{d+3}], v[{RING+4*j}:{RING+4*j+3}], v[{Q+4*t}:{Q+4*t+3}], {cc}')
                    if t == 2 and u > 0: reduce(u - 1)
                    gate(False); kload(j)
            e('s_nop 5')
            reduce(3)
            e(f'v_cvt_pk_bf16_f32 v{vS}, v{vS}, v{vS}\nv_lshlrev_b32 v{vS}, 16, v{vS}\nv_mul_f32 v{vS}, {f2u(128.0**-0.5):#x}, v{vS}')
            self.rnd_bf16(vS)
            e(f'v_max_f32 v{vMax}, v{vMax}, v{vS}\nds_write_b32 v{vSa}, v{vS}\nv_add_u32 v{vSa}, 0x100, v{vSa}')
            e('s_add_u32 s52, s52, 1')
        e('s_cmp_lt_u32 s52, 16\ns_cbranch_scc1 L_kloop')
        c('---- transition ----')
        e(f'v_add_u32 v{vSa}, -4096, v{vSa}')
        e(f'ds_read_b32 v{vSn}, v{vSa}')
        self.ror_reduce('v_max_f32', vMax)
        self.swap_reduce('v_max_f32', vMax, vT, 16)
        self.swap_reduce('v_max_f32', vMax, vT, 32)
        LOG2E = f2u(1.4426950408889634)
        e(f's_mov_b32 s53, {LOG2E:#x}')
        e(f'v_mul_f32 v{vNM}, {f2u(-1.4426950408889634):#x}, v{vMax}')
        e(f's_lshl_b32 s54, s3, 2\ns_add_u32 s54, s54, {L_MW:#x}\nv_mov_b32 v{vT}, s54')
        e(f'ds_write_b32 v{vT}, v{vMax}')
        e(f's_mov_b64 exec, 1\nv_mov_b32 v{vT}, 1\nds_add_u32 v{vCnt}, v{vT} offset:{7*4}\ns_mov_b64 exec, -1')
        self.stamp(3)
        c('---- V loop ----')
        assert self.edepth <= NS - 1
        e('L_vloop:')
        e('s_add_u32 s51, s51, 0x20000\ns_add_u32 s55, s55, 0x20000')
        e('s_cmp_eq_u32 s52, 30\ns_cselect_b32 s42, 0, s42')
        for hf in range(2):
            if self.prof: e('s_memrealtime s[62:63]')
            e(f'v_add_u32 v{vSa}, 0x100, v{vSa}')
            e('s_waitcnt lgkmcnt(0)')
            e(f'v_fma_f32 v{vT}, v{vSn}, s53, v{vNM}')
            e(f'ds_read_b32 v{vSn}, v{vSa}')
            e(f'v_exp_f32 v{vT}, v{vT}')
            halftop(True)
            e(f'v_cvt_pk_bf16_f32 v{vPp}, v{vT}, v{vT}\ns_nop 1')
            for u in range(4):
                for t in range(4):
                    j = 16 * hf + 4 * u + t
                    for i in range(4):
                        e(f'v_and_b32_dpp v{AA+i}, v{vPp}, v{MK+i} row_newbcast:{4*t+u} row_mask:0xf bank_mask:0xf')
                    e('s_nop 1')
                    e(f'v_mfma_f32_16x16x32_bf16 v[{O}:{O+3}], v[{AA}:{AA+3}], v[{RING+4*j}:{RING+4*j+3}], v[{O}:{O+3}]')
                    gate(True); kload(j)
            e('s_add_u32 s52, s52, 1')
        e('s_cmp_lt_u32 s52, 32\ns_cbranch_scc1 L_vloop')
        if self.prof:
            e(f's_memrealtime s[62:63]\ns_add_u32 s96, s26, {W_STAMP+0x10000:#x}\ns_addc_u32 s97, s27, 0\ns_mov_b32 s98, 0x100000\ns_mov_b32 s99, 0x20000')
            e('s_waitcnt lgkmcnt(0)\nv_writelane_b32 v22, s62, 32\nv_writelane_b32 v22, s64, 33')
            e('s_getreg_b32 s54, hwreg(HW_REG_HW_ID)\ns_nop 0\nv_writelane_b32 v22, s54, 34\ns_getreg_b32 s54, hwreg(HW_REG_XCC_ID)\ns_nop 0\nv_writelane_b32 v22, s54, 35')
            e('s_lshl_b32 s54, s2, 2\ns_add_u32 s54, s54, s3\ns_lshl_b32 s54, s54, 8\nv_lshlrev_b32 v23, 2, v1')
            e('buffer_store_dword v22, v23, s[96:99], s54 offen')
        c('---- stream epilogue ----')
        e(f'v_and_b32 v{vA}, 15, v1\nv_lshlrev_b32 v{vA}, 5, v{vA}\nv_lshrrev_b32 v{vT}, 4, v1\nv_lshl_add_u32 v{vA}, v{vT}, 4, v{vA}')
        e(f's_lshl_b32 s54, s3, 9\ns_add_u32 s54, s54, {L_DP:#x}\nv_add_u32 v{vA}, s54, v{vA}')
        e('s_mov_b32 exec_hi, 0')
        e(f'ds_write_b128 v{vA}, v[{O}:{O+3}]')
        e('s_mov_b64 exec, -1')
        self.srd(36, 26, 27, None, W_SIZE)
        e('s_waitcnt lgkmcnt(0)')
        self.stamp(4)
        e('s_barrier')
        e('s_cmp_eq_u32 s3, 0\ns_cbranch_scc1 L_final\ns_cmp_lg_u32 s3, 1\ns_cbranch_scc1 L_end')
        c('---- wave 1: combine o and publish ----')
        e(f'v_lshlrev_b32 v{vA}, 3, v1\nv_add_u32 v{vA}, {L_DP:#x}, v{vA}\nv_mov_b32 v{vB}, {L_FW:#x}')
        e(f'ds_read_b128 v[{Q}:{Q+3}], v{vB}')
        for w in range(4): e(f'ds_read_b64 v[{Q+4+2*w}:{Q+5+2*w}], v{vA} offset:{w*512}')
        e(f's_lshl_b32 s54, s46, 8\ns_add_u32 s54, s54, {W_OX:#x}\nv_lshlrev_b32 v{vT}, 2, v1')
        e('s_waitcnt lgkmcnt(0)')
        e(f'v_mul_f32 v{vA}, v{Q}, v{Q+4}\nv_mul_f32 v{vB}, v{Q}, v{Q+5}')
        for w in range(1, 4): e(f'v_fmac_f32 v{vA}, v{Q+w}, v{Q+4+2*w}\nv_fmac_f32 v{vB}, v{Q+w}, v{Q+5+2*w}')
        e(f'v_cvt_pk_bf16_f32 v{vA}, v{vA}, v{vB}')
        e(f'v_min_u32 v{vA}, 0xfffffffe, v{vA}')
        e(f'buffer_store_dword v{vA}, v{vT}, s[36:39], s54 offen sc1')
        self.stamp(5)
        c('collect o of the 8 batches of this head')
        R = RING
        e(f's_lshl_b32 s54, s45, 11\ns_add_u32 s54, s54, {W_OX:#x}\nv_lshlrev_b32 v{vT}, 4, v1')
        e(f'v_lshrrev_b32 v{vA}, 4, v1\nv_lshl_add_u32 v{vP}, v{vA}, 4, v{vT}\nv_add_u32 v{vP}, {L_OL:#x}, v{vP}')
        e('s_mov_b64 s[56:57], -1\ns_mov_b64 s[58:59], -1\ns_mov_b32 s55, 0')
        e('L_opoll:')
        for k in range(2):
            e(f's_mov_b64 exec, s[{56+2*k}:{57+2*k}]')
            e(f'buffer_load_dwordx4 v[{R+4*k}:{R+4*k+3}], v{vT}, s[36:39], s54 offen offset:{k*1024} sc1')
        e('s_mov_b64 exec, -1\ns_add_u32 s55, s55, 1\ns_waitcnt vmcnt(0)')
        e(f'v_max3_u32 v{vA}, v{R}, v{R+1}, v{R+2}\nv_max3_u32 v{vB}, v{R+4}, v{R+5}, v{R+6}\nv_max_u32 v{vA}, v{vA}, v{R+3}\nv_max_u32 v{vB}, v{vB}, v{R+7}')
        e(f'v_cmp_eq_u32 s[56:57], -1, v{vA}\nv_cmp_eq_u32 s[58:59], -1, v{vB}')
        e('s_cmp_ge_u32 s55, 0x10000\ns_cbranch_scc1 L_ogo\ns_or_b64 vcc, s[56:57], s[58:59]\ns_cbranch_scc1 L_opoll\nL_ogo:')
        e(f'ds_write_b128 v{vP}, v[{R}:{R+3}]\nds_write_b128 v{vP}, v[{R+4}:{R+7}] offset:{4*272}')
        e('s_waitcnt lgkmcnt(0)\ns_barrier')
        self.flush_stamps([5], 200)
        e('s_endpgm')
        c('---- wave 0: final reduction ----')
        e('L_final:')
        R = RING
        e(f'v_and_b32 v{vA}, 7, v1\nv_lshlrev_b32 v{vA}, 4, v{vA}\nv_add_u32 v{vA}, {L_FF:#x}, v{vA}')
        e(f'ds_read_b128 v[{Q}:{Q+3}], v{vA}\nds_read_b64 v[{Q+4}:{Q+5}], v{vCnt} offset:{L_NONCE-L_CNT}')
        e(f's_mul_i32 s54, s44, {W_BSTRIDE:#x}\ns_lshl_b32 s55, s45, 12\ns_add_u32 s54, s54, s55\ns_add_u32 s54, s54, {W_AP:#x}')
        e(f'v_lshlrev_b32 v{vT}, 4, v1')
        self.srd(32, 22, 23, None, 0x4000)
        e('s_mov_b32 s55, 0\ns_waitcnt vmcnt(0) lgkmcnt(0)')
        self.tags_from(Q + 4, MK)
        for i in range(4): e(f's_mov_b64 s[{56+2*i}:{57+2*i}], -1')
        e('s_barrier')
        if 'nob4' not in self.dbg: e('s_barrier')
        e('L_fpoll:')
        for i in range(4):
            e(f's_mov_b64 exec, s[{56+2*i}:{57+2*i}]')
            e(f'buffer_load_dwordx4 v[{R+4*i}:{R+4*i+3}], v{vT}, s[36:39], s54 offen offset:{i*1024} sc1')
        e('s_mov_b64 exec, -1\ns_add_u32 s55, s55, 1')
        for i in range(4):
            e(f's_waitcnt vmcnt({3-i})')
            for k in range(4): e(f'v_xor_b32 v{R+16+4*i+k}, v{R+4*i+k}, v{MK+k}')
            e(f'v_or3_b32 v{vA}, v{R+16+4*i}, v{R+17+4*i}, v{R+18+4*i}\nv_or_b32 v{vA}, v{vA}, v{R+19+4*i}\nv_and_b32 v{vA}, {TMASK:#x}, v{vA}')
            e(f'v_cmp_ne_u32 s[{56+2*i}:{57+2*i}], 0, v{vA}')
        e('s_cmp_ge_u32 s55, 0x10000\ns_cbranch_scc1 L_fgo')
        e('s_or_b64 vcc, s[56:57], s[58:59]\ns_or_b64 s[50:51], s[60:61], s[62:63]\ns_or_b64 vcc, vcc, s[50:51]\ns_cbranch_scc1 L_fpoll\nL_fgo:')
        R = R + 16
        self.colsum(R, 4, vT)
        e('s_waitcnt lgkmcnt(0)')
        for i in range(4): e(f'v_add_f32 v{R+i}, v{Q+i}, v{R+i}')
        e(f'v_cvt_pk_bf16_f32 v{R}, v{R}, v{R+1}\nv_cvt_pk_bf16_f32 v{R+1}, v{R+2}, v{R+3}')
        e(f's_lshl_b32 s54, s2, 6\nv_lshlrev_b32 v{vT}, 3, v1\ns_mov_b64 exec, 0xff')
        e(f'buffer_store_dwordx2 v[{R}:{R+1}], v{vT}, s[32:35], s54 offen')
        e('s_mov_b64 exec, -1')
        self.stamp(6)
        self.flush_stamps([0, 1, 2, 3, 4, 6], 200)
        e('s_endpgm')

    def colsum(self, R, n, vt):
        e = self.e
        for i in range(1, n):
            for k in range(4): e(f'v_add_f32 v{R+k}, v{R+k}, v{R+4*i+k}')
        e('s_nop 1')
        for k in range(4): e(f'v_add_f32_dpp v{R+k}, v{R+k}, v{R+k} row_ror:8 row_mask:0xf bank_mask:0xf')
        for which in (16, 32):
            for k in range(4): e(f'v_mov_b32 v{R+4+k}, v{R+k}')
            e('s_nop 0')
            for k in range(4): e(f'v_permlane{which}_swap_b32 v{R+k}, v{R+4+k}')
            for k in range(4): e(f'v_add_f32 v{R+k}, v{R+k}, v{R+4+k}')

    def tags_from(self, nv, tg):
        self.e(f'v_and_b32 v{tg}, {TMASK:#x}, v{nv}\nv_bfe_u32 v{tg+1}, v{nv}, 16, {TB}\nv_and_b32 v{tg+2}, {TMASK:#x}, v{nv+1}\nv_bfe_u32 v{tg+3}, v{nv+1}, 16, {TB}')
    def untag(self, R, n, tg, t0, t1, mask):
        e = self.e
        for i in range(4 * n): e(f'v_xor_b32 v{R+i}, v{R+i}, v{tg + (i & 3)}')
        e(f'v_or3_b32 v{t0}, v{R}, v{R+1}, v{R+2}\nv_or3_b32 v{t1}, v{R+3}, v{R+4}, v{R+5}')
        i = 6; k = 0
        while i < 4 * n:
            t = (t0, t1)[k & 1]; e(f'v_or3_b32 v{t}, v{t}, v{R+i}, v{R+i+1}'); i += 2; k += 1
        e(f'v_or_b32 v{t0}, v{t0}, v{t1}\nv_and_b32 v{t0}, {mask:#x}, v{t0}\nv_cmp_ne_u32 vcc, 0, v{t0}')

    def aux(self):
        e, c = self.e, self.c
        WP = self.wpol
        vCnt, vT, vT2, vG, vC, vC7, vSt, vTr, vL16, vX = 2, 3, 4, 5, 6, 7, 8, 9, 10, 11
        X = 16
        U = 32
        TG = 64
        XFr = 68
        NV = 28
        c('=== aux waves (4..7) ===')
        e('s_sub_u32 s3, s3, 4')
        e(f'v_mov_b32 v{vCnt}, {L_CNT:#x}')
        e(f'v_lshrrev_b32 v{vG}, 4, v1\nv_and_b32 v{vC}, 15, v1\nv_and_b32 v{vC7}, 7, v1\nv_lshlrev_b32 v{vL16}, 4, v1')
        e(f'v_lshrrev_b32 v{vT}, 5, v1\nv_lshlrev_b32 v{vT}, 11, v{vT}\nv_and_b32 v{vT2}, 31, v1')
        e(f's_lshl_b32 s49, s3, 12\nv_add_u32 v{vT}, s49, v{vT}')
        e(f'v_lshl_add_u32 v{vX}, v{vT2}, 4, v{vT}')
        vWq = 15
        e(f'v_lshrrev_b32 v{vT}, 3, v1\nv_lshlrev_b32 v{vWq}, 13, v{vT}\nv_lshl_add_u32 v{vWq}, v{vC7}, 4, v{vWq}')
        e('s_lshl_b32 s50, s48, 21\ns_lshl_b32 s51, s47, 7\ns_add_u32 s50, s50, s51\ns_sub_u32 s51, 0x800000, s50')
        e('s_lshl_b32 s53, s48, 9')
        e(f's_lshl_b32 s54, s3, 13\ns_add_u32 m0, s54, {L_WQ:#x}\ns_lshl_b32 s55, s3, 19')
        e('s_memrealtime s[62:63]')
        e(f'v_lshrrev_b32 v{vT}, 3, v{vC}\nv_lshlrev_b32 v{vSt}, 6, v{vT}\nv_lshl_add_u32 v{vSt}, v{vG}, 4, v{vSt}\nv_lshl_add_u32 v{vSt}, v{vC7}, 19, v{vSt}')
        e(f'v_mov_b32 v{vT2}, 0')
        e('s_xor_b32 s60, s3, 3\ns_or_b32 s60, s60, s2')
        e('s_waitcnt lgkmcnt(0)')
        self.srd(40, 24, 25, None, 256)
        self.srd(36, 26, 27, None, W_SIZE)
        e('s_cmp_lg_u32 s60, 0\ns_cbranch_scc1 L_a_noz')
        c('workgroup 0: publish the launch nonce: four fields of the clock, field 0 odd, field 1 even')
        e(f's_lshl_b32 s56, s62, 1\ns_or_b32 s56, s56, 1\ns_and_b32 s56, s56, {TMASK:#x}\ns_bfe_u32 s57, s62, {((TB-1) << 16) | (TB-1):#x}\ns_lshl_b32 s57, s57, 17\ns_or_b32 s56, s56, s57')
        e(f's_lshr_b64 s[62:63], s[62:63], {2*TB-2}\ns_and_b32 s57, s62, {TMASK:#x}\ns_bfe_u32 s62, s62, {(TB << 16) | TB:#x}\ns_lshl_b32 s62, s62, 16\ns_or_b32 s57, s57, s62\ns_or_b32 s57, s57, 0x80000000')
        e(f'v_mov_b32 v{TG}, s56\nv_mov_b32 v{TG+1}, s57\ns_mov_b64 exec, 1')
        e(f'buffer_store_dwordx2 v[{TG}:{TG+1}], v{vT2}, s[40:43], 0 offen sc1\ns_mov_b64 exec, -1')
        if self.ddepth:
            c('zero the progress counters (they only steer queue depth)')
            e(f'v_lshlrev_b32 v{vT}, 8, v1\ns_mov_b32 s56, {W_CT:#x}')
            for i in range(4):
                e(f'buffer_store_dword v{vT2}, v{vT}, s[36:39], s56 offen sc1')
                if i < 3: e('s_add_u32 s56, s56, 0x4000')
        e('L_a_noz:')
        if 'preap' in self.dbg:
            e(f's_mul_i32 s56, s44, {W_BSTRIDE:#x}\ns_lshl_b32 s57, s45, 12\ns_add_u32 s56, s56, s57\ns_lshl_b32 s57, s3, 10\ns_add_u32 s56, s56, s57\ns_add_u32 s56, s56, {W_AP:#x}')
            e(f'buffer_load_dwordx4 v[116:119], v{vL16}, s[36:39], s56 offen sc1')
        if 'preq' in self.dbg:
            e('s_cmp_ge_u32 s3, 2\ns_cbranch_scc1 L_a_nopreq')
            e(f's_mul_i32 s56, s44, {W_BSTRIDE:#x}\ns_lshl_b32 s57, s45, 11\ns_add_u32 s56, s56, s57\ns_lshl_b32 s57, s3, 10\ns_add_u32 s56, s56, s57')
            e(f'buffer_load_dwordx4 v[120:123], v{vL16}, s[36:39], s56 offen sc1')
            e('L_a_nopreq:')
        if 'pre' in self.dbg or 'pre1' in self.dbg:
            e('s_cmp_ge_u32 s3, 2\ns_cbranch_scc1 L_a_nopre')
            e(f's_mul_i32 s56, s44, {W_BSTRIDE:#x}\ns_lshl_b32 s57, s45, 11\ns_add_u32 s56, s56, s57\ns_lshl_b32 s57, s3, 10\ns_add_u32 s56, s56, s57')
            if 'pre1' in self.dbg: e('s_mov_b64 exec, 1')
            e(f'buffer_load_dwordx4 v[120:123], v{vL16}, s[36:39], s56 offen sc1')
            e(f's_lshl_b32 s56, s46, 8\ns_lshl_b32 s57, s3, 7\ns_add_u32 s56, s56, s57')
            if 'pre1' in self.dbg: e('s_mov_b64 exec, 0xff\ns_add_u32 s56, s56, 0x10000')
            e(f'buffer_load_dwordx4 v[124:127], v{vSt}, s[36:39], s56 offen sc1')
            if 'pre1' in self.dbg: e('s_mov_b64 exec, -1')
            e('L_a_nopre:')
        self.srd(28, 4, 5, None, 0x4000)
        self.srd(32, 10, 11, 50, size_sgpr=51)
        for i in range(4): e(f'buffer_load_dwordx4 v[{X+4*i}:{X+4*i+3}], v{vX}, s[28:31], 0 offen offset:{i*512}')
        e(f'buffer_load_dwordx4 v[{XFr}:{XFr+3}], v{vX}, s[28:31], s53 offen')
        for i in range(8):
            e(f'buffer_load_dwordx4 v{vWq}, s[32:35], s55 offen {WP} lds')
            if i < 7: e(f's_add_u32 m0, m0, 0x400\ns_add_u32 s55, s55, 0x10000\ns_nop 0')
        c('a=2: clear own OX slot with the sentinel')
        e('s_cmp_lg_u32 s3, 2\ns_cbranch_scc1 L_a_nocl')
        for k in range(4): e(f'v_mov_b32 v{U+k}, -1')
        e(f's_lshl_b32 s54, s46, 8\ns_add_u32 s54, s54, {W_OX:#x}\ns_mov_b64 exec, 0xffff')
        e(f'buffer_store_dwordx4 v[{U}:{U+3}], v{vL16}, s[36:39], s54 offen sc1\ns_mov_b64 exec, -1\ns_nop 0')
        e('L_a_nocl:')
        e(f's_lshl_b32 s61, s44, 14\ns_lshl_b32 s55, s3, 12\ns_add_u32 s61, s61, s55\ns_lshl_b32 s55, s45, 7\ns_add_u32 s61, s61, s55\ns_add_u32 s61, s61, {W_AP:#x}')
        self.stamp(14)
        c('LN stats')
        e('s_waitcnt vmcnt(9)')
        self.stamp(15)
        for i in range(16):
            e(f'v_lshlrev_b32 v{U+2*i}, 16, v{X+i}\nv_and_b32 v{U+2*i+1}, 0xffff0000, v{X+i}')
        S0 = 12
        e(f'v_pk_add_f32 v[{S0}:{S0+1}], v[{U}:{U+1}], v[{U+2}:{U+3}]\nv_pk_add_f32 v[{S0+2}:{S0+3}], v[{U+4}:{U+5}], v[{U+6}:{U+7}]')
        for i in range(4, 16):
            a = S0 + 2 * (i & 1)
            e(f'v_pk_add_f32 v[{a}:{a+1}], v[{a}:{a+1}], v[{U+2*i}:{U+2*i+1}]')
        e(f'v_pk_add_f32 v[{S0}:{S0+1}], v[{S0}:{S0+1}], v[{S0+2}:{S0+3}]\nv_add_f32 v{S0}, v{S0}, v{S0+1}')
        self.ror_reduce('v_add_f32', S0)
        self.swap_reduce('v_add_f32', S0, vT, 16)
        M = X
        e(f'v_mul_f32 v{M}, {f2u(-1.0/1024):#x}, v{S0}\nv_mov_b32 v{M+1}, v{M}')
        for i in range(16): e(f'v_pk_add_f32 v[{U+2*i}:{U+2*i+1}], v[{U+2*i}:{U+2*i+1}], v[{M}:{M+1}]')
        e(f'v_pk_mul_f32 v[{S0}:{S0+1}], v[{U}:{U+1}], v[{U}:{U+1}]\nv_pk_mul_f32 v[{S0+2}:{S0+3}], v[{U+2}:{U+3}], v[{U+2}:{U+3}]')
        for i in range(2, 16):
            a = S0 + 2 * (i & 1)
            e(f'v_pk_fma_f32 v[{a}:{a+1}], v[{U+2*i}:{U+2*i+1}], v[{U+2*i}:{U+2*i+1}], v[{a}:{a+1}]')
        e(f'v_pk_add_f32 v[{S0}:{S0+1}], v[{S0}:{S0+1}], v[{S0+2}:{S0+3}]\nv_add_f32 v{S0}, v{S0}, v{S0+1}')
        self.ror_reduce('v_add_f32', S0)
        self.swap_reduce('v_add_f32', S0, vT, 16)
        RR, RC = S0, S0 + 1
        e(f'v_mul_f32 v{RR}, {f2u(1.0/1024):#x}, v{S0}'); self.rnd_bf16(RR)
        e(f'v_add_f32 v{RR}, {f2u(1e-5):#x}, v{RR}'); self.rnd_bf16(RR)
        e(f'v_sqrt_f32 v{RR}, v{RR}\ns_nop 0'); self.rnd_bf16(RR)
        e(f'v_rcp_f32 v{RC}, v{RR}')
        self.rnd_bf16(M)
        def norm(src, n):
            for i in range(n):
                a, b2, q0, q1 = U, U + 1, U + 2, U + 3
                e(f'v_lshlrev_b32 v{a}, 16, v{src+i}\nv_and_b32 v{b2}, 0xffff0000, v{src+i}')
                e(f'v_add_f32 v{a}, v{a}, v{M}\nv_add_f32 v{b2}, v{b2}, v{M}')
                e(f'v_cvt_pk_bf16_f32 v{b2}, v{a}, v{b2}')
                e(f'v_lshlrev_b32 v{a}, 16, v{b2}\nv_and_b32 v{b2}, 0xffff0000, v{b2}')
                e(f'v_mul_f32 v{q0}, v{a}, v{RC}\nv_mul_f32 v{q1}, v{b2}, v{RC}')
                e(f'v_fma_f32 v{a}, -v{q0}, v{RR}, v{a}\nv_fma_f32 v{b2}, -v{q1}, v{RR}, v{b2}')
                e(f'v_fmac_f32 v{q0}, v{a}, v{RC}\nv_fmac_f32 v{q1}, v{b2}, v{RC}')
                e(f'v_cvt_pk_bf16_f32 v{src+i}, v{q0}, v{q1}')
        e('s_waitcnt vmcnt(8)')
        e('s_cmp_lg_u32 s3, 3\ns_cbranch_scc1 L_a_nn1')
        if 'nonon' in self.dbg: e(f'v_mov_b32 v{NV}, 0x01230457\nv_mov_b32 v{NV+1}, 0x89ab0cde')
        else: e(f'buffer_load_dwordx2 v[{NV}:{NV+1}], v{vT2}, s[40:43], 0 offen sc1')
        e('L_a_nn1:')
        norm(XFr, 4)
        e(f's_lshl_b32 s54, s3, 10\ns_add_u32 s54, s54, {L_XF:#x}\nv_add_u32 v{vT}, s54, v{vL16}')
        e(f'ds_write_b128 v{vT}, v[{XFr}:{XFr+3}]')
        e(f'v_bfe_u32 v{vT}, v1, 2, 2\nv_lshl_add_u32 v{vX}, v{vG}, 3, v{vT}')
        vT3 = 15; vBa = 14; vCc = 13
        e(f'v_and_b32 v{vCc}, 3, v1\nv_lshlrev_b32 v{vCc}, 3, v{vCc}')
        e(f'v_lshl_add_u32 v{vTr}, v{vX}, 8, v{vCc}\ns_lshl_b32 s54, s3, 6\nv_add_u32 v{vTr}, s54, v{vTr}')
        e(f'v_lshl_add_u32 v{vT3}, v{vX}, 7, v{vCc}\nv_add_u32 v{vT3}, s54, v{vT3}')
        e('s_mov_b32 s58, 0xff00ff00\ns_mov_b32 s59, 0xff00ff00\ns_mov_b32 s100, 0\ns_mov_b32 s101, -1\ns_mov_b32 s49, ' + hex(0xffffffff ^ TMASK))
        e(f'v_lshlrev_b32 v{vBa}, 9, v{vC7}\nv_lshl_add_u32 v{vBa}, v{vG}, 4, v{vBa}\nv_add_u32 v{vBa}, {L_XF:#x}, v{vBa}')
        e('s_waitcnt vmcnt(0)')
        e('s_cmp_lg_u32 s3, 3\ns_cbranch_scc1 L_a_nn2\ns_mov_b32 s57, 0')
        e('L_npoll:')
        e(f'v_readfirstlane_b32 s56, v{NV+1}\ns_cmp_lg_u32 s56, 0\ns_cbranch_scc1 L_ngo')
        e(f'buffer_load_dwordx2 v[{NV}:{NV+1}], v{vT2}, s[40:43], 0 offen sc1')
        e('s_add_u32 s57, s57, 1\ns_waitcnt vmcnt(0)\ns_cmp_lt_u32 s57, 0x10000\ns_cbranch_scc1 L_npoll\nL_ngo:')
        e(f'ds_write_b64 v{vCnt}, v[{NV}:{NV+1}] offset:{L_NONCE-L_CNT}')
        e('L_a_nn2:')
        self.arrive(0, vCnt, vT, 56)
        self.lds_wait(0, 4, vCnt, vT, 56)
        self.stamp(8)
        e(f'ds_read_b64 v[{NV}:{NV+1}], v{vCnt} offset:{L_NONCE-L_CNT}')
        BB = 80; AW = 96; D0 = 72; D1 = 76
        B1 = 80; A1 = 112
        for kk in range(8): e(f'ds_read_b128 v[{B1+4*kk}:{B1+4*kk+3}], v{vBa} offset:{kk*64}')
        def tile128(base, va=vTr):
            for ct in range(2):
                for kk in range(4):
                    for hh in range(2):
                        r = AW + (ct * 4 + kk) * 4 + hh * 2
                        e(f'ds_read_b64_tr_b16 v[{r}:{r+1}], v{va} offset:{base + kk*8192 + hh*1024 + ct*32}')
                if ct == 0: e('s_waitcnt lgkmcnt(6)')
        def mm128(acc=False):
            for kk in range(4):
                for ct in range(2):
                    d = (D0, D1)[ct]; r = AW + (ct * 4 + kk) * 4
                    cc = '0' if kk == 0 and not acc else f'v[{d}:{d+3}]'
                    e(f'v_mfma_f32_16x16x32_bf16 v[{d}:{d+3}], v[{r}:{r+3}], v[{BB+4*kk}:{BB+4*kk+3}], {cc}')
        def merge_tag(da, db, tg, bits, smask):
            for i in range(4): e(f'v_cndmask_b32 v{da+i}, v{da+i}, v{db+i}, s[58:59]')
            for i in range(4): e(f'v_add_u32 v{da+i}, {1 << (bits-1):#x}, v{da+i}')
            for i in range(4): e(f'v_and_or_b32 v{da+i}, v{da+i}, s{smask}, v{tg+i}')
        def pair256(second, tg):
            for mat in range(2):
                for kk in range(8):
                    for hh in range(2):
                        r = A1 + (mat * 8 + kk) * 4 + hh * 2
                        e(f'ds_read_b64_tr_b16 v[{r}:{r+1}], v{vT3} offset:{mat*second + kk*4096 + hh*512}')
                    if kk % 4 == 3: e('s_waitcnt lgkmcnt(0)')
            for kk in range(8):
                for mat in range(2):
                    d = (D0, D1)[mat]; r = A1 + (mat * 8 + kk) * 4
                    cc = '0' if kk == 0 else f'v[{d}:{d+3}]'
                    e(f'v_mfma_f32_16x16x32_bf16 v[{d}:{d+3}], v[{r}:{r+3}], v[{B1+4*kk}:{B1+4*kk+3}], {cc}')
            e('s_nop 7')
            merge_tag(D0, D1, tg, 8, 60)
        def gpoll(name, n, emit_loads, sleep, tg, mask):
            e(f's_mov_b32 s57, 0\n{name}:')
            emit_loads()
            e(f's_add_u32 s57, s57, 1\ns_waitcnt vmcnt(0)')
            self.untag(U, n, tg, vT, vT2, mask)
            e(f's_cbranch_vccz {name}_go')
            if sleep: e(f's_sleep {sleep}')
            e(f's_cmp_lt_u32 s57, 0x10000\ns_cbranch_scc1 {name}\n{name}_go:')
        e('s_waitcnt lgkmcnt(0)')
        self.tags_from(NV, TG)
        TC = 20; TP = 24
        e(f's_mov_b32 s60, 0xffffff00\ns_mov_b32 s50, 0xaaaaaaaa\ns_mov_b32 s51, 0xaaaaaaaa\ns_mov_b32 s52, 0xffff0000\ns_mov_b32 s53, 0xffff0000')
        e(f'v_cndmask_b32 v{TC+3}, v{NV}, v{NV+1}, s[50:51]\nv_cndmask_b32 v{TP+3}, v{NV}, v{NV+1}, s[52:53]')
        for T in (TC, TP):
            e(f'v_and_b32 v{T}, 0xff, v{T+3}\nv_bfe_u32 v{T+1}, v{T+3}, 8, 8\nv_bfe_u32 v{T+2}, v{T+3}, 16, 8\nv_lshrrev_b32 v{T+3}, 24, v{T+3}')
        e('s_cmp_ge_u32 s3, 2\ns_cbranch_scc1 L_a_b1')
        c('q partial (a = 0,1): 32 columns each')
        assert L_WQ == 0
        pair256(32, TP)
        e(f's_lshl_b32 s54, s46, 8\ns_lshl_b32 s55, s3, 7\ns_add_u32 s54, s54, s55')
        e(f'buffer_store_dwordx4 v[{D0}:{D0+3}], v{vSt}, s[36:39], s54 offen {self.qpol} ')
        self.stamp(9)
        e('s_cmp_lg_u32 s3, 0\ns_cbranch_scc1 L_a_b1')
        c('wave a=0: gather q')
        e(f's_mul_i32 s54, s44, {W_BSTRIDE:#x}\ns_lshl_b32 s55, s45, 11\ns_add_u32 s54, s54, s55')
        if self.qj: self.lds_wait(12, 1, vCnt, vT, 56, sleep=2)
        def ql():
            for i in range(2): e(f'buffer_load_dwordx4 v[{U+4*i}:{U+4*i+3}], v{vL16}, s[36:39], s54 offen offset:{i*1024} {self.qpol}')
        gpoll('L_qpoll', 2, ql, self.qsleep, TC, 0xff)
        for k in range(4): e(f'v_permlane32_swap_b32 v{U+k}, v{U+4+k}')
        for k in range(4): e(f'v_add_f32 v{U+k}, v{U+k}, v{U+4+k}')
        for k in range(4): e(f'v_mov_b32 v{U+4+k}, v{U+k}')
        e(f'v_lshrrev_b32 v{vT}, 5, v1\nv_lshlrev_b32 v{vT}, 7, v{vT}\nv_lshl_add_u32 v{vT}, v{vC}, 3, v{vT}\nv_add_u32 v{vT}, {L_QL:#x}, v{vT}')
        for k in range(4): e(f'v_permlane16_swap_b32 v{U+k}, v{U+4+k}')
        for k in range(4): e(f'v_add_f32 v{U+k}, v{U+k}, v{U+4+k}')
        e(f'v_cvt_pk_bf16_f32 v{U}, v{U}, v{U+1}\nv_cvt_pk_bf16_f32 v{U+1}, v{U+2}, v{U+3}')
        e(f'ds_write_b64 v{vT}, v[{U}:{U+1}]')
        e('L_a_b1:')
        e(f's_lshl_b32 s54, s3, 5\ns_sub_u32 s54, {L_GATE:#x}, s54\nv_add_u32 v{vT3}, s54, v{vT3}')
        e('s_waitcnt lgkmcnt(0)')
        self.stamp(10)
        e('s_barrier')
        c('FFN stage 1')
        e('s_cmp_ge_u32 s46, 224\ns_cbranch_scc1 L_a_s1done')
        if self.skip >= 3: e('s_branch L_a_s1done')
        pair256(0x8000, TC)
        e(f's_lshl_b32 s54, s46, 12\ns_lshl_b32 s55, s3, 10\ns_add_u32 s54, s54, s55\ns_add_u32 s54, s54, {W_GU:#x}')
        e(f'buffer_store_dwordx4 v[{D0}:{D0+3}], v{vL16}, s[36:39], s54 offen {self.fpol}')
        e('L_a_s1done:')
        self.arrive(2, vCnt, vT, 56)
        self.lds_wait(2, 4, vCnt, vT, 56)
        c('wo tile DMA')
        e('s_lshl_b32 s50, s45, 18\ns_lshl_b32 s51, s44, 8\ns_add_u32 s50, s50, s51\ns_sub_u32 s51, 0x800000, s50')
        self.srd(32, 12, 13, 50, size_sgpr=51)
        e(f'v_lshlrev_b32 v{vT}, 11, v{vG}\nv_lshl_add_u32 v{vT}, v{vC}, 4, v{vT}')
        e(f's_lshl_b32 s54, s3, 13\ns_add_u32 m0, s54, {L_WO:#x}\ns_lshl_b32 s55, s3, 16\ns_nop 0')
        for i in range(8 if self.skip < 4 else 0):
            e(f'buffer_load_dwordx4 v{vT}, s[32:35], s55 offen {WP} lds')
            if i < 7: e(f's_add_u32 m0, m0, 0x400\ns_add_u32 s55, s55, 0x2000\ns_nop 0')
        c('down tile operands')
        e(f'v_add_u32 v{vT3}, {L_DOWN:#x}, v{vTr}')
        tile128(0, vT3)
        e(f'v_lshrrev_b32 v{vT}, 5, v1\nv_lshlrev_b32 v{vBa}, 8, v{vT}\nv_lshl_add_u32 v{vBa}, v{vC7}, 5, v{vBa}\nv_and_b32 v{vT}, 1, v{vG}\nv_lshl_add_u32 v{vBa}, v{vT}, 4, v{vBa}\nv_add_u32 v{vBa}, {L_HL:#x}, v{vBa}')
        e('s_waitcnt lgkmcnt(0)')
        for ct in range(2):
            for i in range(4):
                r = AW + (ct * 4 + 3) * 4 + i
                e(f'v_cndmask_b32 v{r}, v{r}, 0, s[100:101]')
        e('s_cmp_lg_u32 s3, 0\ns_cbranch_scc1 L_a_hw')
        c('wave a=0: reduce one 16-column piece of g,u -> h ; then fetch the 7 pieces this workgroup needs')
        if self.skip >= 2: e('s_branch L_a_hdone')
        e('s_cmp_ge_u32 s46, 224\ns_cbranch_scc1 L_a_s15done')
        if self.gwait: self.lds_wait(8, self.gwait, vCnt, vT, 56, sleep=8)
        e(f's_lshl_b32 s54, s47, 14\ns_lshl_b32 s55, s48, 10\ns_add_u32 s54, s54, s55\ns_add_u32 s54, s54, {W_GU:#x}')
        e('s_add_u32 s55, s54, 0x1000\ns_add_u32 s50, s54, 0x2000\ns_add_u32 s51, s54, 0x3000')
        def gl():
            for k, so in enumerate((54, 55, 50, 51)): e(f'buffer_load_dwordx4 v[{U+4*k}:{U+4*k+3}], v{vL16}, s[36:39], s{so} offen {self.fpol}')
        gpoll('L_gpoll', 4, gl, 32, TC, 0xff)
        e(f'v_lshlrev_b32 v{vT}, 6, v{vC7}\nv_lshl_add_u32 v{vT}, v{vG}, 4, v{vT}\ns_lshl_b32 s54, s46, 9\ns_add_u32 s54, s54, {W_H:#x}')
        for i in range(1, 4):
            for k in range(4): e(f'v_add_f32 v{U+k}, v{U+k}, v{U+4*i+k}')
        for k in range(4): self.rnd_bf16(U + k)
        e('s_nop 1')
        for k in range(4): e(f'v_mul_f32_dpp v{U+4+k}, v{U+k}, v{U+k} row_ror:8 row_mask:0xf bank_mask:0xf')
        for k in range(4): self.rnd_bf16(U + 4 + k)
        for k in range(4): e(f'v_or_b32 v{U+4+k}, v{U+4+k}, v{TG+k}')
        e('s_not_b64 exec, s[58:59]')
        e(f'buffer_store_dwordx4 v[{U+4}:{U+7}], v{vT}, s[36:39], s54 offen {self.fpol}\ns_mov_b64 exec, -1')
        e('L_a_s15done:')
        if self.hwait: self.lds_wait(8, self.hwait, vCnt, vT, 56, sleep=8)
        e(f's_mul_i32 s54, s45, {7*512}\ns_add_u32 s54, s54, {W_H:#x}\nv_and_b32 v{vCc}, 0x1ff, v{vL16}')
        def hl():
            for k in range(3): e(f'buffer_load_dwordx4 v[{U+4*k}:{U+4*k+3}], v{vL16}, s[36:39], s54 offen offset:{k*1024} {self.fpol}')
            e(f'buffer_load_dwordx4 v[{U+12}:{U+15}], v{vCc}, s[36:39], s54 offen offset:3072 {self.fpol}')
        gpoll('L_hpoll', 4, hl, 32, TG, TMASK)
        e(f'v_lshlrev_b32 v{vT}, 3, v1\nv_add_u32 v{vT}, {L_HL:#x}, v{vT}')
        for k in range(4):
            e(f'v_cvt_pk_bf16_f32 v{U+4*k}, v{U+4*k}, v{U+4*k+1}\nv_cvt_pk_bf16_f32 v{U+4*k+1}, v{U+4*k+2}, v{U+4*k+3}')
            e(f'ds_write_b64 v{vT}, v[{U+4*k}:{U+4*k+1}] offset:{k*512}')
        e('L_a_hdone:')
        self.arrive(3, vCnt, vT, 56)
        e('L_a_hw:')
        self.lds_wait(3, 1, vCnt, vT, 56, sleep=8)
        for kk in range(4): e(f'ds_read_b128 v[{BB+4*kk}:{BB+4*kk+3}], v{vBa} offset:{kk*512}')
        e('s_waitcnt lgkmcnt(0)')
        mm128()
        e('s_waitcnt vmcnt(0)')
        self.arrive(4, vCnt, vT, 56)
        self.lds_wait(4, 4, vCnt, vT, 56)
        self.stamp(11)
        c('preload wo operands')
        tile128(L_WO)
        e('s_cmp_eq_u32 s3, 1\ns_cbranch_scc1 L_a_stats\ns_cmp_eq_u32 s3, 2\ns_cbranch_scc1 L_a_ctl\ns_cmp_lg_u32 s3, 0\ns_cbranch_scc1 L_a_b2')
        c('wave a=0: residual input')
        e(f's_lshl_b32 s54, s2, 6\nv_lshlrev_b32 v{vT}, 3, v{vC7}')
        e(f'buffer_load_dwordx2 v[{U}:{U+1}], v{vT}, s[28:31], s54 offen')
        e(f'v_lshlrev_b32 v{vT}, 4, v{vC7}\nv_add_u32 v{vT}, {L_FF:#x}, v{vT}\ns_waitcnt vmcnt(0)')
        e(f'v_lshlrev_b32 v{U+4}, 16, v{U}\nv_and_b32 v{U+5}, 0xffff0000, v{U}\nv_lshlrev_b32 v{U+6}, 16, v{U+1}\nv_and_b32 v{U+7}, 0xffff0000, v{U+1}')
        e(f'ds_write_b128 v{vT}, v[{U+4}:{U+7}]')
        self.stamp(12)
        e('s_branch L_a_b2')
        c('wave a=2: queue-depth controller (rank of this workgroup at each checkpoint)')
        e('L_a_ctl:')
        if self.ddepth:
            e(f's_bfe_u32 s55, s2, 0x10003\ns_bfe_u32 s54, s2, 0x20006\ns_lshl_b32 s54, s54, 1\ns_or_b32 s55, s55, s54\ns_lshl_b32 s55, s55, 13\ns_add_u32 s55, s55, {W_CT:#x}')
            tab = 0
            for r, dty in enumerate(self.table): tab |= dty << (4 * r)
            e(f's_mov_b32 s50, {tab & 0xffffffff:#x}\ns_mov_b32 s51, {tab >> 32:#x}')
            e(f's_mov_b32 s52, {self.cstart}\ns_mov_b32 s57, 0\nv_mov_b32 v{vT2}, 0\ns_mov_b64 exec, 1')
            e('L_ctl:')
            e(f's_cmp_ge_u32 s52, {self.usw - 1}\ns_cbranch_scc1 L_ctl_done\ns_cmp_ge_u32 s57, 0x100000\ns_cbranch_scc1 L_ctl_done')
            e(f'ds_read_b32 v{vT}, v{vCnt} offset:32\ns_add_u32 s57, s57, 1\ns_waitcnt lgkmcnt(0)\nv_readfirstlane_b32 s56, v{vT}')
            e(f's_cmp_ge_u32 s56, s52\ns_cbranch_scc1 L_ctl_go\ns_sleep {self.csleep}\ns_branch L_ctl')
            e('L_ctl_go:')
            e(f's_lshl_b32 s54, s52, 8\ns_add_u32 s54, s54, s55\nv_mov_b32 v{vT}, 1')
            if 'noat' not in self.dbg: e(f'buffer_atomic_add v{vT}, v{vT2}, s[36:39], s54 offen sc0 sc1')
            e(f's_waitcnt vmcnt(0)\nv_readfirstlane_b32 s54, v{vT}\ns_and_b32 s54, s54, 30\ns_lshl_b32 s54, s54, 1\ns_lshr_b64 s[62:63], s[50:51], s54\ns_and_b32 s54, s62, 15')
            e(f's_add_u32 s56, s52, 2\ns_add_u32 s56, s56, s54\ns_cmp_eq_u32 s54, 0\ns_cselect_b32 s56, 0, s56\nv_mov_b32 v{vT}, s56')
            e(f'ds_write_b32 v{vCnt}, v{vT} offset:20\ns_add_u32 s52, s52, {self.cper}\ns_branch L_ctl')
            e('L_ctl_done:\ns_mov_b64 exec, -1')
        e('s_branch L_a_b2')
        c('wave a=1: softmax statistics')
        e('L_a_stats:')
        self.lds_wait(7, 4, vCnt, vT, 56, sleep=32)
        SV = 128
        e(f'v_mov_b32 v{vT}, {L_MW:#x}\nds_read_b128 v[{U}:{U+3}], v{vT}')
        vSl = vL16
        for i in range(16):
            e(f'ds_read_b128 v[{SV+4*i}:{SV+4*i+3}], v{vSl} offset:{L_S + i*1024}')
            if i % 8 == 7: e('s_waitcnt lgkmcnt(0)')
        e(f'v_max3_f32 v{vT}, v{U}, v{U+1}, v{U+2}\nv_max_f32 v{vT}, v{vT}, v{U+3}')
        e(f'v_mul_f32 v{vT}, {f2u(-1.4426950408889634):#x}, v{vT}\ns_mov_b32 s53, {f2u(1.4426950408889634):#x}')
        for i in range(64): e(f'v_fma_f32 v{SV+i}, v{SV+i}, s53, v{vT}')
        for i in range(64): e(f'v_exp_f32 v{SV+i}, v{SV+i}')
        for k in range(4): e(f'v_fma_f32 v{U+k}, v{U+k}, s53, v{vT}')
        for k in range(4): e(f'v_exp_f32 v{U+k}, v{U+k}')
        n = 32
        while n >= 2:
            for i in range(0, n, 2): e(f'v_pk_add_f32 v[{SV+i}:{SV+i+1}], v[{SV+i}:{SV+i+1}], v[{SV+n+i}:{SV+n+i+1}]')
            n //= 2
        e(f'v_add_f32 v{SV}, v{SV}, v{SV+1}')
        self.ror_reduce('v_add_f32', SV)
        self.swap_reduce('v_add_f32', SV, vT, 16)
        self.swap_reduce('v_add_f32', SV, vT, 32)
        e(f'v_rcp_f32 v{SV}, v{SV}\ns_nop 0')
        for k in range(4): e(f'v_mul_f32 v{U+k}, v{U+k}, v{SV}')
        e(f'v_mov_b32 v{vT}, {L_FW:#x}\nds_write_b128 v{vT}, v[{U}:{U+3}]')
        e('L_a_b2:')
        e(f'v_mul_u32_u24 v{vBa}, 272, v{vC7}\nv_lshl_add_u32 v{vBa}, v{vG}, 4, v{vBa}\nv_add_u32 v{vBa}, {L_OL:#x}, v{vBa}')
        e('s_waitcnt lgkmcnt(0)')
        e('s_barrier')
        e('s_barrier')
        for kk in range(4): e(f'ds_read_b128 v[{BB+4*kk}:{BB+4*kk+3}], v{vBa} offset:{kk*64}')
        e('s_waitcnt lgkmcnt(0)')
        mm128(True)
        e('s_nop 7')
        merge_tag(D0, D1, TG, TB, 49)
        e(f'buffer_store_dwordx4 v[{D0}:{D0+3}], v{vSt}, s[36:39], s61 offen sc1')
        if self.stamps:
            self.stamp(13)
            e('s_cmp_lg_u32 s3, 0\ns_cbranch_scc1 L_end')
            self.flush_stamps([8, 9, 10, 11, 12, 13, 14, 15], 200)

if __name__ == '__main__':
    import argparse
    ap = argparse.ArgumentParser()
    ap.add_argument('out'); ap.add_argument('--depth', type=int, default=5); ap.add_argument('--pdepth', type=int, default=5)
    ap.add_argument('--stamps', action='store_true'); ap.add_argument('--wpol', default='nt')
    ap.add_argument('--edepth', type=int, default=31); ap.add_argument('--usw', type=int, default=28); ap.add_argument('--ddepth', type=int, default=0); ap.add_argument('--thr', type=int, default=48); ap.add_argument('--cstart', type=int, default=6); ap.add_argument('--dbg', default=''); ap.add_argument('--cper', type=int, default=4); ap.add_argument('--table', default='0000000000112234'); ap.add_argument('--qsleep', type=int, default=0); ap.add_argument('--gwait', type=int, default=2); ap.add_argument('--hwait', type=int, default=4); ap.add_argument('--csleep', type=int, default=4); ap.add_argument('--burst', type=int, default=0); ap.add_argument('--xs', default='sc1'); ap.add_argument('--qj', type=int, default=0); ap.add_argument('--qpol', default='sc1'); ap.add_argument('--fpol', default='sc1'); ap.add_argument('--xl', default='sc1'); ap.add_argument('--prio', type=int, default=0); ap.add_argument('--prof', action='store_true'); ap.add_argument('--skip', type=int, default=0)
    a = ap.parse_args()
    open(a.out, 'w').write(Gen(a.depth, a.pdepth, a.stamps, a.wpol.replace('none', ''), a.edepth, a.usw, a.prio, a.prof, a.skip, a.ddepth, a.thr, a.cstart, a.dbg, a.cper, a.table, a.qsleep, a.gwait, a.hwait, a.csleep, a.burst, a.xs, a.xl, a.qj, a.qpol, a.fpol).build())
```

```python
import sys, struct
KN = 'parallel_sum__mha_block_cached__glu_gated_bilinear__decode_kernel'

def f2u(x): return struct.unpack('<I', struct.pack('<f', x))[0]

L_WQ = 0x00000
L_S = 0x00000
L_GATE = 0x08000
L_WO = 0x08000
L_UP = 0x10000
L_DOWN = 0x18000
L_XQ = 0x20000
L_XF = 0x20800
L_OL = 0x20800
L_QL = 0x21800
L_HL = 0x21900
L_DP = 0x22100
L_MW = 0x22900
L_FW = 0x22910
L_FF = 0x22920
L_CNT = 0x229a0
L_ZERO = 0x229e0
L_NONCE = 0x22a20
LDS_SIZE = 0x22a80
W_BSTRIDE = 0x80000
W_QP = 0x00000
W_AP = 0x20000
W_GU = 0x400000
W_OX = 0x500000
W_H = 0x520000
W_CT = 0x540000
W_SIZE = 0x600000
W_STAMP = 0x20000000

TB = 12
TMASK = (1 << TB) - 1

class Gen:
    def __init__(self, depth=5, pdepth=5, stamps=False, wpol='nt', edepth=31, usw=28, prio=0, prof=False, skip=0, ddepth=0, thr=48, cstart=6, dbg='', cper=4, table='0000000000112234', qsleep=0, gwait=2, hwait=4, csleep=4, burst=0, xs='sc1', xl='sc1', qj=0, qpol='sc1', fpol='sc1', pmask=0, ppol=''):
        self.pmask = pmask; self.ppol = ppol.replace('+', ' ').replace('none', '')
        self.qj = qj; self.qpol = qpol.replace('+', ' '); self.fpol = fpol.replace('+', ' ')
        self.xs = xs.replace('+', ' '); self.xl = xl.replace('+', ' ')
        self.burst = burst
        self.qsleep = qsleep; self.gwait = gwait; self.hwait = hwait; self.csleep = csleep
        self.cper = cper; self.table = [int(ch, 16) for ch in table]
        self.dbg = set(dbg.split(','))
        self.skip = skip; self.ddepth = ddepth; self.thr = thr; self.cstart = cstart
        self.edepth = edepth; self.usw = usw; self.prio = prio; self.prof = prof
        self.L = []; self.depth = depth; self.pdepth = pdepth; self.stamps = stamps; self.uid = 0; self.wpol = wpol
    def e(self, s):
        for l in s.split('\n'): self.L.append('    ' + l.strip() if not l.strip().endswith(':') else l.strip())
    def c(self, s): self.L.append('    ; ' + s)
    def lab(self, p='L'):
        self.uid += 1; return f'{p}_{self.uid}'
    def srd(self, d, plo, phi, off_lo=None, size=None, size_sgpr=None):
        e = self.e
        if off_lo is None:
            e(f's_mov_b32 s{d}, s{plo}\ns_mov_b32 s{d+1}, s{phi}')
        else:
            e(f's_add_u32 s{d}, s{plo}, s{off_lo}\ns_addc_u32 s{d+1}, s{phi}, 0')
        if size_sgpr is not None: e(f's_mov_b32 s{d+2}, s{size_sgpr}')
        else: e(f's_mov_b32 s{d+2}, {size:#x}')
        e(f's_mov_b32 s{d+3}, 0x20000')
    def stamp(self, idx):
        if self.stamps:
            self.e(f's_memrealtime s[{64+2*idx}:{65+2*idx}]\ns_waitcnt lgkmcnt(0)')
    def flush_stamps(self, idxs, vt):
        if not self.stamps: return
        e = self.e
        e(f's_add_u32 s96, s26, {W_STAMP:#x}\ns_addc_u32 s97, s27, 0\ns_mov_b32 s98, 0x10000\ns_mov_b32 s99, 0x20000')
        e(f's_lshl_b32 s60, s2, 7\nv_mov_b32 v{vt+2}, s60')
        for i in idxs:
            e(f'v_mov_b32 v{vt}, s{64+2*i}\nv_mov_b32 v{vt+1}, s{65+2*i}')
            e(f'buffer_store_dwordx2 v[{vt}:{vt+1}], v{vt+2}, s[96:99], 0 offen offset:{i*8}\ns_nop 1')
    def ror_reduce(self, op, v, steps=(8, 4, 2, 1)):
        for s in steps:
            self.e(f's_nop 1\n{op}_dpp v{v}, v{v}, v{v} row_ror:{s} row_mask:0xf bank_mask:0xf')
    def swap_reduce(self, op, v, t, which):
        self.e(f'v_mov_b32 v{t}, v{v}\ns_nop 1\nv_permlane{which}_swap_b32 v{v}, v{t}\ns_nop 0\n{op} v{v}, v{v}, v{t}')
    def rnd_bf16(self, v, t=None):
        self.e(f'v_cvt_pk_bf16_f32 v{v}, v{v}, v{v}\nv_and_b32 v{v}, 0xffff0000, v{v}')
    def arrive(self, cnt, vaddr_zero, vt, sret):
        e = self.e
        e(f's_mov_b64 exec, 1\nv_mov_b32 v{vt}, 1')
        e(f'ds_add_rtn_u32 v{vt}, v{vaddr_zero}, v{vt} offset:{cnt*4}')
        e(f's_waitcnt lgkmcnt(0)\nv_readfirstlane_b32 s{sret}, v{vt}\ns_mov_b64 exec, -1')
    def lds_wait(self, cnt, target, vaddr_zero, vt, st, sleep=0):
        e = self.e; l = self.lab('L_w'); d = self.lab('L_wd')
        e(f's_mov_b32 s{st+1}, 0')
        e(f'{l}:')
        e(f'ds_read_b32 v{vt}, v{vaddr_zero} offset:{cnt*4}')
        e(f's_waitcnt lgkmcnt(0)\nv_readfirstlane_b32 s{st}, v{vt}')
        e(f's_cmp_ge_u32 s{st}, {target}\ns_cbranch_scc1 {d}')
        if sleep: e(f's_sleep {sleep}')
        e(f's_add_u32 s{st+1}, s{st+1}, 1\ns_cmp_lt_u32 s{st+1}, 0x100000\ns_cbranch_scc1 {l}')
        e(f'{d}:')

    def build(self):
        e, c = self.e, self.c
        D = self.depth; PD = self.pdepth; WP = self.wpol
        hdr = open('parallel_sum__mha_block_cached__glu_gated_bilinear__decode.s.ref').read().split('; @launch')[0]
        self.L.append(hdr.rstrip('\n'))
        self.L.append(f'; @launch grid=(256,1,1) block=(512,1,1) lds={LDS_SIZE}')
        self.L.append('.amdgcn_target "amdgcn-amd-amdhsa--gfx950"\n.text')
        self.L.append(f'.globl {KN}\n.p2align 8\n.type {KN},@function\n{KN}:')
        e('s_cmp_ge_u32 s2, 256\ns_cbranch_scc1 L_end')
        if self.stamps: e('s_memrealtime s[64:65]')
        e('v_cmp_gt_u32 vcc, 32, v0\ns_cbranch_vccz L_nozero')
        e(f'v_lshlrev_b32 v1, 2, v0\nv_and_b32 v1, 63, v1\nv_mov_b32 v2, 0\nds_write_b32 v1, v2 offset:{L_CNT & 0xffff}' if False else
          f'v_lshlrev_b32 v1, 2, v0\nv_and_b32 v1, 127, v1\nv_add_u32 v1, {L_CNT:#x}, v1\nv_mov_b32 v2, 0\nds_write_b32 v1, v2\ns_waitcnt lgkmcnt(0)')
        e('L_nozero:')
        e('s_load_dwordx16 s[4:19], s[0:1], 0\ns_load_dwordx8 s[20:27], s[0:1], 64')
        e('v_and_b32 v1, 63, v0\nv_lshrrev_b32 v2, 6, v0')
        e('s_lshr_b32 s44, s2, 5\ns_and_b32 s45, s2, 31')
        e('v_readfirstlane_b32 s3, v2')
        e('s_lshl_b32 s46, s45, 3\ns_add_u32 s46, s46, s44\ns_lshr_b32 s47, s46, 2\ns_and_b32 s48, s46, 3')
        e('s_barrier')
        e('s_cmp_ge_u32 s3, 4\ns_cbranch_scc1 L_aux')
        self.stream()
        e('L_aux:')
        self.aux()
        e('L_end:\ns_endpgm')
        self.L.append('.section .rodata,"a"\n.p2align 6')
        self.L.append(f'.amdhsa_kernel {KN}\n  .amdhsa_next_free_vgpr 256\n  .amdhsa_next_free_sgpr 102\n  .amdhsa_accum_offset 256')
        self.L.append('  .amdhsa_group_segment_fixed_size 0\n  .amdhsa_kernarg_size 96\n  .amdhsa_user_sgpr_count 2\n  .amdhsa_user_sgpr_kernarg_segment_ptr 1\n  .amdhsa_system_sgpr_workgroup_id_x 1\n.end_amdhsa_kernel')
        out = []
        for l in '\n'.join(self.L).split('\n'):
            if 's[36:39]' in l and l.rstrip().endswith(' sc1') and 'atomic' not in l:
                if 'store' in l: l = l.rstrip()[:-4] + ' ' + self.xs
                else: l = l.rstrip()[:-4] + ' ' + self.xl
            out.append(l)
        return '\n'.join(out) + '\n'

    def stream(self):
        e, c = self.e, self.c
        D = self.depth; PD = self.pdepth; WP = self.wpol; DP = self.ddepth
        vP, vV, vGU, vDN, vSa, vMax, vS, vA, vB, vT, vNM, vSn, vPp = 2, 6, 10, 11, 12, 13, 14, 15, 16, 17, 18, 19, 20
        vCnt = 21; vDec = 10; vPr = 11; vIt = 60
        DD = [24, 28]; Q = 32; MK = 48; AA = 52; O = 56; RING = 64
        NS = 32
        c('=== stream waves (0..3) ===')
        if self.prio: e(f's_setprio {self.prio}')
        e(f'v_mov_b32 v{vCnt}, {L_CNT:#x}')
        e(f'v_and_b32 v{vP}, 3, v1\nv_lshlrev_b32 v{vP}, 4, v{vP}')
        e(f'v_bfe_u32 v{vT}, v1, 2, 2\nv_lshl_add_u32 v{vP}, v{vT}, 8, v{vP}')
        e(f'v_lshrrev_b32 v{vT}, 4, v1\nv_lshl_add_u32 v{vP}, v{vT}, 6, v{vP}')
        e('s_lshl_b32 s49, s3, 12')
        e(f'v_add_u32 v{vP}, s49, v{vP}')
        for u in range(1, 4): e(f'v_add_u32 v{vP+u}, {u*16384:#x}, v{vP}')
        e('s_lshl_b32 s50, s2, 20')
        e('s_mov_b32 s51, 0\ns_mov_b32 s55, 0x10000')
        e('s_waitcnt lgkmcnt(0)')
        self.srd(40, 6, 7, 50, 0x100000)
        def kload(j):
            so = 's51' if j < 16 else 's55'
            e(f'buffer_load_dwordx4 v[{RING+4*j}:{RING+4*j+3}], v{vP+(j%16)//4}, s[40:43], {so} offen offset:{(j%4)*1024} ' + (self.ppol if (self.pmask >> j) & 1 else 'nt'))
        def pst(i):
            if self.prof: e(f's_memrealtime s[62:63]\ns_waitcnt lgkmcnt(0)\nv_writelane_b32 v22, s62, {36+i}')
        B0 = self.burst or PD
        pst(0)
        for j in range(B0): kload(j)
        pst(1)
        e(f'v_lshlrev_b32 v{vV}, 4, v1\nv_add_u32 v{vV}, s49, v{vV}')
        for u in range(1, 4): e(f'v_add_u32 v{vV+u}, {u*16384:#x}, v{vV}')
        def dma(srd, vo, n, step):
            for i in range(n):
                e(f's_waitcnt vmcnt({PD-1})')
                e(f'buffer_load_dwordx4 v{vo}, s[{srd}:{srd+3}], s54 offen {WP} lds')
                if i < n - 1: e(f's_add_u32 m0, m0, 0x400\ns_add_u32 s54, s54, {step}')
        e('s_cmp_ge_u32 s46, 224\ns_cbranch_scc1 L_s_nodma')
        e(f'v_lshrrev_b32 v{vT}, 3, v1\nv_mul_u32_u24 v{vGU}, 7168, v{vT}\nv_and_b32 v{vT}, 7, v1\nv_lshl_add_u32 v{vGU}, v{vT}, 4, v{vGU}')
        e(f's_mul_i32 s52, s48, {256*7168}\ns_lshl_b32 s53, s47, 7\ns_add_u32 s52, s52, s53\ns_sub_u32 s53, {1024*7168}, s52')
        if 'cgu' in self.dbg:
            e(f'v_lshlrev_b32 v{vGU}, 4, v1\ns_lshl_b32 s52, s46, 15\ns_sub_u32 s53, {1024*7168}, s52')
        self.srd(28, 16, 17, 52, size_sgpr=53)
        self.srd(32, 18, 19, 52, size_sgpr=53)
        e(f's_lshl_b32 s56, s3, 13')
        for (srd, lbase) in ((28, L_GATE), (32, L_UP)):
            if 'cgu' in self.dbg:
                e(f's_add_u32 m0, s56, {lbase:#x}\ns_mul_i32 s54, s3, 8192')
                dma(srd, vGU, 8, 1024)
                continue
            e(f's_add_u32 m0, s56, {lbase:#x}\ns_mul_i32 s54, s3, {64*7168}')
            dma(srd, vGU, 8, 8*7168)
            pst(2 if srd == 28 else 3)
        e('L_s_nodma:')
        e(f'v_lshrrev_b32 v{vT}, 4, v1\nv_lshlrev_b32 v{vDN}, 11, v{vT}\nv_and_b32 v{vT}, 15, v1\nv_lshl_add_u32 v{vDN}, v{vT}, 4, v{vDN}')
        e(f's_mul_i32 s52, s45, {112*2048}\ns_lshl_b32 s53, s44, 8\ns_add_u32 s52, s52, s53\ns_sub_u32 s53, {3584*2048}, s52')
        if 'cdn' in self.dbg:
            e(f'v_lshlrev_b32 v{vDN}, 4, v1\ns_mul_i32 s52, s2, 28672\ns_sub_u32 s53, {3584*2048}, s52')
            self.srd(36, 20, 21, 52, size_sgpr=53)
            e(f's_mul_i32 s56, s3, 7168\ns_add_u32 m0, s56, {L_DOWN:#x}\ns_mul_i32 s54, s3, 7168')
            dma(36, vDN, 7, 1024)
        else:
            self.srd(36, 20, 21, 52, size_sgpr=53)
            e(f's_mul_i32 s56, s3, 7168\ns_add_u32 m0, s56, {L_DOWN:#x}\ns_mul_i32 s54, s3, {28*2048}')
            dma(36, vDN, 7, 4*2048)
        pst(4)
        for u in range(1, 4):
            m = 0x11111111 << u
            e(f's_mov_b32 s{54+2*u}, {m:#x}\ns_mov_b32 s{55+2*u}, {m:#x}')
        e(f'v_and_b32 v{vT}, 1, v1\nv_cmp_eq_u32 vcc, 1, v{vT}\nv_mov_b32 v{vA}, 0xffff\nv_mov_b32 v{vB}, 0xffff0000')
        e(f'v_cndmask_b32 v{vA}, v{vA}, v{vB}, vcc')
        e(f'v_bfe_u32 v{vT}, v1, 1, 3')
        for i in range(4):
            e(f'v_cmp_eq_u32 vcc, {i}, v{vT}\ns_nop 1\nv_cndmask_b32 v{MK+i}, 0, v{vA}, vcc')
        e(f'v_lshlrev_b32 v{vSa}, 2, v1\nv_add_u32 v{vSa}, s49, v{vSa}')
        if L_S: e(f'v_add_u32 v{vSa}, {L_S:#x}, v{vSa}')
        e(f'v_mov_b32 v{vMax}, 0xff800000')
        for i in range(4): e(f'v_mov_b32 v{O+i}, 0')
        e(f'v_mov_b32 v{vDec}, 0\ns_lshl_b32 s54, s3, 2\nv_add_u32 v{vPr}, s54, v{vCnt}')
        e(f'v_and_b32 v{vA}, 3, v1\nv_lshrrev_b32 v{vT}, 4, v1\nv_lshl_add_u32 v{vA}, v{vT}, 2, v{vA}\nv_lshlrev_b32 v{vA}, 4, v{vA}\nv_add_u32 v{vA}, {L_QL:#x}, v{vA}')
        e(f'v_bfe_u32 v{vT}, v1, 2, 2\nv_mov_b32 v{vB}, {L_ZERO:#x}')
        for t in range(4):
            e(f'v_cmp_eq_u32 vcc, {t}, v{vT}\ns_nop 1\nv_cndmask_b32 v{AA+t}, v{vB}, v{vA}, vcc')
        for j in range(B0, NS):
            e(f's_waitcnt vmcnt({PD-1})'); kload(j)
            if j == 19: pst(5)
            if j == self.qj: e(f'ds_write_b32 v{vPr}, v{vCnt} offset:48')
        pst(6)
        self.stamp(1)
        e('s_barrier')
        for t in range(4): e(f'ds_read_b128 v[{Q+4*t}:{Q+4*t+3}], v{AA+t}')
        e('s_waitcnt lgkmcnt(0)')
        self.stamp(2)
        e('s_mov_b32 s52, 0')
        def halftop(isv):
            if self.prof: e('s_mov_b32 m0, s52\ns_nop 0\nv_writelane_b32 v22, s62, m0')
            e(f'v_mov_b32 v{vIt}, s52\nds_write_b32 v{vPr}, v{vIt} offset:32')
            if DP:
                e(f'v_readfirstlane_b32 s54, v{vDec}\ns_nop 0')
                e(f'ds_read_b32 v{vDec}, v{vCnt} offset:20')
                e('s_cmp_lt_u32 s52, s54\ns_cselect_b64 vcc, -1, 0')
            if isv: e(f's_cmp_ge_u32 s52, {self.usw}')
        def gate(isv):
            lm = self.lab('L_m'); lx = self.lab('L_x')
            if isv: e(f's_cbranch_scc1 {lx}')
            if DP: e(f's_cbranch_vccnz {lm}')
            e(f's_waitcnt vmcnt({D-1})')
            if DP: e(f'{lm}:\ns_waitcnt vmcnt({DP-1})')
            if isv: e(f'{lx}:\ns_waitcnt vmcnt({self.edepth-1})')
        c('---- K loop ----')
        e('L_kloop:')
        e('s_add_u32 s51, s51, 0x20000\ns_add_u32 s55, s55, 0x20000')
        e('s_cmp_lg_u32 s52, 14\ns_cbranch_scc1 L_k_go')
        e('s_add_u32 s40, s8, s50\ns_addc_u32 s41, s9, 0\ns_mov_b32 s51, 0\ns_mov_b32 s55, 0x10000')
        for u in range(4): e(f'v_mov_b32 v{vP+u}, v{vV+u}')
        e('L_k_go:')
        def reduce(u):
            d = DD[u & 1]
            q1, q2, q3 = (u + 1) & 3, (u + 2) & 3, (u + 3) & 3
            e(f'v_add_f32_dpp v{vA}, v{d+q1}, v{d+q2} quad_perm:[{q1},{q1},{q1},{q1}] row_mask:0xf bank_mask:0xf')
            e(f'v_add_f32_dpp v{vB}, v{d+q3}, v{d+u} quad_perm:[{q3},{q3},{q3},{q3}] row_mask:0xf bank_mask:0xf')
            e('s_nop 0')
            dst = vS if u == 0 else vB
            e(f'v_add_f32_dpp v{dst}, v{vA}, v{vB} quad_perm:[{q2},{q2},{q2},{q2}] row_mask:0xf bank_mask:0xf')
            if u: e(f'v_cndmask_b32 v{vS}, v{vS}, v{vB}, s[{54+2*u}:{55+2*u}]')
        for hf in range(2):
            if self.prof: e('s_memrealtime s[62:63]')
            if DP or self.prof: e('s_waitcnt lgkmcnt(0)')
            halftop(False)
            for u in range(4):
                d = DD[u & 1]
                for t in range(4):
                    j = 16 * hf + 4 * u + t
                    cc = '0' if t == 0 else f'v[{d}:{d+3}]'
                    e(f'v_mfma_f32_16x16x32_bf16 v[{d}:{d+3}], v[{RING+4*j}:{RING+4*j+3}], v[{Q+4*t}:{Q+4*t+3}], {cc}')
                    if t == 2 and u > 0: reduce(u - 1)
                    gate(False); kload(j)
            e('s_nop 5')
            reduce(3)
            e(f'v_cvt_pk_bf16_f32 v{vS}, v{vS}, v{vS}\nv_lshlrev_b32 v{vS}, 16, v{vS}\nv_mul_f32 v{vS}, {f2u(128.0**-0.5):#x}, v{vS}')
            self.rnd_bf16(vS)
            e(f'v_max_f32 v{vMax}, v{vMax}, v{vS}\nds_write_b32 v{vSa}, v{vS}\nv_add_u32 v{vSa}, 0x100, v{vSa}')
            e('s_add_u32 s52, s52, 1')
        e('s_cmp_lt_u32 s52, 16\ns_cbranch_scc1 L_kloop')
        c('---- transition ----')
        e(f'v_add_u32 v{vSa}, -4096, v{vSa}')
        e(f'ds_read_b32 v{vSn}, v{vSa}')
        self.ror_reduce('v_max_f32', vMax)
        self.swap_reduce('v_max_f32', vMax, vT, 16)
        self.swap_reduce('v_max_f32', vMax, vT, 32)
        LOG2E = f2u(1.4426950408889634)
        e(f's_mov_b32 s53, {LOG2E:#x}')
        e(f'v_mul_f32 v{vNM}, {f2u(-1.4426950408889634):#x}, v{vMax}')
        e(f's_lshl_b32 s54, s3, 2\ns_add_u32 s54, s54, {L_MW:#x}\nv_mov_b32 v{vT}, s54')
        e(f'ds_write_b32 v{vT}, v{vMax}')
        e(f's_mov_b64 exec, 1\nv_mov_b32 v{vT}, 1\nds_add_u32 v{vCnt}, v{vT} offset:{7*4}\ns_mov_b64 exec, -1')
        self.stamp(3)
        c('---- V loop ----')
        assert self.edepth <= NS - 1
        e('L_vloop:')
        e('s_add_u32 s51, s51, 0x20000\ns_add_u32 s55, s55, 0x20000')
        e('s_cmp_eq_u32 s52, 30\ns_cselect_b32 s42, 0, s42')
        for hf in range(2):
            if self.prof: e('s_memrealtime s[62:63]')
            e(f'v_add_u32 v{vSa}, 0x100, v{vSa}')
            e('s_waitcnt lgkmcnt(0)')
            e(f'v_fma_f32 v{vT}, v{vSn}, s53, v{vNM}')
            e(f'ds_read_b32 v{vSn}, v{vSa}')
            e(f'v_exp_f32 v{vT}, v{vT}')
            halftop(True)
            e(f'v_cvt_pk_bf16_f32 v{vPp}, v{vT}, v{vT}\ns_nop 1')
            for u in range(4):
                for t in range(4):
                    j = 16 * hf + 4 * u + t
                    for i in range(4):
                        e(f'v_and_b32_dpp v{AA+i}, v{vPp}, v{MK+i} row_newbcast:{4*t+u} row_mask:0xf bank_mask:0xf')
                    e('s_nop 1')
                    e(f'v_mfma_f32_16x16x32_bf16 v[{O}:{O+3}], v[{AA}:{AA+3}], v[{RING+4*j}:{RING+4*j+3}], v[{O}:{O+3}]')
                    gate(True); kload(j)
            e('s_add_u32 s52, s52, 1')
        e('s_cmp_lt_u32 s52, 32\ns_cbranch_scc1 L_vloop')
        if self.prof:
            e(f's_memrealtime s[62:63]\ns_add_u32 s96, s26, {W_STAMP+0x10000:#x}\ns_addc_u32 s97, s27, 0\ns_mov_b32 s98, 0x100000\ns_mov_b32 s99, 0x20000')
            e('s_waitcnt lgkmcnt(0)\nv_writelane_b32 v22, s62, 32\nv_writelane_b32 v22, s64, 33')
            e('s_getreg_b32 s54, hwreg(HW_REG_HW_ID)\ns_nop 0\nv_writelane_b32 v22, s54, 34\ns_getreg_b32 s54, hwreg(HW_REG_XCC_ID)\ns_nop 0\nv_writelane_b32 v22, s54, 35')
            e('s_lshl_b32 s54, s2, 2\ns_add_u32 s54, s54, s3\ns_lshl_b32 s54, s54, 8\nv_lshlrev_b32 v23, 2, v1')
            e('buffer_store_dword v22, v23, s[96:99], s54 offen')
        c('---- stream epilogue ----')
        e(f'v_and_b32 v{vA}, 15, v1\nv_lshlrev_b32 v{vA}, 5, v{vA}\nv_lshrrev_b32 v{vT}, 4, v1\nv_lshl_add_u32 v{vA}, v{vT}, 4, v{vA}')
        e(f's_lshl_b32 s54, s3, 9\ns_add_u32 s54, s54, {L_DP:#x}\nv_add_u32 v{vA}, s54, v{vA}')
        e('s_mov_b32 exec_hi, 0')
        e(f'ds_write_b128 v{vA}, v[{O}:{O+3}]')
        e('s_mov_b64 exec, -1')
        self.srd(36, 26, 27, None, W_SIZE)
        e('s_waitcnt lgkmcnt(0)')
        self.stamp(4)
        e('s_barrier')
        e('s_cmp_eq_u32 s3, 0\ns_cbranch_scc1 L_final\ns_cmp_lg_u32 s3, 1\ns_cbranch_scc1 L_end')
        c('---- wave 1: combine o and publish ----')
        e(f'v_lshlrev_b32 v{vA}, 3, v1\nv_add_u32 v{vA}, {L_DP:#x}, v{vA}\nv_mov_b32 v{vB}, {L_FW:#x}')
        e(f'ds_read_b128 v[{Q}:{Q+3}], v{vB}')
        for w in range(4): e(f'ds_read_b64 v[{Q+4+2*w}:{Q+5+2*w}], v{vA} offset:{w*512}')
        e(f's_lshl_b32 s54, s46, 8\ns_add_u32 s54, s54, {W_OX:#x}\nv_lshlrev_b32 v{vT}, 2, v1')
        e('s_waitcnt lgkmcnt(0)')
        e(f'v_mul_f32 v{vA}, v{Q}, v{Q+4}\nv_mul_f32 v{vB}, v{Q}, v{Q+5}')
        for w in range(1, 4): e(f'v_fmac_f32 v{vA}, v{Q+w}, v{Q+4+2*w}\nv_fmac_f32 v{vB}, v{Q+w}, v{Q+5+2*w}')
        e(f'v_cvt_pk_bf16_f32 v{vA}, v{vA}, v{vB}')
        e(f'v_min_u32 v{vA}, 0xfffffffe, v{vA}')
        e(f'buffer_store_dword v{vA}, v{vT}, s[36:39], s54 offen sc1')
        self.stamp(5)
        c('collect o of the 8 batches of this head')
        R = RING
        e(f's_lshl_b32 s54, s45, 11\ns_add_u32 s54, s54, {W_OX:#x}\nv_lshlrev_b32 v{vT}, 4, v1')
        e(f'v_lshrrev_b32 v{vA}, 4, v1\nv_lshl_add_u32 v{vP}, v{vA}, 4, v{vT}\nv_add_u32 v{vP}, {L_OL:#x}, v{vP}')
        e('s_mov_b64 s[56:57], -1\ns_mov_b64 s[58:59], -1\ns_mov_b32 s55, 0')
        e('L_opoll:')
        for k in range(2):
            e(f's_mov_b64 exec, s[{56+2*k}:{57+2*k}]')
            e(f'buffer_load_dwordx4 v[{R+4*k}:{R+4*k+3}], v{vT}, s[36:39], s54 offen offset:{k*1024} sc1')
        e('s_mov_b64 exec, -1\ns_add_u32 s55, s55, 1\ns_waitcnt vmcnt(0)')
        e(f'v_max3_u32 v{vA}, v{R}, v{R+1}, v{R+2}\nv_max3_u32 v{vB}, v{R+4}, v{R+5}, v{R+6}\nv_max_u32 v{vA}, v{vA}, v{R+3}\nv_max_u32 v{vB}, v{vB}, v{R+7}')
        e(f'v_cmp_eq_u32 s[56:57], -1, v{vA}\nv_cmp_eq_u32 s[58:59], -1, v{vB}')
        e('s_cmp_ge_u32 s55, 0x10000\ns_cbranch_scc1 L_ogo\ns_or_b64 vcc, s[56:57], s[58:59]\ns_cbranch_scc1 L_opoll\nL_ogo:')
        e(f'ds_write_b128 v{vP}, v[{R}:{R+3}]\nds_write_b128 v{vP}, v[{R+4}:{R+7}] offset:{4*272}')
        e('s_waitcnt lgkmcnt(0)\ns_barrier')
        self.flush_stamps([5], 200)
        e('s_endpgm')
        c('---- wave 0: final reduction ----')
        e('L_final:')
        R = RING
        e(f'v_and_b32 v{vA}, 7, v1\nv_lshlrev_b32 v{vA}, 4, v{vA}\nv_add_u32 v{vA}, {L_FF:#x}, v{vA}')
        e(f'ds_read_b128 v[{Q}:{Q+3}], v{vA}\nds_read_b64 v[{Q+4}:{Q+5}], v{vCnt} offset:{L_NONCE-L_CNT}')
        e(f's_mul_i32 s54, s44, {W_BSTRIDE:#x}\ns_lshl_b32 s55, s45, 12\ns_add_u32 s54, s54, s55\ns_add_u32 s54, s54, {W_AP:#x}')
        e(f'v_lshlrev_b32 v{vT}, 4, v1')
        self.srd(32, 22, 23, None, 0x4000)
        e('s_mov_b32 s55, 0\ns_waitcnt vmcnt(0) lgkmcnt(0)')
        self.tags_from(Q + 4, MK)
        for i in range(4): e(f's_mov_b64 s[{56+2*i}:{57+2*i}], -1')
        e('s_barrier')
        if 'nob4' not in self.dbg: e('s_barrier')
        e('L_fpoll:')
        for i in range(4):
            e(f's_mov_b64 exec, s[{56+2*i}:{57+2*i}]')
            e(f'buffer_load_dwordx4 v[{R+4*i}:{R+4*i+3}], v{vT}, s[36:39], s54 offen offset:{i*1024} sc1')
        e('s_mov_b64 exec, -1\ns_add_u32 s55, s55, 1')
        for i in range(4):
            e(f's_waitcnt vmcnt({3-i})')
            for k in range(4): e(f'v_xor_b32 v{R+16+4*i+k}, v{R+4*i+k}, v{MK+k}')
            e(f'v_or3_b32 v{vA}, v{R+16+4*i}, v{R+17+4*i}, v{R+18+4*i}\nv_or_b32 v{vA}, v{vA}, v{R+19+4*i}\nv_and_b32 v{vA}, {TMASK:#x}, v{vA}')
            e(f'v_cmp_ne_u32 s[{56+2*i}:{57+2*i}], 0, v{vA}')
        e('s_cmp_ge_u32 s55, 0x10000\ns_cbranch_scc1 L_fgo')
        e('s_or_b64 vcc, s[56:57], s[58:59]\ns_or_b64 s[50:51], s[60:61], s[62:63]\ns_or_b64 vcc, vcc, s[50:51]\ns_cbranch_scc1 L_fpoll\nL_fgo:')
        R = R + 16
        self.colsum(R, 4, vT)
        e('s_waitcnt lgkmcnt(0)')
        for i in range(4): e(f'v_add_f32 v{R+i}, v{Q+i}, v{R+i}')
        e(f'v_cvt_pk_bf16_f32 v{R}, v{R}, v{R+1}\nv_cvt_pk_bf16_f32 v{R+1}, v{R+2}, v{R+3}')
        e(f's_lshl_b32 s54, s2, 6\nv_lshlrev_b32 v{vT}, 3, v1\ns_mov_b64 exec, 0xff')
        e(f'buffer_store_dwordx2 v[{R}:{R+1}], v{vT}, s[32:35], s54 offen')
        e('s_mov_b64 exec, -1')
        self.stamp(6)
        self.flush_stamps([0, 1, 2, 3, 4, 6], 200)
        e('s_endpgm')

    def colsum(self, R, n, vt):
        e = self.e
        for i in range(1, n):
            for k in range(4): e(f'v_add_f32 v{R+k}, v{R+k}, v{R+4*i+k}')
        e('s_nop 1')
        for k in range(4): e(f'v_add_f32_dpp v{R+k}, v{R+k}, v{R+k} row_ror:8 row_mask:0xf bank_mask:0xf')
        for which in (16, 32):
            for k in range(4): e(f'v_mov_b32 v{R+4+k}, v{R+k}')
            e('s_nop 0')
            for k in range(4): e(f'v_permlane{which}_swap_b32 v{R+k}, v{R+4+k}')
            for k in range(4): e(f'v_add_f32 v{R+k}, v{R+k}, v{R+4+k}')

    def tags_from(self, nv, tg):
        self.e(f'v_and_b32 v{tg}, {TMASK:#x}, v{nv}\nv_bfe_u32 v{tg+1}, v{nv}, 16, {TB}\nv_and_b32 v{tg+2}, {TMASK:#x}, v{nv+1}\nv_bfe_u32 v{tg+3}, v{nv+1}, 16, {TB}')
    def untag(self, R, n, tg, t0, t1, mask):
        e = self.e
        for i in range(4 * n): e(f'v_xor_b32 v{R+i}, v{R+i}, v{tg + (i & 3)}')
        e(f'v_or3_b32 v{t0}, v{R}, v{R+1}, v{R+2}\nv_or3_b32 v{t1}, v{R+3}, v{R+4}, v{R+5}')
        i = 6; k = 0
        while i < 4 * n:
            t = (t0, t1)[k & 1]; e(f'v_or3_b32 v{t}, v{t}, v{R+i}, v{R+i+1}'); i += 2; k += 1
        e(f'v_or_b32 v{t0}, v{t0}, v{t1}\nv_and_b32 v{t0}, {mask:#x}, v{t0}\nv_cmp_ne_u32 vcc, 0, v{t0}')

    def aux(self):
        e, c = self.e, self.c
        WP = self.wpol
        vCnt, vT, vT2, vG, vC, vC7, vSt, vTr, vL16, vX = 2, 3, 4, 5, 6, 7, 8, 9, 10, 11
        X = 16
        U = 32
        TG = 64
        XFr = 68
        NV = 28
        c('=== aux waves (4..7) ===')
        e('s_sub_u32 s3, s3, 4')
        e(f'v_mov_b32 v{vCnt}, {L_CNT:#x}')
        e(f'v_lshrrev_b32 v{vG}, 4, v1\nv_and_b32 v{vC}, 15, v1\nv_and_b32 v{vC7}, 7, v1\nv_lshlrev_b32 v{vL16}, 4, v1')
        e(f'v_lshrrev_b32 v{vT}, 5, v1\nv_lshlrev_b32 v{vT}, 11, v{vT}\nv_and_b32 v{vT2}, 31, v1')
        e(f's_lshl_b32 s49, s3, 12\nv_add_u32 v{vT}, s49, v{vT}')
        e(f'v_lshl_add_u32 v{vX}, v{vT2}, 4, v{vT}')
        vWq = 15
        e(f'v_lshrrev_b32 v{vT}, 3, v1\nv_lshlrev_b32 v{vWq}, 13, v{vT}\nv_lshl_add_u32 v{vWq}, v{vC7}, 4, v{vWq}')
        e('s_lshl_b32 s50, s48, 21\ns_lshl_b32 s51, s47, 7\ns_add_u32 s50, s50, s51\ns_sub_u32 s51, 0x800000, s50')
        e('s_lshl_b32 s53, s48, 9')
        e(f's_lshl_b32 s54, s3, 13\ns_add_u32 m0, s54, {L_WQ:#x}\ns_lshl_b32 s55, s3, 19')
        e('s_memrealtime s[62:63]')
        e(f'v_lshrrev_b32 v{vT}, 3, v{vC}\nv_lshlrev_b32 v{vSt}, 6, v{vT}\nv_lshl_add_u32 v{vSt}, v{vG}, 4, v{vSt}\nv_lshl_add_u32 v{vSt}, v{vC7}, 19, v{vSt}')
        e(f'v_mov_b32 v{vT2}, 0')
        e('s_xor_b32 s60, s3, 3\ns_or_b32 s60, s60, s2')
        e('s_waitcnt lgkmcnt(0)')
        self.srd(40, 24, 25, None, 256)
        self.srd(36, 26, 27, None, W_SIZE)
        e('s_cmp_lg_u32 s60, 0\ns_cbranch_scc1 L_a_noz')
        c('workgroup 0: publish the launch nonce: four fields of the clock, field 0 odd, field 1 even')
        e(f's_lshl_b32 s56, s62, 1\ns_or_b32 s56, s56, 1\ns_and_b32 s56, s56, {TMASK:#x}\ns_bfe_u32 s57, s62, {((TB-1) << 16) | (TB-1):#x}\ns_lshl_b32 s57, s57, 17\ns_or_b32 s56, s56, s57')
        e(f's_lshr_b64 s[62:63], s[62:63], {2*TB-2}\ns_and_b32 s57, s62, {TMASK:#x}\ns_bfe_u32 s62, s62, {(TB << 16) | TB:#x}\ns_lshl_b32 s62, s62, 16\ns_or_b32 s57, s57, s62\ns_or_b32 s57, s57, 0x80000000')
        e(f'v_mov_b32 v{TG}, s56\nv_mov_b32 v{TG+1}, s57\ns_mov_b64 exec, 1')
        e(f'buffer_store_dwordx2 v[{TG}:{TG+1}], v{vT2}, s[40:43], 0 offen sc1\ns_mov_b64 exec, -1')
        if self.ddepth:
            c('zero the progress counters (they only steer queue depth)')
            e(f'v_lshlrev_b32 v{vT}, 8, v1\ns_mov_b32 s56, {W_CT:#x}')
            for i in range(4):
                e(f'buffer_store_dword v{vT2}, v{vT}, s[36:39], s56 offen sc1')
                if i < 3: e('s_add_u32 s56, s56, 0x4000')
        e('L_a_noz:')
        if 'preap' in self.dbg:
            e(f's_mul_i32 s56, s44, {W_BSTRIDE:#x}\ns_lshl_b32 s57, s45, 12\ns_add_u32 s56, s56, s57\ns_lshl_b32 s57, s3, 10\ns_add_u32 s56, s56, s57\ns_add_u32 s56, s56, {W_AP:#x}')
            e(f'buffer_load_dwordx4 v[116:119], v{vL16}, s[36:39], s56 offen sc1')
        if 'preq' in self.dbg:
            e('s_cmp_ge_u32 s3, 2\ns_cbranch_scc1 L_a_nopreq')
            e(f's_mul_i32 s56, s44, {W_BSTRIDE:#x}\ns_lshl_b32 s57, s45, 11\ns_add_u32 s56, s56, s57\ns_lshl_b32 s57, s3, 10\ns_add_u32 s56, s56, s57')
            e(f'buffer_load_dwordx4 v[120:123], v{vL16}, s[36:39], s56 offen sc1')
            e('L_a_nopreq:')
        if 'pre' in self.dbg or 'pre1' in self.dbg:
            e('s_cmp_ge_u32 s3, 2\ns_cbranch_scc1 L_a_nopre')
            e(f's_mul_i32 s56, s44, {W_BSTRIDE:#x}\ns_lshl_b32 s57, s45, 11\ns_add_u32 s56, s56, s57\ns_lshl_b32 s57, s3, 10\ns_add_u32 s56, s56, s57')
            if 'pre1' in self.dbg: e('s_mov_b64 exec, 1')
            e(f'buffer_load_dwordx4 v[120:123], v{vL16}, s[36:39], s56 offen sc1')
            e(f's_lshl_b32 s56, s46, 8\ns_lshl_b32 s57, s3, 7\ns_add_u32 s56, s56, s57')
            if 'pre1' in self.dbg: e('s_mov_b64 exec, 0xff\ns_add_u32 s56, s56, 0x10000')
            e(f'buffer_load_dwordx4 v[124:127], v{vSt}, s[36:39], s56 offen sc1')
            if 'pre1' in self.dbg: e('s_mov_b64 exec, -1')
            e('L_a_nopre:')
        self.srd(28, 4, 5, None, 0x4000)
        self.srd(32, 10, 11, 50, size_sgpr=51)
        for i in range(4): e(f'buffer_load_dwordx4 v[{X+4*i}:{X+4*i+3}], v{vX}, s[28:31], 0 offen offset:{i*512}')
        e(f'buffer_load_dwordx4 v[{XFr}:{XFr+3}], v{vX}, s[28:31], s53 offen')
        for i in range(8):
            e(f'buffer_load_dwordx4 v{vWq}, s[32:35], s55 offen {WP} lds')
            if i < 7: e(f's_add_u32 m0, m0, 0x400\ns_add_u32 s55, s55, 0x10000\ns_nop 0')
        c('a=2: clear own OX slot with the sentinel')
        e('s_cmp_lg_u32 s3, 2\ns_cbranch_scc1 L_a_nocl')
        for k in range(4): e(f'v_mov_b32 v{U+k}, -1')
        e(f's_lshl_b32 s54, s46, 8\ns_add_u32 s54, s54, {W_OX:#x}\ns_mov_b64 exec, 0xffff')
        e(f'buffer_store_dwordx4 v[{U}:{U+3}], v{vL16}, s[36:39], s54 offen sc1\ns_mov_b64 exec, -1\ns_nop 0')
        e('L_a_nocl:')
        e(f's_lshl_b32 s61, s44, 14\ns_lshl_b32 s55, s3, 12\ns_add_u32 s61, s61, s55\ns_lshl_b32 s55, s45, 7\ns_add_u32 s61, s61, s55\ns_add_u32 s61, s61, {W_AP:#x}')
        self.stamp(14)
        c('LN stats')
        e('s_waitcnt vmcnt(9)')
        self.stamp(15)
        for i in range(16):
            e(f'v_lshlrev_b32 v{U+2*i}, 16, v{X+i}\nv_and_b32 v{U+2*i+1}, 0xffff0000, v{X+i}')
        S0 = 12
        e(f'v_pk_add_f32 v[{S0}:{S0+1}], v[{U}:{U+1}], v[{U+2}:{U+3}]\nv_pk_add_f32 v[{S0+2}:{S0+3}], v[{U+4}:{U+5}], v[{U+6}:{U+7}]')
        for i in range(4, 16):
            a = S0 + 2 * (i & 1)
            e(f'v_pk_add_f32 v[{a}:{a+1}], v[{a}:{a+1}], v[{U+2*i}:{U+2*i+1}]')
        e(f'v_pk_add_f32 v[{S0}:{S0+1}], v[{S0}:{S0+1}], v[{S0+2}:{S0+3}]\nv_add_f32 v{S0}, v{S0}, v{S0+1}')
        self.ror_reduce('v_add_f32', S0)
        self.swap_reduce('v_add_f32', S0, vT, 16)
        M = X
        e(f'v_mul_f32 v{M}, {f2u(-1.0/1024):#x}, v{S0}\nv_mov_b32 v{M+1}, v{M}')
        for i in range(16): e(f'v_pk_add_f32 v[{U+2*i}:{U+2*i+1}], v[{U+2*i}:{U+2*i+1}], v[{M}:{M+1}]')
        e(f'v_pk_mul_f32 v[{S0}:{S0+1}], v[{U}:{U+1}], v[{U}:{U+1}]\nv_pk_mul_f32 v[{S0+2}:{S0+3}], v[{U+2}:{U+3}], v[{U+2}:{U+3}]')
        for i in range(2, 16):
            a = S0 + 2 * (i & 1)
            e(f'v_pk_fma_f32 v[{a}:{a+1}], v[{U+2*i}:{U+2*i+1}], v[{U+2*i}:{U+2*i+1}], v[{a}:{a+1}]')
        e(f'v_pk_add_f32 v[{S0}:{S0+1}], v[{S0}:{S0+1}], v[{S0+2}:{S0+3}]\nv_add_f32 v{S0}, v{S0}, v{S0+1}')
        self.ror_reduce('v_add_f32', S0)
        self.swap_reduce('v_add_f32', S0, vT, 16)
        RR, RC = S0, S0 + 1
        e(f'v_mul_f32 v{RR}, {f2u(1.0/1024):#x}, v{S0}'); self.rnd_bf16(RR)
        e(f'v_add_f32 v{RR}, {f2u(1e-5):#x}, v{RR}'); self.rnd_bf16(RR)
        e(f'v_sqrt_f32 v{RR}, v{RR}\ns_nop 0'); self.rnd_bf16(RR)
        e(f'v_rcp_f32 v{RC}, v{RR}')
        self.rnd_bf16(M)
        def norm(src, n):
            for i in range(n):
                a, b2, q0, q1 = U, U + 1, U + 2, U + 3
                e(f'v_lshlrev_b32 v{a}, 16, v{src+i}\nv_and_b32 v{b2}, 0xffff0000, v{src+i}')
                e(f'v_add_f32 v{a}, v{a}, v{M}\nv_add_f32 v{b2}, v{b2}, v{M}')
                e(f'v_cvt_pk_bf16_f32 v{b2}, v{a}, v{b2}')
                e(f'v_lshlrev_b32 v{a}, 16, v{b2}\nv_and_b32 v{b2}, 0xffff0000, v{b2}')
                e(f'v_mul_f32 v{q0}, v{a}, v{RC}\nv_mul_f32 v{q1}, v{b2}, v{RC}')
                e(f'v_fma_f32 v{a}, -v{q0}, v{RR}, v{a}\nv_fma_f32 v{b2}, -v{q1}, v{RR}, v{b2}')
                e(f'v_fmac_f32 v{q0}, v{a}, v{RC}\nv_fmac_f32 v{q1}, v{b2}, v{RC}')
                e(f'v_cvt_pk_bf16_f32 v{src+i}, v{q0}, v{q1}')
        e('s_waitcnt vmcnt(8)')
        e('s_cmp_lg_u32 s3, 3\ns_cbranch_scc1 L_a_nn1')
        if 'nonon' in self.dbg: e(f'v_mov_b32 v{NV}, 0x01230457\nv_mov_b32 v{NV+1}, 0x89ab0cde')
        else: e(f'buffer_load_dwordx2 v[{NV}:{NV+1}], v{vT2}, s[40:43], 0 offen sc1')
        e('L_a_nn1:')
        norm(XFr, 4)
        e(f's_lshl_b32 s54, s3, 10\ns_add_u32 s54, s54, {L_XF:#x}\nv_add_u32 v{vT}, s54, v{vL16}')
        e(f'ds_write_b128 v{vT}, v[{XFr}:{XFr+3}]')
        e(f'v_bfe_u32 v{vT}, v1, 2, 2\nv_lshl_add_u32 v{vX}, v{vG}, 3, v{vT}')
        vT3 = 15; vBa = 14; vCc = 13
        e(f'v_and_b32 v{vCc}, 3, v1\nv_lshlrev_b32 v{vCc}, 3, v{vCc}')
        e(f'v_lshl_add_u32 v{vTr}, v{vX}, 8, v{vCc}\ns_lshl_b32 s54, s3, 6\nv_add_u32 v{vTr}, s54, v{vTr}')
        e(f'v_lshl_add_u32 v{vT3}, v{vX}, 7, v{vCc}\nv_add_u32 v{vT3}, s54, v{vT3}')
        e('s_mov_b32 s58, 0xff00ff00\ns_mov_b32 s59, 0xff00ff00\ns_mov_b32 s100, 0\ns_mov_b32 s101, -1\ns_mov_b32 s49, ' + hex(0xffffffff ^ TMASK))
        e(f'v_lshlrev_b32 v{vBa}, 9, v{vC7}\nv_lshl_add_u32 v{vBa}, v{vG}, 4, v{vBa}\nv_add_u32 v{vBa}, {L_XF:#x}, v{vBa}')
        e('s_waitcnt vmcnt(0)')
        e('s_cmp_lg_u32 s3, 3\ns_cbranch_scc1 L_a_nn2\ns_mov_b32 s57, 0')
        e('L_npoll:')
        e(f'v_readfirstlane_b32 s56, v{NV+1}\ns_cmp_lg_u32 s56, 0\ns_cbranch_scc1 L_ngo')
        e(f'buffer_load_dwordx2 v[{NV}:{NV+1}], v{vT2}, s[40:43], 0 offen sc1')
        e('s_add_u32 s57, s57, 1\ns_waitcnt vmcnt(0)\ns_cmp_lt_u32 s57, 0x10000\ns_cbranch_scc1 L_npoll\nL_ngo:')
        e(f'ds_write_b64 v{vCnt}, v[{NV}:{NV+1}] offset:{L_NONCE-L_CNT}')
        e('L_a_nn2:')
        self.arrive(0, vCnt, vT, 56)
        self.lds_wait(0, 4, vCnt, vT, 56)
        self.stamp(8)
        e(f'ds_read_b64 v[{NV}:{NV+1}], v{vCnt} offset:{L_NONCE-L_CNT}')
        BB = 80; AW = 96; D0 = 72; D1 = 76
        B1 = 80; A1 = 112
        for kk in range(8): e(f'ds_read_b128 v[{B1+4*kk}:{B1+4*kk+3}], v{vBa} offset:{kk*64}')
        def tile128(base, va=vTr):
            for ct in range(2):
                for kk in range(4):
                    for hh in range(2):
                        r = AW + (ct * 4 + kk) * 4 + hh * 2
                        e(f'ds_read_b64_tr_b16 v[{r}:{r+1}], v{va} offset:{base + kk*8192 + hh*1024 + ct*32}')
                if ct == 0: e('s_waitcnt lgkmcnt(6)')
        def mm128(acc=False):
            for kk in range(4):
                for ct in range(2):
                    d = (D0, D1)[ct]; r = AW + (ct * 4 + kk) * 4
                    cc = '0' if kk == 0 and not acc else f'v[{d}:{d+3}]'
                    e(f'v_mfma_f32_16x16x32_bf16 v[{d}:{d+3}], v[{r}:{r+3}], v[{BB+4*kk}:{BB+4*kk+3}], {cc}')
        def merge_tag(da, db, tg, bits, smask):
            for i in range(4): e(f'v_cndmask_b32 v{da+i}, v{da+i}, v{db+i}, s[58:59]')
            for i in range(4): e(f'v_add_u32 v{da+i}, {1 << (bits-1):#x}, v{da+i}')
            for i in range(4): e(f'v_and_or_b32 v{da+i}, v{da+i}, s{smask}, v{tg+i}')
        def pair256(second, tg):
            for mat in range(2):
                for kk in range(8):
                    for hh in range(2):
                        r = A1 + (mat * 8 + kk) * 4 + hh * 2
                        e(f'ds_read_b64_tr_b16 v[{r}:{r+1}], v{vT3} offset:{mat*second + kk*4096 + hh*512}')
                    if kk % 4 == 3: e('s_waitcnt lgkmcnt(0)')
            for kk in range(8):
                for mat in range(2):
                    d = (D0, D1)[mat]; r = A1 + (mat * 8 + kk) * 4
                    cc = '0' if kk == 0 else f'v[{d}:{d+3}]'
                    e(f'v_mfma_f32_16x16x32_bf16 v[{d}:{d+3}], v[{r}:{r+3}], v[{B1+4*kk}:{B1+4*kk+3}], {cc}')
            e('s_nop 7')
            merge_tag(D0, D1, tg, 8, 60)
        def gpoll(name, n, emit_loads, sleep, tg, mask):
            e(f's_mov_b32 s57, 0\n{name}:')
            emit_loads()
            e(f's_add_u32 s57, s57, 1\ns_waitcnt vmcnt(0)')
            self.untag(U, n, tg, vT, vT2, mask)
            e(f's_cbranch_vccz {name}_go')
            if sleep: e(f's_sleep {sleep}')
            e(f's_cmp_lt_u32 s57, 0x10000\ns_cbranch_scc1 {name}\n{name}_go:')
        e('s_waitcnt lgkmcnt(0)')
        self.tags_from(NV, TG)
        TC = 20; TP = 24
        e(f's_mov_b32 s60, 0xffffff00\ns_mov_b32 s50, 0xaaaaaaaa\ns_mov_b32 s51, 0xaaaaaaaa\ns_mov_b32 s52, 0xffff0000\ns_mov_b32 s53, 0xffff0000')
        e(f'v_cndmask_b32 v{TC+3}, v{NV}, v{NV+1}, s[50:51]\nv_cndmask_b32 v{TP+3}, v{NV}, v{NV+1}, s[52:53]')
        for T in (TC, TP):
            e(f'v_and_b32 v{T}, 0xff, v{T+3}\nv_bfe_u32 v{T+1}, v{T+3}, 8, 8\nv_bfe_u32 v{T+2}, v{T+3}, 16, 8\nv_lshrrev_b32 v{T+3}, 24, v{T+3}')
        e('s_cmp_ge_u32 s3, 2\ns_cbranch_scc1 L_a_b1')
        c('q partial (a = 0,1): 32 columns each')
        assert L_WQ == 0
        pair256(32, TP)
        e(f's_lshl_b32 s54, s46, 8\ns_lshl_b32 s55, s3, 7\ns_add_u32 s54, s54, s55')
        e(f'buffer_store_dwordx4 v[{D0}:{D0+3}], v{vSt}, s[36:39], s54 offen {self.qpol} ')
        self.stamp(9)
        e('s_cmp_lg_u32 s3, 0\ns_cbranch_scc1 L_a_b1')
        c('wave a=0: gather q')
        e(f's_mul_i32 s54, s44, {W_BSTRIDE:#x}\ns_lshl_b32 s55, s45, 11\ns_add_u32 s54, s54, s55')
        if self.qj: self.lds_wait(12, 1, vCnt, vT, 56, sleep=2)
        def ql():
            for i in range(2): e(f'buffer_load_dwordx4 v[{U+4*i}:{U+4*i+3}], v{vL16}, s[36:39], s54 offen offset:{i*1024} {self.qpol}')
        gpoll('L_qpoll', 2, ql, self.qsleep, TC, 0xff)
        for k in range(4): e(f'v_permlane32_swap_b32 v{U+k}, v{U+4+k}')
        for k in range(4): e(f'v_add_f32 v{U+k}, v{U+k}, v{U+4+k}')
        for k in range(4): e(f'v_mov_b32 v{U+4+k}, v{U+k}')
        e(f'v_lshrrev_b32 v{vT}, 5, v1\nv_lshlrev_b32 v{vT}, 7, v{vT}\nv_lshl_add_u32 v{vT}, v{vC}, 3, v{vT}\nv_add_u32 v{vT}, {L_QL:#x}, v{vT}')
        for k in range(4): e(f'v_permlane16_swap_b32 v{U+k}, v{U+4+k}')
        for k in range(4): e(f'v_add_f32 v{U+k}, v{U+k}, v{U+4+k}')
        e(f'v_cvt_pk_bf16_f32 v{U}, v{U}, v{U+1}\nv_cvt_pk_bf16_f32 v{U+1}, v{U+2}, v{U+3}')
        e(f'ds_write_b64 v{vT}, v[{U}:{U+1}]')
        e('L_a_b1:')
        e(f's_lshl_b32 s54, s3, 5\ns_sub_u32 s54, {L_GATE:#x}, s54\nv_add_u32 v{vT3}, s54, v{vT3}')
        e('s_waitcnt lgkmcnt(0)')
        self.stamp(10)
        e('s_barrier')
        c('FFN stage 1')
        e('s_cmp_ge_u32 s46, 224\ns_cbranch_scc1 L_a_s1done')
        if self.skip >= 3: e('s_branch L_a_s1done')
        pair256(0x8000, TC)
        e(f's_lshl_b32 s54, s46, 12\ns_lshl_b32 s55, s3, 10\ns_add_u32 s54, s54, s55\ns_add_u32 s54, s54, {W_GU:#x}')
        e(f'buffer_store_dwordx4 v[{D0}:{D0+3}], v{vL16}, s[36:39], s54 offen {self.fpol}')
        e('L_a_s1done:')
        self.arrive(2, vCnt, vT, 56)
        self.lds_wait(2, 4, vCnt, vT, 56)
        c('wo tile DMA')
        e('s_lshl_b32 s50, s45, 18\ns_lshl_b32 s51, s44, 8\ns_add_u32 s50, s50, s51\ns_sub_u32 s51, 0x800000, s50')
        self.srd(32, 12, 13, 50, size_sgpr=51)
        e(f'v_lshlrev_b32 v{vT}, 11, v{vG}\nv_lshl_add_u32 v{vT}, v{vC}, 4, v{vT}')
        e(f's_lshl_b32 s54, s3, 13\ns_add_u32 m0, s54, {L_WO:#x}\ns_lshl_b32 s55, s3, 16\ns_nop 0')
        for i in range(8 if self.skip < 4 else 0):
            e(f'buffer_load_dwordx4 v{vT}, s[32:35], s55 offen {WP} lds')
            if i < 7: e(f's_add_u32 m0, m0, 0x400\ns_add_u32 s55, s55, 0x2000\ns_nop 0')
        c('down tile operands')
        e(f'v_add_u32 v{vT3}, {L_DOWN:#x}, v{vTr}')
        tile128(0, vT3)
        e(f'v_lshrrev_b32 v{vT}, 5, v1\nv_lshlrev_b32 v{vBa}, 8, v{vT}\nv_lshl_add_u32 v{vBa}, v{vC7}, 5, v{vBa}\nv_and_b32 v{vT}, 1, v{vG}\nv_lshl_add_u32 v{vBa}, v{vT}, 4, v{vBa}\nv_add_u32 v{vBa}, {L_HL:#x}, v{vBa}')
        e('s_waitcnt lgkmcnt(0)')
        for ct in range(2):
            for i in range(4):
                r = AW + (ct * 4 + 3) * 4 + i
                e(f'v_cndmask_b32 v{r}, v{r}, 0, s[100:101]')
        e('s_cmp_lg_u32 s3, 0\ns_cbranch_scc1 L_a_hw')
        c('wave a=0: reduce one 16-column piece of g,u -> h ; then fetch the 7 pieces this workgroup needs')
        if self.skip >= 2: e('s_branch L_a_hdone')
        e('s_cmp_ge_u32 s46, 224\ns_cbranch_scc1 L_a_s15done')
        if self.gwait: self.lds_wait(8, self.gwait, vCnt, vT, 56, sleep=8)
        e(f's_lshl_b32 s54, s47, 14\ns_lshl_b32 s55, s48, 10\ns_add_u32 s54, s54, s55\ns_add_u32 s54, s54, {W_GU:#x}')
        e('s_add_u32 s55, s54, 0x1000\ns_add_u32 s50, s54, 0x2000\ns_add_u32 s51, s54, 0x3000')
        def gl():
            for k, so in enumerate((54, 55, 50, 51)): e(f'buffer_load_dwordx4 v[{U+4*k}:{U+4*k+3}], v{vL16}, s[36:39], s{so} offen {self.fpol}')
        gpoll('L_gpoll', 4, gl, 32, TC, 0xff)
        e(f'v_lshlrev_b32 v{vT}, 6, v{vC7}\nv_lshl_add_u32 v{vT}, v{vG}, 4, v{vT}\ns_lshl_b32 s54, s46, 9\ns_add_u32 s54, s54, {W_H:#x}')
        for i in range(1, 4):
            for k in range(4): e(f'v_add_f32 v{U+k}, v{U+k}, v{U+4*i+k}')
        for k in range(4): self.rnd_bf16(U + k)
        e('s_nop 1')
        for k in range(4): e(f'v_mul_f32_dpp v{U+4+k}, v{U+k}, v{U+k} row_ror:8 row_mask:0xf bank_mask:0xf')
        for k in range(4): self.rnd_bf16(U + 4 + k)
        for k in range(4): e(f'v_or_b32 v{U+4+k}, v{U+4+k}, v{TG+k}')
        e('s_not_b64 exec, s[58:59]')
        e(f'buffer_store_dwordx4 v[{U+4}:{U+7}], v{vT}, s[36:39], s54 offen {self.fpol}\ns_mov_b64 exec, -1')
        e('L_a_s15done:')
        if self.hwait: self.lds_wait(8, self.hwait, vCnt, vT, 56, sleep=8)
        e(f's_mul_i32 s54, s45, {7*512}\ns_add_u32 s54, s54, {W_H:#x}\nv_and_b32 v{vCc}, 0x1ff, v{vL16}')
        def hl():
            for k in range(3): e(f'buffer_load_dwordx4 v[{U+4*k}:{U+4*k+3}], v{vL16}, s[36:39], s54 offen offset:{k*1024} {self.fpol}')
            e(f'buffer_load_dwordx4 v[{U+12}:{U+15}], v{vCc}, s[36:39], s54 offen offset:3072 {self.fpol}')
        gpoll('L_hpoll', 4, hl, 32, TG, TMASK)
        e(f'v_lshlrev_b32 v{vT}, 3, v1\nv_add_u32 v{vT}, {L_HL:#x}, v{vT}')
        for k in range(4):
            e(f'v_cvt_pk_bf16_f32 v{U+4*k}, v{U+4*k}, v{U+4*k+1}\nv_cvt_pk_bf16_f32 v{U+4*k+1}, v{U+4*k+2}, v{U+4*k+3}')
            e(f'ds_write_b64 v{vT}, v[{U+4*k}:{U+4*k+1}] offset:{k*512}')
        e('L_a_hdone:')
        self.arrive(3, vCnt, vT, 56)
        e('L_a_hw:')
        self.lds_wait(3, 1, vCnt, vT, 56, sleep=8)
        for kk in range(4): e(f'ds_read_b128 v[{BB+4*kk}:{BB+4*kk+3}], v{vBa} offset:{kk*512}')
        e('s_waitcnt lgkmcnt(0)')
        mm128()
        e('s_waitcnt vmcnt(0)')
        self.arrive(4, vCnt, vT, 56)
        self.lds_wait(4, 4, vCnt, vT, 56)
        self.stamp(11)
        c('preload wo operands')
        tile128(L_WO)
        e('s_cmp_eq_u32 s3, 1\ns_cbranch_scc1 L_a_stats\ns_cmp_eq_u32 s3, 2\ns_cbranch_scc1 L_a_ctl\ns_cmp_lg_u32 s3, 0\ns_cbranch_scc1 L_a_b2')
        c('wave a=0: residual input')
        e(f's_lshl_b32 s54, s2, 6\nv_lshlrev_b32 v{vT}, 3, v{vC7}')
        e(f'buffer_load_dwordx2 v[{U}:{U+1}], v{vT}, s[28:31], s54 offen')
        e(f'v_lshlrev_b32 v{vT}, 4, v{vC7}\nv_add_u32 v{vT}, {L_FF:#x}, v{vT}\ns_waitcnt vmcnt(0)')
        e(f'v_lshlrev_b32 v{U+4}, 16, v{U}\nv_and_b32 v{U+5}, 0xffff0000, v{U}\nv_lshlrev_b32 v{U+6}, 16, v{U+1}\nv_and_b32 v{U+7}, 0xffff0000, v{U+1}')
        e(f'ds_write_b128 v{vT}, v[{U+4}:{U+7}]')
        self.stamp(12)
        e('s_branch L_a_b2')
        c('wave a=2: queue-depth controller (rank of this workgroup at each checkpoint)')
        e('L_a_ctl:')
        if self.ddepth:
            e(f's_bfe_u32 s55, s2, 0x10003\ns_bfe_u32 s54, s2, 0x20006\ns_lshl_b32 s54, s54, 1\ns_or_b32 s55, s55, s54\ns_lshl_b32 s55, s55, 13\ns_add_u32 s55, s55, {W_CT:#x}')
            tab = 0
            for r, dty in enumerate(self.table): tab |= dty << (4 * r)
            e(f's_mov_b32 s50, {tab & 0xffffffff:#x}\ns_mov_b32 s51, {tab >> 32:#x}')
            e(f's_mov_b32 s52, {self.cstart}\ns_mov_b32 s57, 0\nv_mov_b32 v{vT2}, 0\ns_mov_b64 exec, 1')
            e('L_ctl:')
            e(f's_cmp_ge_u32 s52, {self.usw - 1}\ns_cbranch_scc1 L_ctl_done\ns_cmp_ge_u32 s57, 0x100000\ns_cbranch_scc1 L_ctl_done')
            e(f'ds_read_b32 v{vT}, v{vCnt} offset:32\ns_add_u32 s57, s57, 1\ns_waitcnt lgkmcnt(0)\nv_readfirstlane_b32 s56, v{vT}')
            e(f's_cmp_ge_u32 s56, s52\ns_cbranch_scc1 L_ctl_go\ns_sleep {self.csleep}\ns_branch L_ctl')
            e('L_ctl_go:')
            e(f's_lshl_b32 s54, s52, 8\ns_add_u32 s54, s54, s55\nv_mov_b32 v{vT}, 1')
            if 'noat' not in self.dbg: e(f'buffer_atomic_add v{vT}, v{vT2}, s[36:39], s54 offen sc0 sc1')
            e(f's_waitcnt vmcnt(0)\nv_readfirstlane_b32 s54, v{vT}\ns_and_b32 s54, s54, 30\ns_lshl_b32 s54, s54, 1\ns_lshr_b64 s[62:63], s[50:51], s54\ns_and_b32 s54, s62, 15')
            e(f's_add_u32 s56, s52, 2\ns_add_u32 s56, s56, s54\ns_cmp_eq_u32 s54, 0\ns_cselect_b32 s56, 0, s56\nv_mov_b32 v{vT}, s56')
            e(f'ds_write_b32 v{vCnt}, v{vT} offset:20\ns_add_u32 s52, s52, {self.cper}\ns_branch L_ctl')
            e('L_ctl_done:\ns_mov_b64 exec, -1')
        e('s_branch L_a_b2')
        c('wave a=1: softmax statistics')
        e('L_a_stats:')
        self.lds_wait(7, 4, vCnt, vT, 56, sleep=32)
        SV = 128
        e(f'v_mov_b32 v{vT}, {L_MW:#x}\nds_read_b128 v[{U}:{U+3}], v{vT}')
        vSl = vL16
        for i in range(16):
            e(f'ds_read_b128 v[{SV+4*i}:{SV+4*i+3}], v{vSl} offset:{L_S + i*1024}')
            if i % 8 == 7: e('s_waitcnt lgkmcnt(0)')
        e(f'v_max3_f32 v{vT}, v{U}, v{U+1}, v{U+2}\nv_max_f32 v{vT}, v{vT}, v{U+3}')
        e(f'v_mul_f32 v{vT}, {f2u(-1.4426950408889634):#x}, v{vT}\ns_mov_b32 s53, {f2u(1.4426950408889634):#x}')
        for i in range(64): e(f'v_fma_f32 v{SV+i}, v{SV+i}, s53, v{vT}')
        for i in range(64): e(f'v_exp_f32 v{SV+i}, v{SV+i}')
        for k in range(4): e(f'v_fma_f32 v{U+k}, v{U+k}, s53, v{vT}')
        for k in range(4): e(f'v_exp_f32 v{U+k}, v{U+k}')
        n = 32
        while n >= 2:
            for i in range(0, n, 2): e(f'v_pk_add_f32 v[{SV+i}:{SV+i+1}], v[{SV+i}:{SV+i+1}], v[{SV+n+i}:{SV+n+i+1}]')
            n //= 2
        e(f'v_add_f32 v{SV}, v{SV}, v{SV+1}')
        self.ror_reduce('v_add_f32', SV)
        self.swap_reduce('v_add_f32', SV, vT, 16)
        self.swap_reduce('v_add_f32', SV, vT, 32)
        e(f'v_rcp_f32 v{SV}, v{SV}\ns_nop 0')
        for k in range(4): e(f'v_mul_f32 v{U+k}, v{U+k}, v{SV}')
        e(f'v_mov_b32 v{vT}, {L_FW:#x}\nds_write_b128 v{vT}, v[{U}:{U+3}]')
        e('L_a_b2:')
        e(f'v_mul_u32_u24 v{vBa}, 272, v{vC7}\nv_lshl_add_u32 v{vBa}, v{vG}, 4, v{vBa}\nv_add_u32 v{vBa}, {L_OL:#x}, v{vBa}')
        e('s_waitcnt lgkmcnt(0)')
        e('s_barrier')
        e('s_barrier')
        for kk in range(4): e(f'ds_read_b128 v[{BB+4*kk}:{BB+4*kk+3}], v{vBa} offset:{kk*64}')
        e('s_waitcnt lgkmcnt(0)')
        mm128(True)
        e('s_nop 7')
        merge_tag(D0, D1, TG, TB, 49)
        e(f'buffer_store_dwordx4 v[{D0}:{D0+3}], v{vSt}, s[36:39], s61 offen sc1')
        if self.stamps:
            self.stamp(13)
            e('s_cmp_lg_u32 s3, 0\ns_cbranch_scc1 L_end')
            self.flush_stamps([8, 9, 10, 11, 12, 13, 14, 15], 200)

if __name__ == '__main__':
    import argparse
    ap = argparse.ArgumentParser()
    ap.add_argument('out'); ap.add_argument('--depth', type=int, default=5); ap.add_argument('--pdepth', type=int, default=5)
    ap.add_argument('--stamps', action='store_true'); ap.add_argument('--wpol', default='nt')
    ap.add_argument('--edepth', type=int, default=31); ap.add_argument('--usw', type=int, default=28); ap.add_argument('--ddepth', type=int, default=0); ap.add_argument('--thr', type=int, default=48); ap.add_argument('--cstart', type=int, default=6); ap.add_argument('--dbg', default=''); ap.add_argument('--cper', type=int, default=4); ap.add_argument('--table', default='0000000000112234'); ap.add_argument('--qsleep', type=int, default=0); ap.add_argument('--gwait', type=int, default=2); ap.add_argument('--hwait', type=int, default=4); ap.add_argument('--csleep', type=int, default=4); ap.add_argument('--burst', type=int, default=0); ap.add_argument('--xs', default='sc1'); ap.add_argument('--qj', type=int, default=0); ap.add_argument('--qpol', default='sc1'); ap.add_argument('--fpol', default='sc1'); ap.add_argument('--xl', default='sc1'); ap.add_argument('--prio', type=int, default=0); ap.add_argument('--prof', action='store_true'); ap.add_argument('--skip', type=int, default=0); ap.add_argument('--pmask', type=lambda x: int(x, 16), default=0); ap.add_argument('--ppol', default='none')
    a = ap.parse_args()
    open(a.out, 'w').write(Gen(a.depth, a.pdepth, a.stamps, a.wpol.replace('none', ''), a.edepth, a.usw, a.prio, a.prof, a.skip, a.ddepth, a.thr, a.cstart, a.dbg, a.cper, a.table, a.qsleep, a.gwait, a.hwait, a.csleep, a.burst, a.xs, a.xl, a.qj, a.qpol, a.fpol, a.pmask, a.ppol).build())
```

```python
import sys, struct
KN = 'parallel_sum__mha_block_cached__glu_gated_bilinear__decode_kernel'

def f2u(x): return struct.unpack('<I', struct.pack('<f', x))[0]

L_WQ = 0x00000
L_S = 0x00000
L_GATE = 0x08000
L_WO = 0x08000
L_UP = 0x10000
L_DOWN = 0x18000
L_XQ = 0x20000
L_XF = 0x20800
L_OL = 0x20800
L_QL = 0x21800
L_HL = 0x21900
L_DP = 0x22100
L_MW = 0x22900
L_FW = 0x22910
L_FF = 0x22920
L_CNT = 0x229a0
L_ZERO = 0x229e0
L_NONCE = 0x22a20
LDS_SIZE = 0x22a80
W_BSTRIDE = 0x80000
W_QP = 0x00000
W_AP = 0x20000
W_GU = 0x400000
W_OX = 0x500000
W_H = 0x520000
W_CT = 0x540000
W_SIZE = 0x600000
W_STAMP = 0x20000000

TB = 12
TMASK = (1 << TB) - 1

class Gen:
    def __init__(self, depth=5, pdepth=5, stamps=False, wpol='nt', edepth=31, usw=28, prio=0, prof=False, skip=0, ddepth=0, thr=48, cstart=6, dbg='', cper=4, table='0000000000112234', qsleep=0, gwait=2, hwait=4, csleep=4, burst=0, xs='sc1', xl='sc1', qj=0, qpol='sc1', fpol='sc1', pmask=0, ppol='', cps='', fcp=0, utab='', uq=0, usync=0, leak=0, amap='12,14', bmap='', xr=''):
        self.bmap = [int(x) for x in bmap.split(',')] if bmap else None; self.xr = [int(x, 0) for x in xr.split(',')] if xr else None
        self.pw, self.pu = [int(x) for x in amap.split(',')]
        self.cps = [int(x) for x in cps.split(',')] if cps else None; self.fcp = fcp; self.utab = [int(ch, 16) for ch in utab]; self.uq = uq; self.usync = usync; self.leak = leak
        self.pmask = pmask; self.ppol = ppol.replace('+', ' ').replace('none', '')
        self.qj = qj; self.qpol = qpol.replace('+', ' '); self.fpol = fpol.replace('+', ' ')
        self.xs = xs.replace('+', ' '); self.xl = xl.replace('+', ' ')
        self.burst = burst
        self.qsleep = qsleep; self.gwait = gwait; self.hwait = hwait; self.csleep = csleep
        self.cper = cper; self.table = [int(ch, 16) for ch in table]
        self.dbg = set(dbg.split(','))
        self.skip = skip; self.ddepth = ddepth; self.thr = thr; self.cstart = cstart
        self.edepth = edepth; self.usw = usw; self.prio = prio; self.prof = prof
        self.L = []; self.depth = depth; self.pdepth = pdepth; self.stamps = stamps; self.uid = 0; self.wpol = wpol
    def e(self, s):
        for l in s.split('\n'): self.L.append('    ' + l.strip() if not l.strip().endswith(':') else l.strip())
    def c(self, s): self.L.append('    ; ' + s)
    def lab(self, p='L'):
        self.uid += 1; return f'{p}_{self.uid}'
    def srd(self, d, plo, phi, off_lo=None, size=None, size_sgpr=None):
        e = self.e
        if off_lo is None:
            e(f's_mov_b32 s{d}, s{plo}\ns_mov_b32 s{d+1}, s{phi}')
        else:
            e(f's_add_u32 s{d}, s{plo}, s{off_lo}\ns_addc_u32 s{d+1}, s{phi}, 0')
        if size_sgpr is not None: e(f's_mov_b32 s{d+2}, s{size_sgpr}')
        else: e(f's_mov_b32 s{d+2}, {size:#x}')
        e(f's_mov_b32 s{d+3}, 0x20000')
    def stamp(self, idx):
        if self.stamps:
            self.e(f's_memrealtime s[{64+2*idx}:{65+2*idx}]\ns_waitcnt lgkmcnt(0)')
    def flush_stamps(self, idxs, vt):
        if not self.stamps: return
        e = self.e
        e(f's_add_u32 s96, s26, {W_STAMP:#x}\ns_addc_u32 s97, s27, 0\ns_mov_b32 s98, 0x10000\ns_mov_b32 s99, 0x20000')
        e(f's_lshl_b32 s60, s2, 7\nv_mov_b32 v{vt+2}, s60')
        for i in idxs:
            e(f'v_mov_b32 v{vt}, s{64+2*i}\nv_mov_b32 v{vt+1}, s{65+2*i}')
            e(f'buffer_store_dwordx2 v[{vt}:{vt+1}], v{vt+2}, s[96:99], 0 offen offset:{i*8}\ns_nop 1')
    def ror_reduce(self, op, v, steps=(8, 4, 2, 1)):
        for s in steps:
            self.e(f's_nop 1\n{op}_dpp v{v}, v{v}, v{v} row_ror:{s} row_mask:0xf bank_mask:0xf')
    def swap_reduce(self, op, v, t, which):
        self.e(f'v_mov_b32 v{t}, v{v}\ns_nop 1\nv_permlane{which}_swap_b32 v{v}, v{t}\ns_nop 0\n{op} v{v}, v{v}, v{t}')
    def rnd_bf16(self, v, t=None):
        self.e(f'v_cvt_pk_bf16_f32 v{v}, v{v}, v{v}\nv_and_b32 v{v}, 0xffff0000, v{v}')
    def arrive(self, cnt, vaddr_zero, vt, sret):
        e = self.e
        e(f's_mov_b64 exec, 1\nv_mov_b32 v{vt}, 1')
        e(f'ds_add_rtn_u32 v{vt}, v{vaddr_zero}, v{vt} offset:{cnt*4}')
        e(f's_waitcnt lgkmcnt(0)\nv_readfirstlane_b32 s{sret}, v{vt}\ns_mov_b64 exec, -1')
    def lds_wait(self, cnt, target, vaddr_zero, vt, st, sleep=0):
        e = self.e; l = self.lab('L_w'); d = self.lab('L_wd')
        e(f's_mov_b32 s{st+1}, 0')
        e(f'{l}:')
        e(f'ds_read_b32 v{vt}, v{vaddr_zero} offset:{cnt*4}')
        e(f's_waitcnt lgkmcnt(0)\nv_readfirstlane_b32 s{st}, v{vt}')
        e(f's_cmp_ge_u32 s{st}, {target}\ns_cbranch_scc1 {d}')
        if sleep: e(f's_sleep {sleep}')
        e(f's_add_u32 s{st+1}, s{st+1}, 1\ns_cmp_lt_u32 s{st+1}, 0x100000\ns_cbranch_scc1 {l}')
        e(f'{d}:')

    def build(self):
        e, c = self.e, self.c
        D = self.depth; PD = self.pdepth; WP = self.wpol
        hdr = open('parallel_sum__mha_block_cached__glu_gated_bilinear__decode.s.ref').read().split('; @launch')[0]
        self.L.append(hdr.rstrip('\n'))
        self.L.append(f'; @launch grid=(256,1,1) block=(512,1,1) lds={LDS_SIZE}')
        self.L.append('.amdgcn_target "amdgcn-amd-amdhsa--gfx950"\n.text')
        self.L.append(f'.globl {KN}\n.p2align 8\n.type {KN},@function\n{KN}:')
        e('s_cmp_ge_u32 s2, 256\ns_cbranch_scc1 L_end')
        if self.stamps: e('s_memrealtime s[64:65]')
        e('v_cmp_gt_u32 vcc, 32, v0\ns_cbranch_vccz L_nozero')
        e(f'v_lshlrev_b32 v1, 2, v0\nv_and_b32 v1, 63, v1\nv_mov_b32 v2, 0\nds_write_b32 v1, v2 offset:{L_CNT & 0xffff}' if False else
          f'v_lshlrev_b32 v1, 2, v0\nv_and_b32 v1, 127, v1\nv_add_u32 v1, {L_CNT:#x}, v1\nv_mov_b32 v2, 0\nds_write_b32 v1, v2\ns_waitcnt lgkmcnt(0)')
        e('L_nozero:')
        e('s_load_dwordx16 s[4:19], s[0:1], 0\ns_load_dwordx8 s[20:27], s[0:1], 64')
        e('v_and_b32 v1, 63, v0\nv_lshrrev_b32 v2, 6, v0')
        e('s_lshr_b32 s44, s2, 5\ns_and_b32 s45, s2, 31')
        e('v_readfirstlane_b32 s3, v2')
        e('s_lshl_b32 s46, s45, 3\ns_add_u32 s46, s46, s44\ns_lshr_b32 s47, s46, 2\ns_and_b32 s48, s46, 3')
        e('s_barrier')
        e('s_cmp_ge_u32 s3, 4\ns_cbranch_scc1 L_aux')
        self.stream()
        e('L_aux:')
        self.aux()
        e('L_end:\ns_endpgm')
        self.L.append('.section .rodata,"a"\n.p2align 6')
        self.L.append(f'.amdhsa_kernel {KN}\n  .amdhsa_next_free_vgpr 256\n  .amdhsa_next_free_sgpr 102\n  .amdhsa_accum_offset 256')
        self.L.append('  .amdhsa_group_segment_fixed_size 0\n  .amdhsa_kernarg_size 96\n  .amdhsa_user_sgpr_count 2\n  .amdhsa_user_sgpr_kernarg_segment_ptr 1\n  .amdhsa_system_sgpr_workgroup_id_x 1\n.end_amdhsa_kernel')
        out = []
        for l in '\n'.join(self.L).split('\n'):
            if 's[36:39]' in l and l.rstrip().endswith(' sc1') and 'atomic' not in l:
                if 'store' in l: l = l.rstrip()[:-4] + ' ' + self.xs
                else: l = l.rstrip()[:-4] + ' ' + self.xl
            out.append(l)
        return '\n'.join(out) + '\n'

    def stream(self):
        e, c = self.e, self.c
        D = self.depth; PD = self.pdepth; WP = self.wpol; DP = self.ddepth
        vP, vV, vGU, vDN, vSa, vMax, vS, vA, vB, vT, vNM, vSn, vPp = 2, 6, 10, 11, 12, 13, 14, 15, 16, 17, 18, 19, 20
        vCnt = 21; vDec = 10; vPr = 11; vIt = 60
        DD = [24, 28]; Q = 32; MK = 48; AA = 52; O = 56; RING = 64
        NS = 32
        c('=== stream waves (0..3) ===')
        if self.prio: e(f's_setprio {self.prio}')
        e(f'v_mov_b32 v{vCnt}, {L_CNT:#x}')
        e(f'v_and_b32 v{vP}, 3, v1\nv_lshlrev_b32 v{vP}, 4, v{vP}')
        e(f'v_bfe_u32 v{vT}, v1, 2, 2\nv_lshl_add_u32 v{vP}, v{vT}, 8, v{vP}')
        e(f'v_lshrrev_b32 v{vT}, 4, v1\nv_lshl_add_u32 v{vP}, v{vT}, 6, v{vP}')
        AM = 0xff000 & ~(3 << self.pw) & ~(3 << self.pu)
        assert bin(AM).count('1') == 4
        HB = AM & -AM; AM2 = AM ^ HB; PB = AM2 & -AM2
        def advance():
            if AM2 == PB * 7: e(f's_add_u32 s51, s51, {PB:#x}\ns_add_u32 s55, s55, {PB:#x}')
            else: e(f's_or_b32 s51, s51, {0xffffffff ^ AM2:#x}\ns_add_u32 s51, s51, {PB:#x}\ns_and_b32 s51, s51, {AM2:#x}\ns_or_b32 s55, s51, {HB:#x}')
        P16 = 192
        if self.bmap:
            bm = self.bmap; assert sorted(bm) == list(range(10, 16))
            HB = 0x10000
            def advance():
                e('s_add_u32 s100, s100, 0x20000\ns_xor_b32 s51, s100, s101\ns_xor_b32 s55, s51, 0x10000')
            e(f's_lshl_b32 s49, s3, 12\ns_and_b32 s53, s3, 1\ns_lshl_b32 s53, s53, {bm[4]}\ns_lshr_b32 s54, s3, 1\ns_lshl_b32 s54, s54, {bm[5]}\ns_or_b32 s53, s53, s54')
            if self.xr:
                e(f's_mul_i32 s54, s2, {self.xr[0]}\ns_lshl_b32 s54, s54, {self.xr[1]}\ns_and_b32 s54, s54, {self.xr[2]:#x}')
                e('s_and_b32 s101, s54, 0xf0000\ns_and_b32 s54, s54, 0xfc00\ns_xor_b32 s53, s53, s54')
            else: e('s_mov_b32 s101, 0')
            e(f'v_xor_b32 v{vP}, s53, v{vP}')
            for j in range(16):
                cj = sum(((j >> i) & 1) << bm[i] for i in range(4))
                e(f'v_xor_b32 v{P16+j}, {cj:#x}, v{vP}')
            e('s_lshl_b32 s50, s2, 20\ns_mov_b32 s100, 0\ns_mov_b32 s51, s101\ns_xor_b32 s55, s101, 0x10000')
        else:
            e(f's_lshl_b32 s49, s3, 12\ns_lshl_b32 s53, s3, {self.pw}')
            e(f'v_add_u32 v{vP}, s53, v{vP}')
            for u in range(1, 4): e(f'v_add_u32 v{vP+u}, {u << self.pu:#x}, v{vP}')
            e('s_lshl_b32 s50, s2, 20')
            e(f's_mov_b32 s51, 0\ns_mov_b32 s55, {HB:#x}')
        e('s_waitcnt lgkmcnt(0)')
        self.srd(40, 6, 7, 50, 0x100000)
        def kload(j):
            so = 's51' if j < 16 else 's55'
            if self.bmap:
                e(f'buffer_load_dwordx4 v[{RING+4*j}:{RING+4*j+3}], v{P16+j%16}, s[40:43], {so} offen nt'); return
            e(f'buffer_load_dwordx4 v[{RING+4*j}:{RING+4*j+3}], v{vP+(j%16)//4}, s[40:43], {so} offen offset:{(j%4)*1024} ' + (self.ppol if (self.pmask >> j) & 1 else 'nt'))
        def pst(i):
            if self.prof: e(f's_memrealtime s[62:63]\ns_waitcnt lgkmcnt(0)\nv_writelane_b32 v22, s62, {36+i}')
        B0 = self.burst or PD
        pst(0)
        for j in range(B0): kload(j)
        pst(1)
        if self.bmap:
            e(f'v_lshlrev_b32 v{vV}, 4, v1\nv_xor_b32 v{vV}, v{vP}, v{vV}\nv_and_b32 v{vV}, 0x3ff, v{vV}')
        else:
            e(f'v_lshlrev_b32 v{vV}, 4, v1\nv_add_u32 v{vV}, s53, v{vV}')
            for u in range(1, 4): e(f'v_add_u32 v{vV+u}, {u << self.pu:#x}, v{vV}')
        def dma(srd, vo, n, step):
            for i in range(n):
                e(f's_waitcnt vmcnt({PD-1})')
                e(f'buffer_load_dwordx4 v{vo}, s[{srd}:{srd+3}], s54 offen {WP} lds')
                if i < n - 1: e(f's_add_u32 m0, m0, 0x400\ns_add_u32 s54, s54, {step}')
        e('s_cmp_ge_u32 s46, 224\ns_cbranch_scc1 L_s_nodma')
        e(f'v_lshrrev_b32 v{vT}, 3, v1\nv_mul_u32_u24 v{vGU}, 7168, v{vT}\nv_and_b32 v{vT}, 7, v1\nv_lshl_add_u32 v{vGU}, v{vT}, 4, v{vGU}')
        e(f's_mul_i32 s52, s48, {256*7168}\ns_lshl_b32 s53, s47, 7\ns_add_u32 s52, s52, s53\ns_sub_u32 s53, {1024*7168}, s52')
        if 'cgu' in self.dbg:
            e(f'v_lshlrev_b32 v{vGU}, 4, v1\ns_lshl_b32 s52, s46, 15\ns_sub_u32 s53, {1024*7168}, s52')
        self.srd(28, 16, 17, 52, size_sgpr=53)
        self.srd(32, 18, 19, 52, size_sgpr=53)
        e(f's_lshl_b32 s56, s3, 13')
        for (srd, lbase) in ((28, L_GATE), (32, L_UP)):
            if 'cgu' in self.dbg:
                e(f's_add_u32 m0, s56, {lbase:#x}\ns_mul_i32 s54, s3, 8192')
                dma(srd, vGU, 8, 1024)
                continue
            e(f's_add_u32 m0, s56, {lbase:#x}\ns_mul_i32 s54, s3, {64*7168}')
            dma(srd, vGU, 8, 8*7168)
            pst(2 if srd == 28 else 3)
        e('L_s_nodma:')
        e(f'v_lshrrev_b32 v{vT}, 4, v1\nv_lshlrev_b32 v{vDN}, 11, v{vT}\nv_and_b32 v{vT}, 15, v1\nv_lshl_add_u32 v{vDN}, v{vT}, 4, v{vDN}')
        e(f's_mul_i32 s52, s45, {112*2048}\ns_lshl_b32 s53, s44, 8\ns_add_u32 s52, s52, s53\ns_sub_u32 s53, {3584*2048}, s52')
        if 'cdn' in self.dbg:
            e(f'v_lshlrev_b32 v{vDN}, 4, v1\ns_mul_i32 s52, s2, 28672\ns_sub_u32 s53, {3584*2048}, s52')
            self.srd(36, 20, 21, 52, size_sgpr=53)
            e(f's_mul_i32 s56, s3, 7168\ns_add_u32 m0, s56, {L_DOWN:#x}\ns_mul_i32 s54, s3, 7168')
            dma(36, vDN, 7, 1024)
        else:
            self.srd(36, 20, 21, 52, size_sgpr=53)
            e(f's_mul_i32 s56, s3, 7168\ns_add_u32 m0, s56, {L_DOWN:#x}\ns_mul_i32 s54, s3, {28*2048}')
            dma(36, vDN, 7, 4*2048)
        pst(4)
        for u in range(1, 4):
            m = 0x11111111 << u
            e(f's_mov_b32 s{54+2*u}, {m:#x}\ns_mov_b32 s{55+2*u}, {m:#x}')
        e(f'v_and_b32 v{vT}, 1, v1\nv_cmp_eq_u32 vcc, 1, v{vT}\nv_mov_b32 v{vA}, 0xffff\nv_mov_b32 v{vB}, 0xffff0000')
        e(f'v_cndmask_b32 v{vA}, v{vA}, v{vB}, vcc')
        e(f'v_bfe_u32 v{vT}, v1, 1, 3')
        for i in range(4):
            e(f'v_cmp_eq_u32 vcc, {i}, v{vT}\ns_nop 1\nv_cndmask_b32 v{MK+i}, 0, v{vA}, vcc')
        e(f'v_lshlrev_b32 v{vSa}, 2, v1\nv_add_u32 v{vSa}, s49, v{vSa}')
        if L_S: e(f'v_add_u32 v{vSa}, {L_S:#x}, v{vSa}')
        e(f'v_mov_b32 v{vMax}, 0xff800000')
        for i in range(4): e(f'v_mov_b32 v{O+i}, 0')
        e(f'v_mov_b32 v{vDec}, 0\ns_lshl_b32 s54, s3, 2\nv_add_u32 v{vPr}, s54, v{vCnt}')
        e(f'v_and_b32 v{vA}, 3, v1\nv_lshrrev_b32 v{vT}, 4, v1\nv_lshl_add_u32 v{vA}, v{vT}, 2, v{vA}\nv_lshlrev_b32 v{vA}, 4, v{vA}\nv_add_u32 v{vA}, {L_QL:#x}, v{vA}')
        e(f'v_bfe_u32 v{vT}, v1, 2, 2\nv_mov_b32 v{vB}, {L_ZERO:#x}')
        for t in range(4):
            e(f'v_cmp_eq_u32 vcc, {t}, v{vT}\ns_nop 1\nv_cndmask_b32 v{AA+t}, v{vB}, v{vA}, vcc')
        for j in range(B0, NS):
            e(f's_waitcnt vmcnt({PD-1})'); kload(j)
            if j == 19: pst(5)
            if j == self.qj: e(f'ds_write_b32 v{vPr}, v{vCnt} offset:48')
        pst(6)
        self.stamp(1)
        e('s_barrier')
        for t in range(4): e(f'ds_read_b128 v[{Q+4*t}:{Q+4*t+3}], v{AA+t}')
        e('s_waitcnt lgkmcnt(0)')
        self.stamp(2)
        e('s_mov_b32 s52, 0')
        def halftop(isv):
            if self.prof: e('s_mov_b32 m0, s52\ns_nop 0\nv_writelane_b32 v22, s62, m0')
            e(f'v_mov_b32 v{vIt}, s52\nds_write_b32 v{vPr}, v{vIt} offset:32')
            if DP:
                e(f'v_readfirstlane_b32 s54, v{vDec}\ns_nop 0')
                e(f'ds_read_b32 v{vDec}, v{vCnt} offset:20')
                e('s_cmp_lt_u32 s52, s54\ns_cselect_b64 vcc, -1, 0')
            if isv and not self.uq: e(f's_cmp_ge_u32 s52, {self.usw}')
        def gate(isv):
            lm = self.lab('L_m'); lx = self.lab('L_x')
            if isv: e(f's_cbranch_scc1 {lx}')
            if DP: e(f's_cbranch_vccnz {lm}')
            e(f's_waitcnt vmcnt({D-1})')
            if DP: e(f'{lm}:\ns_waitcnt vmcnt({DP-1})')
            if isv: e(f'{lx}:\ns_waitcnt vmcnt({self.edepth-1})')
        c('---- K loop ----')
        e('L_kloop:')
        advance()
        e('s_cmp_lg_u32 s52, 14\ns_cbranch_scc1 L_k_go')
        if self.bmap:
            e('s_add_u32 s40, s8, s50\ns_addc_u32 s41, s9, 0\ns_mov_b32 s100, 0\ns_mov_b32 s51, s101\ns_xor_b32 s55, s101, 0x10000')
            for j in range(16): e(f'v_xor_b32 v{P16+j}, v{vV}, v{P16+j}')
        else:
            e(f's_add_u32 s40, s8, s50\ns_addc_u32 s41, s9, 0\ns_mov_b32 s51, 0\ns_mov_b32 s55, {HB:#x}')
            for u in range(4): e(f'v_mov_b32 v{vP+u}, v{vV+u}')
        e('L_k_go:')
        def reduce(u):
            d = DD[u & 1]
            q1, q2, q3 = (u + 1) & 3, (u + 2) & 3, (u + 3) & 3
            e(f'v_add_f32_dpp v{vA}, v{d+q1}, v{d+q2} quad_perm:[{q1},{q1},{q1},{q1}] row_mask:0xf bank_mask:0xf')
            e(f'v_add_f32_dpp v{vB}, v{d+q3}, v{d+u} quad_perm:[{q3},{q3},{q3},{q3}] row_mask:0xf bank_mask:0xf')
            e('s_nop 0')
            dst = vS if u == 0 else vB
            e(f'v_add_f32_dpp v{dst}, v{vA}, v{vB} quad_perm:[{q2},{q2},{q2},{q2}] row_mask:0xf bank_mask:0xf')
            if u: e(f'v_cndmask_b32 v{vS}, v{vS}, v{vB}, s[{54+2*u}:{55+2*u}]')
        for hf in range(2):
            if self.prof: e('s_memrealtime s[62:63]')
            if DP or self.prof: e('s_waitcnt lgkmcnt(0)')
            halftop(False)
            for u in range(4):
                d = DD[u & 1]
                for t in range(4):
                    j = 16 * hf + 4 * u + t
                    cc = '0' if t == 0 else f'v[{d}:{d+3}]'
                    e(f'v_mfma_f32_16x16x32_bf16 v[{d}:{d+3}], v[{RING+4*j}:{RING+4*j+3}], v[{Q+4*t}:{Q+4*t+3}], {cc}')
                    if t == 2 and u > 0: reduce(u - 1)
                    gate(False); kload(j)
            e('s_nop 5')
            reduce(3)
            e(f'v_cvt_pk_bf16_f32 v{vS}, v{vS}, v{vS}\nv_lshlrev_b32 v{vS}, 16, v{vS}\nv_mul_f32 v{vS}, {f2u(128.0**-0.5):#x}, v{vS}')
            self.rnd_bf16(vS)
            e(f'v_max_f32 v{vMax}, v{vMax}, v{vS}\nds_write_b32 v{vSa}, v{vS}\nv_add_u32 v{vSa}, 0x100, v{vSa}')
            e('s_add_u32 s52, s52, 1')
        e('s_cmp_lt_u32 s52, 16\ns_cbranch_scc1 L_kloop')
        c('---- transition ----')
        e(f'v_add_u32 v{vSa}, -4096, v{vSa}')
        e(f'ds_read_b32 v{vSn}, v{vSa}')
        self.ror_reduce('v_max_f32', vMax)
        self.swap_reduce('v_max_f32', vMax, vT, 16)
        self.swap_reduce('v_max_f32', vMax, vT, 32)
        LOG2E = f2u(1.4426950408889634)
        e(f's_mov_b32 s53, {LOG2E:#x}')
        e(f'v_mul_f32 v{vNM}, {f2u(-1.4426950408889634):#x}, v{vMax}')
        e(f's_lshl_b32 s54, s3, 2\ns_add_u32 s54, s54, {L_MW:#x}\nv_mov_b32 v{vT}, s54')
        e(f'ds_write_b32 v{vT}, v{vMax}')
        e(f's_mov_b64 exec, 1\nv_mov_b32 v{vT}, 1\nds_add_u32 v{vCnt}, v{vT} offset:{7*4}\ns_mov_b64 exec, -1')
        self.stamp(3)
        c('---- V loop ----')
        assert self.edepth <= NS - 1
        vU = 61; vBig = 62
        if self.uq: e(f's_mov_b32 s56, 64\nv_mov_b32 v{vU}, 0\nv_mov_b32 v{vBig}, 64')
        e('L_vloop:')
        advance()
        e('s_cmp_eq_u32 s52, 30\ns_cselect_b32 s42, 0, s42')
        for hf in range(2):
            if self.prof: e('s_memrealtime s[62:63]')
            e(f'v_add_u32 v{vSa}, 0x100, v{vSa}')
            e('s_waitcnt lgkmcnt(0)')
            e(f'v_fma_f32 v{vT}, v{vSn}, s53, v{vNM}')
            e(f'ds_read_b32 v{vSn}, v{vSa}')
            e(f'v_exp_f32 v{vT}, v{vT}')
            halftop(True)
            e(f'v_cvt_pk_bf16_f32 v{vPp}, v{vT}, v{vT}\ns_nop 1')
            for u in range(4):
                if self.uq:
                    if u: e('s_waitcnt lgkmcnt(0)')
                    e(f'v_readfirstlane_b32 s57, v{vU}\ns_add_u32 s56, s56, 1')
                    e(f'ds_read_b32 v{vU}, v{vCnt} offset:24')
                    e(f's_add_u32 s57, s57, s56\ns_cmp_gt_u32 s57, {self.uq}')
                    if self.usync:
                        lq = self.lab('L_q')
                        e(f's_cbranch_scc0 {lq}\nds_write_b32 v{vCnt}, v{vBig} offset:24\n{lq}:')
                for t in range(4):
                    j = 16 * hf + 4 * u + t
                    for i in range(4):
                        e(f'v_and_b32_dpp v{AA+i}, v{vPp}, v{MK+i} row_newbcast:{4*t+u} row_mask:0xf bank_mask:0xf')
                    e('s_nop 1')
                    e(f'v_mfma_f32_16x16x32_bf16 v[{O}:{O+3}], v[{AA}:{AA+3}], v[{RING+4*j}:{RING+4*j+3}], v[{O}:{O+3}]')
                    gate(True); kload(j)
            e('s_add_u32 s52, s52, 1')
        e('s_cmp_lt_u32 s52, 32\ns_cbranch_scc1 L_vloop')
        if self.prof:
            e(f's_memrealtime s[62:63]\ns_add_u32 s96, s26, {W_STAMP+0x10000:#x}\ns_addc_u32 s97, s27, 0\ns_mov_b32 s98, 0x100000\ns_mov_b32 s99, 0x20000')
            e('s_waitcnt lgkmcnt(0)\nv_writelane_b32 v22, s62, 32\nv_writelane_b32 v22, s64, 33')
            e('s_getreg_b32 s54, hwreg(HW_REG_HW_ID)\ns_nop 0\nv_writelane_b32 v22, s54, 34\ns_getreg_b32 s54, hwreg(HW_REG_XCC_ID)\ns_nop 0\nv_writelane_b32 v22, s54, 35')
            e('s_lshl_b32 s54, s2, 2\ns_add_u32 s54, s54, s3\ns_lshl_b32 s54, s54, 8\nv_lshlrev_b32 v23, 2, v1')
            e('buffer_store_dword v22, v23, s[96:99], s54 offen')
        c('---- stream epilogue ----')
        e(f'v_and_b32 v{vA}, 15, v1\nv_lshlrev_b32 v{vA}, 5, v{vA}\nv_lshrrev_b32 v{vT}, 4, v1\nv_lshl_add_u32 v{vA}, v{vT}, 4, v{vA}')
        e(f's_lshl_b32 s54, s3, 9\ns_add_u32 s54, s54, {L_DP:#x}\nv_add_u32 v{vA}, s54, v{vA}')
        e('s_mov_b32 exec_hi, 0')
        e(f'ds_write_b128 v{vA}, v[{O}:{O+3}]')
        e('s_mov_b64 exec, -1')
        self.srd(36, 26, 27, None, W_SIZE)
        e('s_waitcnt lgkmcnt(0)')
        self.stamp(4)
        e('s_barrier')
        e('s_cmp_eq_u32 s3, 0\ns_cbranch_scc1 L_final\ns_cmp_lg_u32 s3, 1\ns_cbranch_scc1 L_end')
        c('---- wave 1: combine o and publish ----')
        e(f'v_lshlrev_b32 v{vA}, 3, v1\nv_add_u32 v{vA}, {L_DP:#x}, v{vA}\nv_mov_b32 v{vB}, {L_FW:#x}')
        e(f'ds_read_b128 v[{Q}:{Q+3}], v{vB}')
        for w in range(4): e(f'ds_read_b64 v[{Q+4+2*w}:{Q+5+2*w}], v{vA} offset:{w*512}')
        e(f's_lshl_b32 s54, s46, 8\ns_add_u32 s54, s54, {W_OX:#x}\nv_lshlrev_b32 v{vT}, 2, v1')
        e('s_waitcnt lgkmcnt(0)')
        e(f'v_mul_f32 v{vA}, v{Q}, v{Q+4}\nv_mul_f32 v{vB}, v{Q}, v{Q+5}')
        for w in range(1, 4): e(f'v_fmac_f32 v{vA}, v{Q+w}, v{Q+4+2*w}\nv_fmac_f32 v{vB}, v{Q+w}, v{Q+5+2*w}')
        e(f'v_cvt_pk_bf16_f32 v{vA}, v{vA}, v{vB}')
        e(f'v_min_u32 v{vA}, 0xfffffffe, v{vA}')
        e(f'buffer_store_dword v{vA}, v{vT}, s[36:39], s54 offen sc1')
        self.stamp(5)
        c('collect o of the 8 batches of this head')
        R = RING
        e(f's_lshl_b32 s54, s45, 11\ns_add_u32 s54, s54, {W_OX:#x}\nv_lshlrev_b32 v{vT}, 4, v1')
        e(f'v_lshrrev_b32 v{vA}, 4, v1\nv_lshl_add_u32 v{vP}, v{vA}, 4, v{vT}\nv_add_u32 v{vP}, {L_OL:#x}, v{vP}')
        e('s_mov_b64 s[56:57], -1\ns_mov_b64 s[58:59], -1\ns_mov_b32 s55, 0')
        e('L_opoll:')
        for k in range(2):
            e(f's_mov_b64 exec, s[{56+2*k}:{57+2*k}]')
            e(f'buffer_load_dwordx4 v[{R+4*k}:{R+4*k+3}], v{vT}, s[36:39], s54 offen offset:{k*1024} sc1')
        e('s_mov_b64 exec, -1\ns_add_u32 s55, s55, 1\ns_waitcnt vmcnt(0)')
        e(f'v_max3_u32 v{vA}, v{R}, v{R+1}, v{R+2}\nv_max3_u32 v{vB}, v{R+4}, v{R+5}, v{R+6}\nv_max_u32 v{vA}, v{vA}, v{R+3}\nv_max_u32 v{vB}, v{vB}, v{R+7}')
        e(f'v_cmp_eq_u32 s[56:57], -1, v{vA}\nv_cmp_eq_u32 s[58:59], -1, v{vB}')
        e('s_cmp_ge_u32 s55, 0x10000\ns_cbranch_scc1 L_ogo\ns_or_b64 vcc, s[56:57], s[58:59]\ns_cbranch_scc1 L_opoll\nL_ogo:')
        e(f'ds_write_b128 v{vP}, v[{R}:{R+3}]\nds_write_b128 v{vP}, v[{R+4}:{R+7}] offset:{4*272}')
        e('s_waitcnt lgkmcnt(0)\ns_barrier')
        self.flush_stamps([5], 200)
        e('s_endpgm')
        c('---- wave 0: final reduction ----')
        e('L_final:')
        R = RING
        e(f'v_and_b32 v{vA}, 7, v1\nv_lshlrev_b32 v{vA}, 4, v{vA}\nv_add_u32 v{vA}, {L_FF:#x}, v{vA}')
        e(f'ds_read_b128 v[{Q}:{Q+3}], v{vA}\nds_read_b64 v[{Q+4}:{Q+5}], v{vCnt} offset:{L_NONCE-L_CNT}')
        e(f's_mul_i32 s54, s44, {W_BSTRIDE:#x}\ns_lshl_b32 s55, s45, 12\ns_add_u32 s54, s54, s55\ns_add_u32 s54, s54, {W_AP:#x}')
        e(f'v_lshlrev_b32 v{vT}, 4, v1')
        self.srd(32, 22, 23, None, 0x4000)
        e('s_mov_b32 s55, 0\ns_waitcnt vmcnt(0) lgkmcnt(0)')
        self.tags_from(Q + 4, MK)
        for i in range(4): e(f's_mov_b64 s[{56+2*i}:{57+2*i}], -1')
        e('s_barrier')
        if 'nob4' not in self.dbg: e('s_barrier')
        e('L_fpoll:')
        for i in range(4):
            e(f's_mov_b64 exec, s[{56+2*i}:{57+2*i}]')
            e(f'buffer_load_dwordx4 v[{R+4*i}:{R+4*i+3}], v{vT}, s[36:39], s54 offen offset:{i*1024} sc1')
        e('s_mov_b64 exec, -1\ns_add_u32 s55, s55, 1')
        for i in range(4):
            e(f's_waitcnt vmcnt({3-i})')
            for k in range(4): e(f'v_xor_b32 v{R+16+4*i+k}, v{R+4*i+k}, v{MK+k}')
            e(f'v_or3_b32 v{vA}, v{R+16+4*i}, v{R+17+4*i}, v{R+18+4*i}\nv_or_b32 v{vA}, v{vA}, v{R+19+4*i}\nv_and_b32 v{vA}, {TMASK:#x}, v{vA}')
            e(f'v_cmp_ne_u32 s[{56+2*i}:{57+2*i}], 0, v{vA}')
        e('s_cmp_ge_u32 s55, 0x10000\ns_cbranch_scc1 L_fgo')
        e('s_or_b64 vcc, s[56:57], s[58:59]\ns_or_b64 s[50:51], s[60:61], s[62:63]\ns_or_b64 vcc, vcc, s[50:51]\ns_cbranch_scc1 L_fpoll\nL_fgo:')
        R = R + 16
        self.colsum(R, 4, vT)
        e('s_waitcnt lgkmcnt(0)')
        for i in range(4): e(f'v_add_f32 v{R+i}, v{Q+i}, v{R+i}')
        e(f'v_cvt_pk_bf16_f32 v{R}, v{R}, v{R+1}\nv_cvt_pk_bf16_f32 v{R+1}, v{R+2}, v{R+3}')
        e(f's_lshl_b32 s54, s2, 6\nv_lshlrev_b32 v{vT}, 3, v1\ns_mov_b64 exec, 0xff')
        e(f'buffer_store_dwordx2 v[{R}:{R+1}], v{vT}, s[32:35], s54 offen')
        e('s_mov_b64 exec, -1')
        self.stamp(6)
        self.flush_stamps([0, 1, 2, 3, 4, 6], 200)
        e('s_endpgm')

    def colsum(self, R, n, vt):
        e = self.e
        for i in range(1, n):
            for k in range(4): e(f'v_add_f32 v{R+k}, v{R+k}, v{R+4*i+k}')
        e('s_nop 1')
        for k in range(4): e(f'v_add_f32_dpp v{R+k}, v{R+k}, v{R+k} row_ror:8 row_mask:0xf bank_mask:0xf')
        for which in (16, 32):
            for k in range(4): e(f'v_mov_b32 v{R+4+k}, v{R+k}')
            e('s_nop 0')
            for k in range(4): e(f'v_permlane{which}_swap_b32 v{R+k}, v{R+4+k}')
            for k in range(4): e(f'v_add_f32 v{R+k}, v{R+k}, v{R+4+k}')

    def tags_from(self, nv, tg):
        self.e(f'v_and_b32 v{tg}, {TMASK:#x}, v{nv}\nv_bfe_u32 v{tg+1}, v{nv}, 16, {TB}\nv_and_b32 v{tg+2}, {TMASK:#x}, v{nv+1}\nv_bfe_u32 v{tg+3}, v{nv+1}, 16, {TB}')
    def untag(self, R, n, tg, t0, t1, mask):
        e = self.e
        for i in range(4 * n): e(f'v_xor_b32 v{R+i}, v{R+i}, v{tg + (i & 3)}')
        e(f'v_or3_b32 v{t0}, v{R}, v{R+1}, v{R+2}\nv_or3_b32 v{t1}, v{R+3}, v{R+4}, v{R+5}')
        i = 6; k = 0
        while i < 4 * n:
            t = (t0, t1)[k & 1]; e(f'v_or3_b32 v{t}, v{t}, v{R+i}, v{R+i+1}'); i += 2; k += 1
        e(f'v_or_b32 v{t0}, v{t0}, v{t1}\nv_and_b32 v{t0}, {mask:#x}, v{t0}\nv_cmp_ne_u32 vcc, 0, v{t0}')

    def aux(self):
        e, c = self.e, self.c
        WP = self.wpol
        vCnt, vT, vT2, vG, vC, vC7, vSt, vTr, vL16, vX = 2, 3, 4, 5, 6, 7, 8, 9, 10, 11
        X = 16
        U = 32
        TG = 64
        XFr = 68
        NV = 28
        c('=== aux waves (4..7) ===')
        e('s_sub_u32 s3, s3, 4')
        e(f'v_mov_b32 v{vCnt}, {L_CNT:#x}')
        e(f'v_lshrrev_b32 v{vG}, 4, v1\nv_and_b32 v{vC}, 15, v1\nv_and_b32 v{vC7}, 7, v1\nv_lshlrev_b32 v{vL16}, 4, v1')
        e(f'v_lshrrev_b32 v{vT}, 5, v1\nv_lshlrev_b32 v{vT}, 11, v{vT}\nv_and_b32 v{vT2}, 31, v1')
        e(f's_lshl_b32 s49, s3, 12\nv_add_u32 v{vT}, s49, v{vT}')
        e(f'v_lshl_add_u32 v{vX}, v{vT2}, 4, v{vT}')
        vWq = 15
        e(f'v_lshrrev_b32 v{vT}, 3, v1\nv_lshlrev_b32 v{vWq}, 13, v{vT}\nv_lshl_add_u32 v{vWq}, v{vC7}, 4, v{vWq}')
        e('s_lshl_b32 s50, s48, 21\ns_lshl_b32 s51, s47, 7\ns_add_u32 s50, s50, s51\ns_sub_u32 s51, 0x800000, s50')
        e('s_lshl_b32 s53, s48, 9')
        e(f's_lshl_b32 s54, s3, 13\ns_add_u32 m0, s54, {L_WQ:#x}\ns_lshl_b32 s55, s3, 19')
        e('s_memrealtime s[62:63]')
        e(f'v_lshrrev_b32 v{vT}, 3, v{vC}\nv_lshlrev_b32 v{vSt}, 6, v{vT}\nv_lshl_add_u32 v{vSt}, v{vG}, 4, v{vSt}\nv_lshl_add_u32 v{vSt}, v{vC7}, 19, v{vSt}')
        e(f'v_mov_b32 v{vT2}, 0')
        e('s_xor_b32 s60, s3, 3\ns_or_b32 s60, s60, s2')
        e('s_waitcnt lgkmcnt(0)')
        self.srd(40, 24, 25, None, 256)
        self.srd(36, 26, 27, None, W_SIZE)
        e('s_cmp_lg_u32 s60, 0\ns_cbranch_scc1 L_a_noz')
        c('workgroup 0: publish the launch nonce: four fields of the clock, field 0 odd, field 1 even')
        e(f's_lshl_b32 s56, s62, 1\ns_or_b32 s56, s56, 1\ns_and_b32 s56, s56, {TMASK:#x}\ns_bfe_u32 s57, s62, {((TB-1) << 16) | (TB-1):#x}\ns_lshl_b32 s57, s57, 17\ns_or_b32 s56, s56, s57')
        e(f's_lshr_b64 s[62:63], s[62:63], {2*TB-2}\ns_and_b32 s57, s62, {TMASK:#x}\ns_bfe_u32 s62, s62, {(TB << 16) | TB:#x}\ns_lshl_b32 s62, s62, 16\ns_or_b32 s57, s57, s62\ns_or_b32 s57, s57, 0x80000000')
        e(f'v_mov_b32 v{TG}, s56\nv_mov_b32 v{TG+1}, s57\ns_mov_b64 exec, 1')
        e(f'buffer_store_dwordx2 v[{TG}:{TG+1}], v{vT2}, s[40:43], 0 offen sc1\ns_mov_b64 exec, -1')
        if self.ddepth:
            c('zero the progress counters (they only steer queue depth)')
            e(f'v_lshlrev_b32 v{vT}, 8, v1\ns_mov_b32 s56, {W_CT:#x}')
            for i in range(4):
                e(f'buffer_store_dword v{vT2}, v{vT}, s[36:39], s56 offen sc1')
                if i < 3: e('s_add_u32 s56, s56, 0x4000')
        e('L_a_noz:')
        if 'preap' in self.dbg:
            e(f's_mul_i32 s56, s44, {W_BSTRIDE:#x}\ns_lshl_b32 s57, s45, 12\ns_add_u32 s56, s56, s57\ns_lshl_b32 s57, s3, 10\ns_add_u32 s56, s56, s57\ns_add_u32 s56, s56, {W_AP:#x}')
            e(f'buffer_load_dwordx4 v[116:119], v{vL16}, s[36:39], s56 offen sc1')
        if 'preq' in self.dbg:
            e('s_cmp_ge_u32 s3, 2\ns_cbranch_scc1 L_a_nopreq')
            e(f's_mul_i32 s56, s44, {W_BSTRIDE:#x}\ns_lshl_b32 s57, s45, 11\ns_add_u32 s56, s56, s57\ns_lshl_b32 s57, s3, 10\ns_add_u32 s56, s56, s57')
            e(f'buffer_load_dwordx4 v[120:123], v{vL16}, s[36:39], s56 offen sc1')
            e('L_a_nopreq:')
        if 'pre' in self.dbg or 'pre1' in self.dbg:
            e('s_cmp_ge_u32 s3, 2\ns_cbranch_scc1 L_a_nopre')
            e(f's_mul_i32 s56, s44, {W_BSTRIDE:#x}\ns_lshl_b32 s57, s45, 11\ns_add_u32 s56, s56, s57\ns_lshl_b32 s57, s3, 10\ns_add_u32 s56, s56, s57')
            if 'pre1' in self.dbg: e('s_mov_b64 exec, 1')
            e(f'buffer_load_dwordx4 v[120:123], v{vL16}, s[36:39], s56 offen sc1')
            e(f's_lshl_b32 s56, s46, 8\ns_lshl_b32 s57, s3, 7\ns_add_u32 s56, s56, s57')
            if 'pre1' in self.dbg: e('s_mov_b64 exec, 0xff\ns_add_u32 s56, s56, 0x10000')
            e(f'buffer_load_dwordx4 v[124:127], v{vSt}, s[36:39], s56 offen sc1')
            if 'pre1' in self.dbg: e('s_mov_b64 exec, -1')
            e('L_a_nopre:')
        self.srd(28, 4, 5, None, 0x4000)
        self.srd(32, 10, 11, 50, size_sgpr=51)
        for i in range(4): e(f'buffer_load_dwordx4 v[{X+4*i}:{X+4*i+3}], v{vX}, s[28:31], 0 offen offset:{i*512}')
        e(f'buffer_load_dwordx4 v[{XFr}:{XFr+3}], v{vX}, s[28:31], s53 offen')
        for i in range(8):
            e(f'buffer_load_dwordx4 v{vWq}, s[32:35], s55 offen {WP} lds')
            if i < 7: e(f's_add_u32 m0, m0, 0x400\ns_add_u32 s55, s55, 0x10000\ns_nop 0')
        c('a=2: clear own OX slot with the sentinel')
        e('s_cmp_lg_u32 s3, 2\ns_cbranch_scc1 L_a_nocl')
        for k in range(4): e(f'v_mov_b32 v{U+k}, -1')
        e(f's_lshl_b32 s54, s46, 8\ns_add_u32 s54, s54, {W_OX:#x}\ns_mov_b64 exec, 0xffff')
        e(f'buffer_store_dwordx4 v[{U}:{U+3}], v{vL16}, s[36:39], s54 offen sc1\ns_mov_b64 exec, -1\ns_nop 0')
        e('L_a_nocl:')
        e(f's_lshl_b32 s61, s44, 14\ns_lshl_b32 s55, s3, 12\ns_add_u32 s61, s61, s55\ns_lshl_b32 s55, s45, 7\ns_add_u32 s61, s61, s55\ns_add_u32 s61, s61, {W_AP:#x}')
        self.stamp(14)
        c('LN stats')
        e('s_waitcnt vmcnt(9)')
        self.stamp(15)
        for i in range(16):
            e(f'v_lshlrev_b32 v{U+2*i}, 16, v{X+i}\nv_and_b32 v{U+2*i+1}, 0xffff0000, v{X+i}')
        S0 = 12
        e(f'v_pk_add_f32 v[{S0}:{S0+1}], v[{U}:{U+1}], v[{U+2}:{U+3}]\nv_pk_add_f32 v[{S0+2}:{S0+3}], v[{U+4}:{U+5}], v[{U+6}:{U+7}]')
        for i in range(4, 16):
            a = S0 + 2 * (i & 1)
            e(f'v_pk_add_f32 v[{a}:{a+1}], v[{a}:{a+1}], v[{U+2*i}:{U+2*i+1}]')
        e(f'v_pk_add_f32 v[{S0}:{S0+1}], v[{S0}:{S0+1}], v[{S0+2}:{S0+3}]\nv_add_f32 v{S0}, v{S0}, v{S0+1}')
        self.ror_reduce('v_add_f32', S0)
        self.swap_reduce('v_add_f32', S0, vT, 16)
        M = X
        e(f'v_mul_f32 v{M}, {f2u(-1.0/1024):#x}, v{S0}\nv_mov_b32 v{M+1}, v{M}')
        for i in range(16): e(f'v_pk_add_f32 v[{U+2*i}:{U+2*i+1}], v[{U+2*i}:{U+2*i+1}], v[{M}:{M+1}]')
        e(f'v_pk_mul_f32 v[{S0}:{S0+1}], v[{U}:{U+1}], v[{U}:{U+1}]\nv_pk_mul_f32 v[{S0+2}:{S0+3}], v[{U+2}:{U+3}], v[{U+2}:{U+3}]')
        for i in range(2, 16):
            a = S0 + 2 * (i & 1)
            e(f'v_pk_fma_f32 v[{a}:{a+1}], v[{U+2*i}:{U+2*i+1}], v[{U+2*i}:{U+2*i+1}], v[{a}:{a+1}]')
        e(f'v_pk_add_f32 v[{S0}:{S0+1}], v[{S0}:{S0+1}], v[{S0+2}:{S0+3}]\nv_add_f32 v{S0}, v{S0}, v{S0+1}')
        self.ror_reduce('v_add_f32', S0)
        self.swap_reduce('v_add_f32', S0, vT, 16)
        RR, RC = S0, S0 + 1
        e(f'v_mul_f32 v{RR}, {f2u(1.0/1024):#x}, v{S0}'); self.rnd_bf16(RR)
        e(f'v_add_f32 v{RR}, {f2u(1e-5):#x}, v{RR}'); self.rnd_bf16(RR)
        e(f'v_sqrt_f32 v{RR}, v{RR}\ns_nop 0'); self.rnd_bf16(RR)
        e(f'v_rcp_f32 v{RC}, v{RR}')
        self.rnd_bf16(M)
        def norm(src, n):
            for i in range(n):
                a, b2, q0, q1 = U, U + 1, U + 2, U + 3
                e(f'v_lshlrev_b32 v{a}, 16, v{src+i}\nv_and_b32 v{b2}, 0xffff0000, v{src+i}')
                e(f'v_add_f32 v{a}, v{a}, v{M}\nv_add_f32 v{b2}, v{b2}, v{M}')
                e(f'v_cvt_pk_bf16_f32 v{b2}, v{a}, v{b2}')
                e(f'v_lshlrev_b32 v{a}, 16, v{b2}\nv_and_b32 v{b2}, 0xffff0000, v{b2}')
                e(f'v_mul_f32 v{q0}, v{a}, v{RC}\nv_mul_f32 v{q1}, v{b2}, v{RC}')
                e(f'v_fma_f32 v{a}, -v{q0}, v{RR}, v{a}\nv_fma_f32 v{b2}, -v{q1}, v{RR}, v{b2}')
                e(f'v_fmac_f32 v{q0}, v{a}, v{RC}\nv_fmac_f32 v{q1}, v{b2}, v{RC}')
                e(f'v_cvt_pk_bf16_f32 v{src+i}, v{q0}, v{q1}')
        e('s_waitcnt vmcnt(8)')
        e('s_cmp_lg_u32 s3, 3\ns_cbranch_scc1 L_a_nn1')
        if 'nonon' in self.dbg: e(f'v_mov_b32 v{NV}, 0x01230457\nv_mov_b32 v{NV+1}, 0x89ab0cde')
        else: e(f'buffer_load_dwordx2 v[{NV}:{NV+1}], v{vT2}, s[40:43], 0 offen sc1')
        e('L_a_nn1:')
        norm(XFr, 4)
        e(f's_lshl_b32 s54, s3, 10\ns_add_u32 s54, s54, {L_XF:#x}\nv_add_u32 v{vT}, s54, v{vL16}')
        e(f'ds_write_b128 v{vT}, v[{XFr}:{XFr+3}]')
        e(f'v_bfe_u32 v{vT}, v1, 2, 2\nv_lshl_add_u32 v{vX}, v{vG}, 3, v{vT}')
        vT3 = 15; vBa = 14; vCc = 13
        e(f'v_and_b32 v{vCc}, 3, v1\nv_lshlrev_b32 v{vCc}, 3, v{vCc}')
        e(f'v_lshl_add_u32 v{vTr}, v{vX}, 8, v{vCc}\ns_lshl_b32 s54, s3, 6\nv_add_u32 v{vTr}, s54, v{vTr}')
        e(f'v_lshl_add_u32 v{vT3}, v{vX}, 7, v{vCc}\nv_add_u32 v{vT3}, s54, v{vT3}')
        e('s_mov_b32 s58, 0xff00ff00\ns_mov_b32 s59, 0xff00ff00\ns_mov_b32 s100, 0\ns_mov_b32 s101, -1\ns_mov_b32 s49, ' + hex(0xffffffff ^ TMASK))
        e(f'v_lshlrev_b32 v{vBa}, 9, v{vC7}\nv_lshl_add_u32 v{vBa}, v{vG}, 4, v{vBa}\nv_add_u32 v{vBa}, {L_XF:#x}, v{vBa}')
        e('s_waitcnt vmcnt(0)')
        e('s_cmp_lg_u32 s3, 3\ns_cbranch_scc1 L_a_nn2\ns_mov_b32 s57, 0')
        e('L_npoll:')
        e(f'v_readfirstlane_b32 s56, v{NV+1}\ns_cmp_lg_u32 s56, 0\ns_cbranch_scc1 L_ngo')
        e(f'buffer_load_dwordx2 v[{NV}:{NV+1}], v{vT2}, s[40:43], 0 offen sc1')
        e('s_add_u32 s57, s57, 1\ns_waitcnt vmcnt(0)\ns_cmp_lt_u32 s57, 0x10000\ns_cbranch_scc1 L_npoll\nL_ngo:')
        e(f'ds_write_b64 v{vCnt}, v[{NV}:{NV+1}] offset:{L_NONCE-L_CNT}')
        e('L_a_nn2:')
        self.arrive(0, vCnt, vT, 56)
        self.lds_wait(0, 4, vCnt, vT, 56)
        self.stamp(8)
        e(f'ds_read_b64 v[{NV}:{NV+1}], v{vCnt} offset:{L_NONCE-L_CNT}')
        BB = 80; AW = 96; D0 = 72; D1 = 76
        B1 = 80; A1 = 112
        for kk in range(8): e(f'ds_read_b128 v[{B1+4*kk}:{B1+4*kk+3}], v{vBa} offset:{kk*64}')
        def tile128(base, va=vTr):
            for ct in range(2):
                for kk in range(4):
                    for hh in range(2):
                        r = AW + (ct * 4 + kk) * 4 + hh * 2
                        e(f'ds_read_b64_tr_b16 v[{r}:{r+1}], v{va} offset:{base + kk*8192 + hh*1024 + ct*32}')
                if ct == 0: e('s_waitcnt lgkmcnt(6)')
        def mm128(acc=False):
            for kk in range(4):
                for ct in range(2):
                    d = (D0, D1)[ct]; r = AW + (ct * 4 + kk) * 4
                    cc = '0' if kk == 0 and not acc else f'v[{d}:{d+3}]'
                    e(f'v_mfma_f32_16x16x32_bf16 v[{d}:{d+3}], v[{r}:{r+3}], v[{BB+4*kk}:{BB+4*kk+3}], {cc}')
        def merge_tag(da, db, tg, bits, smask):
            for i in range(4): e(f'v_cndmask_b32 v{da+i}, v{da+i}, v{db+i}, s[58:59]')
            for i in range(4): e(f'v_add_u32 v{da+i}, {1 << (bits-1):#x}, v{da+i}')
            for i in range(4): e(f'v_and_or_b32 v{da+i}, v{da+i}, s{smask}, v{tg+i}')
        def pair256(second, tg):
            for mat in range(2):
                for kk in range(8):
                    for hh in range(2):
                        r = A1 + (mat * 8 + kk) * 4 + hh * 2
                        e(f'ds_read_b64_tr_b16 v[{r}:{r+1}], v{vT3} offset:{mat*second + kk*4096 + hh*512}')
                    if kk % 4 == 3: e('s_waitcnt lgkmcnt(0)')
            for kk in range(8):
                for mat in range(2):
                    d = (D0, D1)[mat]; r = A1 + (mat * 8 + kk) * 4
                    cc = '0' if kk == 0 else f'v[{d}:{d+3}]'
                    e(f'v_mfma_f32_16x16x32_bf16 v[{d}:{d+3}], v[{r}:{r+3}], v[{B1+4*kk}:{B1+4*kk+3}], {cc}')
            e('s_nop 7')
            merge_tag(D0, D1, tg, 8, 60)
        def gpoll(name, n, emit_loads, sleep, tg, mask):
            e(f's_mov_b32 s57, 0\n{name}:')
            emit_loads()
            e(f's_add_u32 s57, s57, 1\ns_waitcnt vmcnt(0)')
            self.untag(U, n, tg, vT, vT2, mask)
            e(f's_cbranch_vccz {name}_go')
            if sleep: e(f's_sleep {sleep}')
            e(f's_cmp_lt_u32 s57, 0x10000\ns_cbranch_scc1 {name}\n{name}_go:')
        e('s_waitcnt lgkmcnt(0)')
        self.tags_from(NV, TG)
        TC = 20; TP = 24
        e(f's_mov_b32 s60, 0xffffff00\ns_mov_b32 s50, 0xaaaaaaaa\ns_mov_b32 s51, 0xaaaaaaaa\ns_mov_b32 s52, 0xffff0000\ns_mov_b32 s53, 0xffff0000')
        e(f'v_cndmask_b32 v{TC+3}, v{NV}, v{NV+1}, s[50:51]\nv_cndmask_b32 v{TP+3}, v{NV}, v{NV+1}, s[52:53]')
        for T in (TC, TP):
            e(f'v_and_b32 v{T}, 0xff, v{T+3}\nv_bfe_u32 v{T+1}, v{T+3}, 8, 8\nv_bfe_u32 v{T+2}, v{T+3}, 16, 8\nv_lshrrev_b32 v{T+3}, 24, v{T+3}')
        e('s_cmp_ge_u32 s3, 2\ns_cbranch_scc1 L_a_b1')
        c('q partial (a = 0,1): 32 columns each')
        assert L_WQ == 0
        pair256(32, TP)
        e(f's_lshl_b32 s54, s46, 8\ns_lshl_b32 s55, s3, 7\ns_add_u32 s54, s54, s55')
        e(f'buffer_store_dwordx4 v[{D0}:{D0+3}], v{vSt}, s[36:39], s54 offen {self.qpol} ')
        self.stamp(9)
        e('s_cmp_lg_u32 s3, 0\ns_cbranch_scc1 L_a_b1')
        c('wave a=0: gather q')
        e(f's_mul_i32 s54, s44, {W_BSTRIDE:#x}\ns_lshl_b32 s55, s45, 11\ns_add_u32 s54, s54, s55')
        if self.qj: self.lds_wait(12, 1, vCnt, vT, 56, sleep=2)
        def ql():
            for i in range(2): e(f'buffer_load_dwordx4 v[{U+4*i}:{U+4*i+3}], v{vL16}, s[36:39], s54 offen offset:{i*1024} {self.qpol}')
        gpoll('L_qpoll', 2, ql, self.qsleep, TC, 0xff)
        for k in range(4): e(f'v_permlane32_swap_b32 v{U+k}, v{U+4+k}')
        for k in range(4): e(f'v_add_f32 v{U+k}, v{U+k}, v{U+4+k}')
        for k in range(4): e(f'v_mov_b32 v{U+4+k}, v{U+k}')
        e(f'v_lshrrev_b32 v{vT}, 5, v1\nv_lshlrev_b32 v{vT}, 7, v{vT}\nv_lshl_add_u32 v{vT}, v{vC}, 3, v{vT}\nv_add_u32 v{vT}, {L_QL:#x}, v{vT}')
        for k in range(4): e(f'v_permlane16_swap_b32 v{U+k}, v{U+4+k}')
        for k in range(4): e(f'v_add_f32 v{U+k}, v{U+k}, v{U+4+k}')
        e(f'v_cvt_pk_bf16_f32 v{U}, v{U}, v{U+1}\nv_cvt_pk_bf16_f32 v{U+1}, v{U+2}, v{U+3}')
        e(f'ds_write_b64 v{vT}, v[{U}:{U+1}]')
        e('L_a_b1:')
        e(f's_lshl_b32 s54, s3, 5\ns_sub_u32 s54, {L_GATE:#x}, s54\nv_add_u32 v{vT3}, s54, v{vT3}')
        e('s_waitcnt lgkmcnt(0)')
        self.stamp(10)
        e('s_barrier')
        c('FFN stage 1')
        e('s_cmp_ge_u32 s46, 224\ns_cbranch_scc1 L_a_s1done')
        if self.skip >= 3: e('s_branch L_a_s1done')
        pair256(0x8000, TC)
        e(f's_lshl_b32 s54, s46, 12\ns_lshl_b32 s55, s3, 10\ns_add_u32 s54, s54, s55\ns_add_u32 s54, s54, {W_GU:#x}')
        e(f'buffer_store_dwordx4 v[{D0}:{D0+3}], v{vL16}, s[36:39], s54 offen {self.fpol}')
        e('L_a_s1done:')
        self.arrive(2, vCnt, vT, 56)
        self.lds_wait(2, 4, vCnt, vT, 56)
        c('wo tile DMA')
        e('s_lshl_b32 s50, s45, 18\ns_lshl_b32 s51, s44, 8\ns_add_u32 s50, s50, s51\ns_sub_u32 s51, 0x800000, s50')
        self.srd(32, 12, 13, 50, size_sgpr=51)
        e(f'v_lshlrev_b32 v{vT}, 11, v{vG}\nv_lshl_add_u32 v{vT}, v{vC}, 4, v{vT}')
        e(f's_lshl_b32 s54, s3, 13\ns_add_u32 m0, s54, {L_WO:#x}\ns_lshl_b32 s55, s3, 16\ns_nop 0')
        for i in range(8 if self.skip < 4 else 0):
            e(f'buffer_load_dwordx4 v{vT}, s[32:35], s55 offen {WP} lds')
            if i < 7: e(f's_add_u32 m0, m0, 0x400\ns_add_u32 s55, s55, 0x2000\ns_nop 0')
        c('down tile operands')
        e(f'v_add_u32 v{vT3}, {L_DOWN:#x}, v{vTr}')
        tile128(0, vT3)
        e(f'v_lshrrev_b32 v{vT}, 5, v1\nv_lshlrev_b32 v{vBa}, 8, v{vT}\nv_lshl_add_u32 v{vBa}, v{vC7}, 5, v{vBa}\nv_and_b32 v{vT}, 1, v{vG}\nv_lshl_add_u32 v{vBa}, v{vT}, 4, v{vBa}\nv_add_u32 v{vBa}, {L_HL:#x}, v{vBa}')
        e('s_waitcnt lgkmcnt(0)')
        for ct in range(2):
            for i in range(4):
                r = AW + (ct * 4 + 3) * 4 + i
                e(f'v_cndmask_b32 v{r}, v{r}, 0, s[100:101]')
        e('s_cmp_lg_u32 s3, 0\ns_cbranch_scc1 L_a_hw')
        c('wave a=0: reduce one 16-column piece of g,u -> h ; then fetch the 7 pieces this workgroup needs')
        if self.skip >= 2: e('s_branch L_a_hdone')
        e('s_cmp_ge_u32 s46, 224\ns_cbranch_scc1 L_a_s15done')
        if self.gwait: self.lds_wait(8, self.gwait, vCnt, vT, 56, sleep=8)
        e(f's_lshl_b32 s54, s47, 14\ns_lshl_b32 s55, s48, 10\ns_add_u32 s54, s54, s55\ns_add_u32 s54, s54, {W_GU:#x}')
        e('s_add_u32 s55, s54, 0x1000\ns_add_u32 s50, s54, 0x2000\ns_add_u32 s51, s54, 0x3000')
        def gl():
            for k, so in enumerate((54, 55, 50, 51)): e(f'buffer_load_dwordx4 v[{U+4*k}:{U+4*k+3}], v{vL16}, s[36:39], s{so} offen {self.fpol}')
        gpoll('L_gpoll', 4, gl, 32, TC, 0xff)
        e(f'v_lshlrev_b32 v{vT}, 6, v{vC7}\nv_lshl_add_u32 v{vT}, v{vG}, 4, v{vT}\ns_lshl_b32 s54, s46, 9\ns_add_u32 s54, s54, {W_H:#x}')
        for i in range(1, 4):
            for k in range(4): e(f'v_add_f32 v{U+k}, v{U+k}, v{U+4*i+k}')
        for k in range(4): self.rnd_bf16(U + k)
        e('s_nop 1')
        for k in range(4): e(f'v_mul_f32_dpp v{U+4+k}, v{U+k}, v{U+k} row_ror:8 row_mask:0xf bank_mask:0xf')
        for k in range(4): self.rnd_bf16(U + 4 + k)
        for k in range(4): e(f'v_or_b32 v{U+4+k}, v{U+4+k}, v{TG+k}')
        e('s_not_b64 exec, s[58:59]')
        e(f'buffer_store_dwordx4 v[{U+4}:{U+7}], v{vT}, s[36:39], s54 offen {self.fpol}\ns_mov_b64 exec, -1')
        e('L_a_s15done:')
        if self.hwait: self.lds_wait(8, self.hwait, vCnt, vT, 56, sleep=8)
        e(f's_mul_i32 s54, s45, {7*512}\ns_add_u32 s54, s54, {W_H:#x}\nv_and_b32 v{vCc}, 0x1ff, v{vL16}')
        def hl():
            for k in range(3): e(f'buffer_load_dwordx4 v[{U+4*k}:{U+4*k+3}], v{vL16}, s[36:39], s54 offen offset:{k*1024} {self.fpol}')
            e(f'buffer_load_dwordx4 v[{U+12}:{U+15}], v{vCc}, s[36:39], s54 offen offset:3072 {self.fpol}')
        gpoll('L_hpoll', 4, hl, 32, TG, TMASK)
        e(f'v_lshlrev_b32 v{vT}, 3, v1\nv_add_u32 v{vT}, {L_HL:#x}, v{vT}')
        for k in range(4):
            e(f'v_cvt_pk_bf16_f32 v{U+4*k}, v{U+4*k}, v{U+4*k+1}\nv_cvt_pk_bf16_f32 v{U+4*k+1}, v{U+4*k+2}, v{U+4*k+3}')
            e(f'ds_write_b64 v{vT}, v[{U+4*k}:{U+4*k+1}] offset:{k*512}')
        e('L_a_hdone:')
        self.arrive(3, vCnt, vT, 56)
        e('L_a_hw:')
        self.lds_wait(3, 1, vCnt, vT, 56, sleep=8)
        for kk in range(4): e(f'ds_read_b128 v[{BB+4*kk}:{BB+4*kk+3}], v{vBa} offset:{kk*512}')
        e('s_waitcnt lgkmcnt(0)')
        mm128()
        e('s_waitcnt vmcnt(0)')
        self.arrive(4, vCnt, vT, 56)
        self.lds_wait(4, 4, vCnt, vT, 56)
        self.stamp(11)
        c('preload wo operands')
        tile128(L_WO)
        e('s_cmp_eq_u32 s3, 1\ns_cbranch_scc1 L_a_stats\ns_cmp_eq_u32 s3, 2\ns_cbranch_scc1 L_a_ctl\ns_cmp_lg_u32 s3, 0\ns_cbranch_scc1 L_a_b2')
        c('wave a=0: residual input')
        e(f's_lshl_b32 s54, s2, 6\nv_lshlrev_b32 v{vT}, 3, v{vC7}')
        e(f'buffer_load_dwordx2 v[{U}:{U+1}], v{vT}, s[28:31], s54 offen')
        e(f'v_lshlrev_b32 v{vT}, 4, v{vC7}\nv_add_u32 v{vT}, {L_FF:#x}, v{vT}\ns_waitcnt vmcnt(0)')
        e(f'v_lshlrev_b32 v{U+4}, 16, v{U}\nv_and_b32 v{U+5}, 0xffff0000, v{U}\nv_lshlrev_b32 v{U+6}, 16, v{U+1}\nv_and_b32 v{U+7}, 0xffff0000, v{U+1}')
        e(f'ds_write_b128 v{vT}, v[{U+4}:{U+7}]')
        self.stamp(12)
        e('s_branch L_a_b2')
        c('wave a=2: queue-depth controller (rank of this workgroup at each checkpoint)')
        e('L_a_ctl:')
        if self.ddepth:
            e(f's_bfe_u32 s55, s2, 0x10003\ns_bfe_u32 s54, s2, 0x20006\ns_lshl_b32 s54, s54, 1\ns_or_b32 s55, s55, s54\ns_lshl_b32 s55, s55, 13\ns_add_u32 s55, s55, {W_CT:#x}')
            tab = 0
            for r, dty in enumerate(self.table): tab |= dty << (4 * r)
            e(f's_mov_b32 s50, {tab & 0xffffffff:#x}\ns_mov_b32 s51, {tab >> 32:#x}')
            cps = self.cps or list(range(self.cstart, self.usw - 1, self.cper))
            e(f's_mov_b32 s57, 0\ns_mov_b32 s53, 0\nv_mov_b32 v{vT2}, 0\ns_mov_b64 exec, 1')
            for cp in cps + ([self.fcp] if self.fcp else []):
                fin = self.fcp and cp == self.fcp
                lw = self.lab('L_ctl'); lg = self.lab('L_ctl_go')
                e(f'{lw}:')
                e(f's_cmp_ge_u32 s57, 0x100000\ns_cbranch_scc1 L_ctl_done')
                e(f'ds_read_b32 v{vT}, v{vCnt} offset:32\ns_add_u32 s57, s57, 1\ns_waitcnt lgkmcnt(0)\nv_readfirstlane_b32 s56, v{vT}')
                e(f's_cmp_ge_u32 s56, {cp}\ns_cbranch_scc1 {lg}\ns_sleep {self.csleep}\ns_branch {lw}')
                e(f'{lg}:')
                e(f's_add_u32 s54, s55, {cp << 8:#x}\nv_mov_b32 v{vT}, 1')
                if 'noat' not in self.dbg: e(f'buffer_atomic_add v{vT}, v{vT2}, s[36:39], s54 offen sc0 sc1')
                if fin:
                    ut = 0
                    for r, dty in enumerate(self.utab): ut |= dty << (4 * r)
                    e(f's_mov_b32 s50, {ut & 0xffffffff:#x}\ns_mov_b32 s51, {ut >> 32:#x}')
                e(f's_waitcnt vmcnt(0)\nv_readfirstlane_b32 s54, v{vT}\ns_and_b32 s54, s54, 30\ns_lshl_b32 s54, s54, 1\ns_lshr_b64 s[62:63], s[50:51], s54\ns_and_b32 s54, s62, 15')
                if fin:
                    e(f'v_mov_b32 v{vT}, s54\nds_max_u32 v{vCnt}, v{vT} offset:24')
                else:
                    if self.leak:
                        e(f's_lshr_b32 s53, s53, {self.leak}\ns_add_u32 s54, s54, s53\ns_min_u32 s54, s54, 4\ns_mov_b32 s53, s54')
                    e(f's_add_u32 s56, s54, {cp + 2}\ns_cmp_eq_u32 s54, 0\ns_cselect_b32 s56, 0, s56\nv_mov_b32 v{vT}, s56')
                    e(f'ds_write_b32 v{vCnt}, v{vT} offset:20')
            e('L_ctl_done:\ns_mov_b64 exec, -1')
        e('s_branch L_a_b2')
        c('wave a=1: softmax statistics')
        e('L_a_stats:')
        self.lds_wait(7, 4, vCnt, vT, 56, sleep=32)
        SV = 128
        e(f'v_mov_b32 v{vT}, {L_MW:#x}\nds_read_b128 v[{U}:{U+3}], v{vT}')
        vSl = vL16
        for i in range(16):
            e(f'ds_read_b128 v[{SV+4*i}:{SV+4*i+3}], v{vSl} offset:{L_S + i*1024}')
            if i % 8 == 7: e('s_waitcnt lgkmcnt(0)')
        e(f'v_max3_f32 v{vT}, v{U}, v{U+1}, v{U+2}\nv_max_f32 v{vT}, v{vT}, v{U+3}')
        e(f'v_mul_f32 v{vT}, {f2u(-1.4426950408889634):#x}, v{vT}\ns_mov_b32 s53, {f2u(1.4426950408889634):#x}')
        for i in range(64): e(f'v_fma_f32 v{SV+i}, v{SV+i}, s53, v{vT}')
        for i in range(64): e(f'v_exp_f32 v{SV+i}, v{SV+i}')
        for k in range(4): e(f'v_fma_f32 v{U+k}, v{U+k}, s53, v{vT}')
        for k in range(4): e(f'v_exp_f32 v{U+k}, v{U+k}')
        n = 32
        while n >= 2:
            for i in range(0, n, 2): e(f'v_pk_add_f32 v[{SV+i}:{SV+i+1}], v[{SV+i}:{SV+i+1}], v[{SV+n+i}:{SV+n+i+1}]')
            n //= 2
        e(f'v_add_f32 v{SV}, v{SV}, v{SV+1}')
        self.ror_reduce('v_add_f32', SV)
        self.swap_reduce('v_add_f32', SV, vT, 16)
        self.swap_reduce('v_add_f32', SV, vT, 32)
        e(f'v_rcp_f32 v{SV}, v{SV}\ns_nop 0')
        for k in range(4): e(f'v_mul_f32 v{U+k}, v{U+k}, v{SV}')
        e(f'v_mov_b32 v{vT}, {L_FW:#x}\nds_write_b128 v{vT}, v[{U}:{U+3}]')
        e('L_a_b2:')
        e(f'v_mul_u32_u24 v{vBa}, 272, v{vC7}\nv_lshl_add_u32 v{vBa}, v{vG}, 4, v{vBa}\nv_add_u32 v{vBa}, {L_OL:#x}, v{vBa}')
        e('s_waitcnt lgkmcnt(0)')
        e('s_barrier')
        e('s_barrier')
        for kk in range(4): e(f'ds_read_b128 v[{BB+4*kk}:{BB+4*kk+3}], v{vBa} offset:{kk*64}')
        e('s_waitcnt lgkmcnt(0)')
        mm128(True)
        e('s_nop 7')
        merge_tag(D0, D1, TG, TB, 49)
        e(f'buffer_store_dwordx4 v[{D0}:{D0+3}], v{vSt}, s[36:39], s61 offen sc1')
        if self.stamps:
            self.stamp(13)
            e('s_cmp_lg_u32 s3, 0\ns_cbranch_scc1 L_end')
            self.flush_stamps([8, 9, 10, 11, 12, 13, 14, 15], 200)

if __name__ == '__main__':
    import argparse
    ap = argparse.ArgumentParser()
    ap.add_argument('out'); ap.add_argument('--depth', type=int, default=5); ap.add_argument('--pdepth', type=int, default=5)
    ap.add_argument('--stamps', action='store_true'); ap.add_argument('--wpol', default='nt')
    ap.add_argument('--edepth', type=int, default=31); ap.add_argument('--usw', type=int, default=28); ap.add_argument('--ddepth', type=int, default=0); ap.add_argument('--thr', type=int, default=48); ap.add_argument('--cstart', type=int, default=6); ap.add_argument('--dbg', default=''); ap.add_argument('--cper', type=int, default=4); ap.add_argument('--table', default='0000000000112234'); ap.add_argument('--qsleep', type=int, default=0); ap.add_argument('--gwait', type=int, default=2); ap.add_argument('--hwait', type=int, default=4); ap.add_argument('--csleep', type=int, default=4); ap.add_argument('--burst', type=int, default=0); ap.add_argument('--xs', default='sc1'); ap.add_argument('--qj', type=int, default=0); ap.add_argument('--qpol', default='sc1'); ap.add_argument('--fpol', default='sc1'); ap.add_argument('--xl', default='sc1'); ap.add_argument('--prio', type=int, default=0); ap.add_argument('--prof', action='store_true'); ap.add_argument('--skip', type=int, default=0); ap.add_argument('--pmask', type=lambda x: int(x, 16), default=0); ap.add_argument('--ppol', default='none'); ap.add_argument('--cps', default=''); ap.add_argument('--fcp', type=int, default=0); ap.add_argument('--utab', default='0000000000000000'); ap.add_argument('--uq', type=int, default=0); ap.add_argument('--usync', type=int, default=0); ap.add_argument('--leak', type=int, default=0); ap.add_argument('--amap', default='12,14'); ap.add_argument('--bmap', default=''); ap.add_argument('--xr', default='')
    a = ap.parse_args()
    open(a.out, 'w').write(Gen(a.depth, a.pdepth, a.stamps, a.wpol.replace('none', ''), a.edepth, a.usw, a.prio, a.prof, a.skip, a.ddepth, a.thr, a.cstart, a.dbg, a.cper, a.table, a.qsleep, a.gwait, a.hwait, a.csleep, a.burst, a.xs, a.xl, a.qj, a.qpol, a.fpol, a.pmask, a.ppol, a.cps, a.fcp, a.utab, a.uq, a.usync, a.leak, a.amap, a.bmap, a.xr).build())
```

```python
import sys, struct
KN = 'parallel_sum__mha_block_cached__glu_gated_bilinear__decode_kernel'

def f2u(x): return struct.unpack('<I', struct.pack('<f', x))[0]

L_WQ = 0x00000
L_S = 0x00000
L_GATE = 0x08000
L_WO = 0x08000
L_UP = 0x10000
L_DOWN = 0x18000
L_XQ = 0x20000
L_XF = 0x20800
L_OL = 0x20800
L_QL = 0x21800
L_HL = 0x21900
L_DP = 0x22100
L_MW = 0x22900
L_FW = 0x22910
L_FF = 0x22920
L_CNT = 0x229a0
L_ZERO = 0x229e0
L_NONCE = 0x22a20
LDS_SIZE = 0x22a80
W_BSTRIDE = 0x80000
W_QP = 0x00000
W_AP = 0x20000
W_GU = 0x400000
W_OX = 0x500000
W_H = 0x520000
W_CT = 0x540000
W_CL = 0x550000
W_SIZE = 0x600000
W_STAMP = 0x20000000

TB = 12
TMASK = (1 << TB) - 1

class Gen:
    def __init__(self, depth=5, pdepth=5, stamps=False, wpol='nt', edepth=31, usw=28, prio=0, prof=False, skip=0, ddepth=0, thr=48, cstart=6, dbg='', cper=4, table='0000000000112234', qsleep=0, gwait=2, hwait=4, csleep=4, burst=0, xs='sc1', xl='sc1', qj=0, qpol='sc1', fpol='sc1', pmask=0, ppol='', cps='', fcp=0, utab='', uq=0, usync=0, leak=0, amap='12,14', bmap='', xr='', dpat='', ppat='', epat='', ltab='', lq=2, fp2=0, gdepth='', wod=0, wqd=0, peel=-1):
        self.peel = peel
        self.wod = wod; self.wqd = wqd
        self.gdepth = [int(x) for x in gdepth]
        self.fp2 = fp2
        self.ltab = [int(ch, 16) for ch in ltab]; self.lq = lq
        self.dpat = [int(x) for x in dpat] or [depth]; self.ppat = [int(x) for x in ppat] or [pdepth]; self.epat = [int(x, 16) for x in epat] or [ddepth]; self.pc = 0
        self.bmap = [int(x) for x in bmap.split(',')] if bmap else None; self.xr = [int(x, 0) for x in xr.split(',')] if xr else None
        self.pw, self.pu = [int(x) for x in amap.split(',')]
        self.cps = [int(x) for x in cps.split(',')] if cps else None; self.fcp = fcp; self.utab = [int(ch, 16) for ch in utab]; self.uq = uq; self.usync = usync; self.leak = leak
        self.pmask = pmask; self.ppol = ppol.replace('+', ' ').replace('none', '')
        self.qj = qj; self.qpol = qpol.replace('+', ' '); self.fpol = fpol.replace('+', ' ')
        self.xs = xs.replace('+', ' '); self.xl = xl.replace('+', ' ')
        self.burst = burst
        self.qsleep = qsleep; self.gwait = gwait; self.hwait = hwait; self.csleep = csleep
        self.cper = cper; self.table = [int(ch, 16) for ch in table]
        self.dbg = set(dbg.split(','))
        self.skip = skip; self.ddepth = ddepth; self.thr = thr; self.cstart = cstart
        self.edepth = edepth; self.usw = usw; self.prio = prio; self.prof = prof
        self.L = []; self.depth = depth; self.pdepth = pdepth; self.stamps = stamps; self.uid = 0; self.wpol = wpol
    def e(self, s):
        for l in s.split('\n'): self.L.append('    ' + l.strip() if not l.strip().endswith(':') else l.strip())
    def c(self, s): self.L.append('    ; ' + s)
    def lab(self, p='L'):
        self.uid += 1; return f'{p}_{self.uid}'
    def srd(self, d, plo, phi, off_lo=None, size=None, size_sgpr=None):
        e = self.e
        if off_lo is None:
            e(f's_mov_b32 s{d}, s{plo}\ns_mov_b32 s{d+1}, s{phi}')
        else:
            e(f's_add_u32 s{d}, s{plo}, s{off_lo}\ns_addc_u32 s{d+1}, s{phi}, 0')
        if size_sgpr is not None: e(f's_mov_b32 s{d+2}, s{size_sgpr}')
        else: e(f's_mov_b32 s{d+2}, {size:#x}')
        e(f's_mov_b32 s{d+3}, 0x20000')
    def stamp(self, idx):
        if self.stamps:
            self.e(f's_memrealtime s[{64+2*idx}:{65+2*idx}]\ns_waitcnt lgkmcnt(0)')
    def flush_stamps(self, idxs, vt):
        if not self.stamps: return
        e = self.e
        e(f's_add_u32 s96, s26, {W_STAMP:#x}\ns_addc_u32 s97, s27, 0\ns_mov_b32 s98, 0x10000\ns_mov_b32 s99, 0x20000')
        e(f's_lshl_b32 s60, s2, 7\nv_mov_b32 v{vt+2}, s60')
        for i in idxs:
            e(f'v_mov_b32 v{vt}, s{64+2*i}\nv_mov_b32 v{vt+1}, s{65+2*i}')
            e(f'buffer_store_dwordx2 v[{vt}:{vt+1}], v{vt+2}, s[96:99], 0 offen offset:{i*8}\ns_nop 1')
    def ror_reduce(self, op, v, steps=(8, 4, 2, 1)):
        for s in steps:
            self.e(f's_nop 1\n{op}_dpp v{v}, v{v}, v{v} row_ror:{s} row_mask:0xf bank_mask:0xf')
    def swap_reduce(self, op, v, t, which):
        self.e(f'v_mov_b32 v{t}, v{v}\ns_nop 1\nv_permlane{which}_swap_b32 v{v}, v{t}\ns_nop 0\n{op} v{v}, v{v}, v{t}')
    def rnd_bf16(self, v, t=None):
        self.e(f'v_cvt_pk_bf16_f32 v{v}, v{v}, v{v}\nv_and_b32 v{v}, 0xffff0000, v{v}')
    def arrive(self, cnt, vaddr_zero, vt, sret):
        e = self.e
        e(f's_mov_b64 exec, 1\nv_mov_b32 v{vt}, 1')
        e(f'ds_add_rtn_u32 v{vt}, v{vaddr_zero}, v{vt} offset:{cnt*4}')
        e(f's_waitcnt lgkmcnt(0)\nv_readfirstlane_b32 s{sret}, v{vt}\ns_mov_b64 exec, -1')
    def lds_wait(self, cnt, target, vaddr_zero, vt, st, sleep=0):
        e = self.e; l = self.lab('L_w'); d = self.lab('L_wd')
        e(f's_mov_b32 s{st+1}, 0')
        e(f'{l}:')
        e(f'ds_read_b32 v{vt}, v{vaddr_zero} offset:{cnt*4}')
        e(f's_waitcnt lgkmcnt(0)\nv_readfirstlane_b32 s{st}, v{vt}')
        e(f's_cmp_ge_u32 s{st}, {target}\ns_cbranch_scc1 {d}')
        if sleep: e(f's_sleep {sleep}')
        e(f's_add_u32 s{st+1}, s{st+1}, 1\ns_cmp_lt_u32 s{st+1}, 0x100000\ns_cbranch_scc1 {l}')
        e(f'{d}:')

    def build(self):
        e, c = self.e, self.c
        D = self.depth; PD = self.pdepth; WP = self.wpol
        hdr = open('parallel_sum__mha_block_cached__glu_gated_bilinear__decode.s.ref').read().split('; @launch')[0]
        self.L.append(hdr.rstrip('\n'))
        self.L.append(f'; @launch grid=(256,1,1) block=(512,1,1) lds={LDS_SIZE}')
        self.L.append('.amdgcn_target "amdgcn-amd-amdhsa--gfx950"\n.text')
        self.L.append(f'.globl {KN}\n.p2align 8\n.type {KN},@function\n{KN}:')
        e('s_cmp_ge_u32 s2, 256\ns_cbranch_scc1 L_end')
        if self.stamps: e('s_memrealtime s[64:65]')
        e('v_cmp_gt_u32 vcc, 32, v0\ns_cbranch_vccz L_nozero')
        e(f'v_lshlrev_b32 v1, 2, v0\nv_and_b32 v1, 63, v1\nv_mov_b32 v2, 0\nds_write_b32 v1, v2 offset:{L_CNT & 0xffff}' if False else
          f'v_lshlrev_b32 v1, 2, v0\nv_and_b32 v1, 127, v1\nv_add_u32 v1, {L_CNT:#x}, v1\nv_mov_b32 v2, 0\nds_write_b32 v1, v2\ns_waitcnt lgkmcnt(0)')
        e('L_nozero:')
        e('s_load_dwordx16 s[4:19], s[0:1], 0\ns_load_dwordx8 s[20:27], s[0:1], 64')
        e('v_and_b32 v1, 63, v0\nv_lshrrev_b32 v2, 6, v0')
        e('s_lshr_b32 s44, s2, 5\ns_and_b32 s45, s2, 31')
        e('v_readfirstlane_b32 s3, v2')
        e('s_lshl_b32 s46, s45, 3\ns_add_u32 s46, s46, s44\ns_lshr_b32 s47, s46, 2\ns_and_b32 s48, s46, 3')
        e('s_barrier')
        e('s_cmp_ge_u32 s3, 4\ns_cbranch_scc1 L_aux')
        self.stream()
        e('L_aux:')
        self.aux()
        e('L_end:\ns_endpgm')
        self.L.append('.section .rodata,"a"\n.p2align 6')
        self.L.append(f'.amdhsa_kernel {KN}\n  .amdhsa_next_free_vgpr 256\n  .amdhsa_next_free_sgpr 102\n  .amdhsa_accum_offset 256')
        self.L.append('  .amdhsa_group_segment_fixed_size 0\n  .amdhsa_kernarg_size 96\n  .amdhsa_user_sgpr_count 2\n  .amdhsa_user_sgpr_kernarg_segment_ptr 1\n  .amdhsa_system_sgpr_workgroup_id_x 1\n.end_amdhsa_kernel')
        out = []
        for l in '\n'.join(self.L).split('\n'):
            if 's[36:39]' in l and l.rstrip().endswith(' sc1') and 'atomic' not in l:
                if 'store' in l: l = l.rstrip()[:-4] + ' ' + self.xs
                else: l = l.rstrip()[:-4] + ' ' + self.xl
            out.append(l)
        return '\n'.join(out) + '\n'

    def stream(self):
        e, c = self.e, self.c
        D = self.depth; PD = self.pdepth; WP = self.wpol; DP = self.ddepth
        vP, vV, vGU, vDN, vSa, vMax, vS, vA, vB, vT, vNM, vSn, vPp = 2, 6, 10, 11, 12, 13, 14, 15, 16, 17, 18, 19, 20
        vCnt = 21; vDec = 10; vPr = 11; vIt = 60
        DD = [24, 28]; Q = 32; MK = 48; AA = 52; O = 56; RING = 64
        NS = 32
        c('=== stream waves (0..3) ===')
        if self.prio: e(f's_setprio {self.prio}')
        e(f'v_mov_b32 v{vCnt}, {L_CNT:#x}')
        e(f'v_and_b32 v{vP}, 3, v1\nv_lshlrev_b32 v{vP}, 4, v{vP}')
        e(f'v_bfe_u32 v{vT}, v1, 2, 2\nv_lshl_add_u32 v{vP}, v{vT}, 8, v{vP}')
        e(f'v_lshrrev_b32 v{vT}, 4, v1\nv_lshl_add_u32 v{vP}, v{vT}, 6, v{vP}')
        AM = 0xff000 & ~(3 << self.pw) & ~(3 << self.pu)
        assert bin(AM).count('1') == 4
        HB = AM & -AM; AM2 = AM ^ HB; PB = AM2 & -AM2
        def advance():
            if AM2 == PB * 7: e(f's_add_u32 s51, s51, {PB:#x}\ns_add_u32 s55, s55, {PB:#x}')
            else: e(f's_or_b32 s51, s51, {0xffffffff ^ AM2:#x}\ns_add_u32 s51, s51, {PB:#x}\ns_and_b32 s51, s51, {AM2:#x}\ns_or_b32 s55, s51, {HB:#x}')
        P16 = 192
        if self.bmap:
            bm = self.bmap; assert sorted(bm) == list(range(10, 16))
            HB = 0x10000
            def advance():
                e('s_add_u32 s100, s100, 0x20000\ns_xor_b32 s51, s100, s101\ns_xor_b32 s55, s51, 0x10000')
            e(f's_lshl_b32 s49, s3, 12\ns_and_b32 s53, s3, 1\ns_lshl_b32 s53, s53, {bm[4]}\ns_lshr_b32 s54, s3, 1\ns_lshl_b32 s54, s54, {bm[5]}\ns_or_b32 s53, s53, s54')
            if self.xr:
                e(f's_mul_i32 s54, s2, {self.xr[0]}\ns_lshl_b32 s54, s54, {self.xr[1]}\ns_and_b32 s54, s54, {self.xr[2]:#x}')
                e('s_and_b32 s101, s54, 0xf0000\ns_and_b32 s54, s54, 0xfc00\ns_xor_b32 s53, s53, s54')
            else: e('s_mov_b32 s101, 0')
            e(f'v_xor_b32 v{vP}, s53, v{vP}')
            for j in range(16):
                cj = sum(((j >> i) & 1) << bm[i] for i in range(4))
                e(f'v_xor_b32 v{P16+j}, {cj:#x}, v{vP}')
            e('s_lshl_b32 s50, s2, 20\ns_mov_b32 s100, 0\ns_mov_b32 s51, s101\ns_xor_b32 s55, s101, 0x10000')
        else:
            e(f's_lshl_b32 s49, s3, 12\ns_lshl_b32 s53, s3, {self.pw}')
            e(f'v_add_u32 v{vP}, s53, v{vP}')
            for u in range(1, 4): e(f'v_add_u32 v{vP+u}, {u << self.pu:#x}, v{vP}')
            e('s_lshl_b32 s50, s2, 20')
            e(f's_mov_b32 s51, 0\ns_mov_b32 s55, {HB:#x}')
        e('s_waitcnt lgkmcnt(0)')
        self.srd(40, 6, 7, 50, 0x100000)
        def kload(j):
            so = 's51' if j < 16 else 's55'
            if self.bmap:
                e(f'buffer_load_dwordx4 v[{RING+4*j}:{RING+4*j+3}], v{P16+j%16}, s[40:43], {so} offen nt'); return
            e(f'buffer_load_dwordx4 v[{RING+4*j}:{RING+4*j+3}], v{vP+(j%16)//4}, s[40:43], {so} offen offset:{(j%4)*1024} ' + (self.ppol if (self.pmask >> j) & 1 else 'nt'))
        def pst(i):
            if self.prof: e(f's_memrealtime s[62:63]\ns_waitcnt lgkmcnt(0)\nv_writelane_b32 v22, s62, {36+i}')
        B0 = self.burst or PD
        pst(0)
        for j in range(B0): kload(j)
        pst(1)
        if self.bmap:
            e(f'v_lshlrev_b32 v{vV}, 4, v1\nv_xor_b32 v{vV}, v{vP}, v{vV}\nv_and_b32 v{vV}, 0x3ff, v{vV}')
        else:
            e(f'v_lshlrev_b32 v{vV}, 4, v1\nv_add_u32 v{vV}, s53, v{vV}')
            for u in range(1, 4): e(f'v_add_u32 v{vV+u}, {u << self.pu:#x}, v{vV}')
        def pwait():
            e(f's_waitcnt vmcnt({self.ppat[self.pc % len(self.ppat)]-1})'); self.pc += 1
        def dma(srd, vo, n, step):
            for i in range(n):
                if self.gdepth: e(f's_waitcnt vmcnt({self.gdepth[(srd-28)//4]-1})')
                else: pwait()
                e(f'buffer_load_dwordx4 v{vo}, s[{srd}:{srd+3}], s54 offen {WP} lds')
                if i < n - 1: e(f's_add_u32 m0, m0, 0x400\ns_add_u32 s54, s54, {step}')
        e('s_cmp_ge_u32 s46, 224\ns_cbranch_scc1 L_s_nodma')
        e(f'v_lshrrev_b32 v{vT}, 3, v1\nv_mul_u32_u24 v{vGU}, 7168, v{vT}\nv_and_b32 v{vT}, 7, v1\nv_lshl_add_u32 v{vGU}, v{vT}, 4, v{vGU}')
        e(f's_mul_i32 s52, s48, {256*7168}\ns_lshl_b32 s53, s47, 7\ns_add_u32 s52, s52, s53\ns_sub_u32 s53, {1024*7168}, s52')
        if 'cgu' in self.dbg:
            e(f'v_lshlrev_b32 v{vGU}, 4, v1\ns_lshl_b32 s52, s46, 15\ns_sub_u32 s53, {1024*7168}, s52')
        self.srd(28, 16, 17, 52, size_sgpr=53)
        self.srd(32, 18, 19, 52, size_sgpr=53)
        e(f's_lshl_b32 s56, s3, 13')
        for (srd, lbase) in ((28, L_GATE), (32, L_UP)):
            if 'cgu' in self.dbg:
                e(f's_add_u32 m0, s56, {lbase:#x}\ns_mul_i32 s54, s3, 8192')
                dma(srd, vGU, 8, 1024)
                continue
            e(f's_add_u32 m0, s56, {lbase:#x}\ns_mul_i32 s54, s3, {64*7168}')
            dma(srd, vGU, 8, 8*7168)
            pst(2 if srd == 28 else 3)
        e('L_s_nodma:')
        e(f'v_lshrrev_b32 v{vT}, 4, v1\nv_lshlrev_b32 v{vDN}, 11, v{vT}\nv_and_b32 v{vT}, 15, v1\nv_lshl_add_u32 v{vDN}, v{vT}, 4, v{vDN}')
        e(f's_mul_i32 s52, s45, {112*2048}\ns_lshl_b32 s53, s44, 8\ns_add_u32 s52, s52, s53\ns_sub_u32 s53, {3584*2048}, s52')
        if 'cdn' in self.dbg:
            e(f'v_lshlrev_b32 v{vDN}, 4, v1\ns_mul_i32 s52, s2, 28672\ns_sub_u32 s53, {3584*2048}, s52')
            self.srd(36, 20, 21, 52, size_sgpr=53)
            e(f's_mul_i32 s56, s3, 7168\ns_add_u32 m0, s56, {L_DOWN:#x}\ns_mul_i32 s54, s3, 7168')
            dma(36, vDN, 7, 1024)
        else:
            self.srd(36, 20, 21, 52, size_sgpr=53)
            e(f's_mul_i32 s56, s3, 7168\ns_add_u32 m0, s56, {L_DOWN:#x}\ns_mul_i32 s54, s3, {28*2048}')
            dma(36, vDN, 7, 4*2048)
        pst(4)
        for u in range(1, 4):
            m = 0x11111111 << u
            e(f's_mov_b32 s{54+2*u}, {m:#x}\ns_mov_b32 s{55+2*u}, {m:#x}')
        e(f'v_and_b32 v{vT}, 1, v1\nv_cmp_eq_u32 vcc, 1, v{vT}\nv_mov_b32 v{vA}, 0xffff\nv_mov_b32 v{vB}, 0xffff0000')
        e(f'v_cndmask_b32 v{vA}, v{vA}, v{vB}, vcc')
        e(f'v_bfe_u32 v{vT}, v1, 1, 3')
        for i in range(4):
            e(f'v_cmp_eq_u32 vcc, {i}, v{vT}\ns_nop 1\nv_cndmask_b32 v{MK+i}, 0, v{vA}, vcc')
        e(f'v_lshlrev_b32 v{vSa}, 2, v1\nv_add_u32 v{vSa}, s49, v{vSa}')
        if L_S: e(f'v_add_u32 v{vSa}, {L_S:#x}, v{vSa}')
        e(f'v_mov_b32 v{vMax}, 0xff800000')
        for i in range(4): e(f'v_mov_b32 v{O+i}, 0')
        e(f'v_mov_b32 v{vDec}, 0\ns_lshl_b32 s54, s3, 2\nv_add_u32 v{vPr}, s54, v{vCnt}')
        e(f'v_and_b32 v{vA}, 3, v1\nv_lshrrev_b32 v{vT}, 4, v1\nv_lshl_add_u32 v{vA}, v{vT}, 2, v{vA}\nv_lshlrev_b32 v{vA}, 4, v{vA}\nv_add_u32 v{vA}, {L_QL:#x}, v{vA}')
        e(f'v_bfe_u32 v{vT}, v1, 2, 2\nv_mov_b32 v{vB}, {L_ZERO:#x}')
        for t in range(4):
            e(f'v_cmp_eq_u32 vcc, {t}, v{vT}\ns_nop 1\nv_cndmask_b32 v{AA+t}, v{vB}, v{vA}, vcc')
        for j in range(B0, NS):
            pwait(); kload(j)
            if j == 19: pst(5)
            if j == self.qj: e(f'ds_write_b32 v{vPr}, v{vCnt} offset:48')
        if self.ltab:
            assert not self.uq and DP
            lt = 0
            for r, dty in enumerate(self.ltab): lt |= dty << (4 * r)
            self.srd(36, 26, 27, None, W_SIZE)
            e(f's_mov_b32 s28, 0\ns_mov_b32 s29, 0\ns_mov_b32 s32, {lt & 0xffffffff:#x}\ns_mov_b32 s33, {lt >> 32:#x}\nv_mov_b32 v209, 0')
            e(f's_getreg_b32 s30, hwreg(HW_REG_XCC_ID, 0, 3)\ns_lshl_b32 s30, s30, 13\ns_add_u32 s30, s30, {W_CL:#x}')
        pst(6)
        self.stamp(1)
        e('s_barrier')
        for t in range(4): e(f'ds_read_b128 v[{Q+4*t}:{Q+4*t+3}], v{AA+t}')
        e('s_waitcnt lgkmcnt(0)')
        self.stamp(2)
        e('s_mov_b32 s52, 0')
        vR = 208; vZ = 209; LT = self.ltab
        def qtop(isv, u):
            if not LT: return
            if u == self.lq:
                e(f'v_readfirstlane_b32 s31, v{vR}\ns_nop 0\ns_bfe_u32 s31, s31, 0x40003\ns_lshl_b32 s31, s31, 2\ns_lshr_b64 s[34:35], s[32:33], s31\ns_and_b32 s31, s34, 15')
                e('s_add_u32 s31, s31, s28\ns_max_u32 s29, s29, s31')
            e('s_cmp_lt_u32 s28, s29\ns_cselect_b64 vcc, -1, 0\ns_add_u32 s28, s28, 1')
            if isv: e(f's_cmp_ge_u32 s52, {self.usw}')
        def halftop(isv):
            if self.prof: e('s_mov_b32 m0, s52\ns_nop 0\nv_writelane_b32 v22, s62, m0')
            e(f'v_mov_b32 v{vIt}, s52\nds_write_b32 v{vPr}, v{vIt} offset:32')
            if DP:
                e(f'v_readfirstlane_b32 s54, v{vDec}\ns_nop 0')
                e(f'ds_read_b32 v{vDec}, v{vCnt} offset:20')
                if LT:
                    e('s_lshl_b32 s54, s54, 2\ns_max_u32 s29, s29, s54')
                    e(f'v_mov_b32 v{vR}, 1\ns_mov_b64 exec, 1')
                    e(f'buffer_atomic_add v{vR}, v{vZ}, s[36:39], s30 offen sc0')
                    e('s_mov_b64 exec, -1\ns_add_u32 s30, s30, 0x100')
                    return
                e('s_cmp_lt_u32 s52, s54\ns_cselect_b64 vcc, -1, 0')
            if isv and not self.uq: e(f's_cmp_ge_u32 s52, {self.usw}')
        def gate(isv, j):
            D = self.dpat[j % len(self.dpat)]; DP = self.epat[j % len(self.epat)]
            if LT:
                if j % 16 < D: D += 1
                if j % 16 < DP: DP += 1
            lm = self.lab('L_m'); lx = self.lab('L_x')
            if isv: e(f's_cbranch_scc1 {lx}')
            if DP: e(f's_cbranch_vccnz {lm}')
            e(f's_waitcnt vmcnt({D-1})')
            if DP: e(f'{lm}:\ns_waitcnt vmcnt({DP-1})')
            if isv: e(f'{lx}:\ns_waitcnt vmcnt({self.edepth-1})')
        c('---- K loop ----')
        e('L_kloop:')
        advance()
        e('s_cmp_lg_u32 s52, 14\ns_cbranch_scc1 L_k_go')
        if self.bmap:
            e('s_add_u32 s40, s8, s50\ns_addc_u32 s41, s9, 0\ns_mov_b32 s100, 0\ns_mov_b32 s51, s101\ns_xor_b32 s55, s101, 0x10000')
            for j in range(16): e(f'v_xor_b32 v{P16+j}, v{vV}, v{P16+j}')
        else:
            e(f's_add_u32 s40, s8, s50\ns_addc_u32 s41, s9, 0\ns_mov_b32 s51, 0\ns_mov_b32 s55, {HB:#x}')
            for u in range(4): e(f'v_mov_b32 v{vP+u}, v{vV+u}')
        e('L_k_go:')
        def reduce(u):
            d = DD[u & 1]
            q1, q2, q3 = (u + 1) & 3, (u + 2) & 3, (u + 3) & 3
            e(f'v_add_f32_dpp v{vA}, v{d+q1}, v{d+q2} quad_perm:[{q1},{q1},{q1},{q1}] row_mask:0xf bank_mask:0xf')
            e(f'v_add_f32_dpp v{vB}, v{d+q3}, v{d+u} quad_perm:[{q3},{q3},{q3},{q3}] row_mask:0xf bank_mask:0xf')
            e('s_nop 0')
            dst = vS if u == 0 else vB
            e(f'v_add_f32_dpp v{dst}, v{vA}, v{vB} quad_perm:[{q2},{q2},{q2},{q2}] row_mask:0xf bank_mask:0xf')
            if u: e(f'v_cndmask_b32 v{vS}, v{vS}, v{vB}, s[{54+2*u}:{55+2*u}]')
        for hf in range(2):
            if self.prof: e('s_memrealtime s[62:63]')
            if DP or self.prof: e('s_waitcnt lgkmcnt(0)')
            halftop(False)
            for u in range(4):
                d = DD[u & 1]
                qtop(False, u)
                for t in range(4):
                    j = 16 * hf + 4 * u + t
                    cc = '0' if t == 0 else f'v[{d}:{d+3}]'
                    e(f'v_mfma_f32_16x16x32_bf16 v[{d}:{d+3}], v[{RING+4*j}:{RING+4*j+3}], v[{Q+4*t}:{Q+4*t+3}], {cc}')
                    if t == 2 and u > 0: reduce(u - 1)
                    gate(False, j); kload(j)
            e('s_nop 5')
            reduce(3)
            e(f'v_cvt_pk_bf16_f32 v{vS}, v{vS}, v{vS}\nv_lshlrev_b32 v{vS}, 16, v{vS}\nv_mul_f32 v{vS}, {f2u(128.0**-0.5):#x}, v{vS}')
            self.rnd_bf16(vS)
            e(f'v_max_f32 v{vMax}, v{vMax}, v{vS}\nds_write_b32 v{vSa}, v{vS}\nv_add_u32 v{vSa}, 0x100, v{vSa}')
            e('s_add_u32 s52, s52, 1')
        e('s_cmp_lt_u32 s52, 16\ns_cbranch_scc1 L_kloop')
        c('---- transition ----')
        e(f'v_add_u32 v{vSa}, -4096, v{vSa}')
        e(f'ds_read_b32 v{vSn}, v{vSa}')
        self.ror_reduce('v_max_f32', vMax)
        self.swap_reduce('v_max_f32', vMax, vT, 16)
        self.swap_reduce('v_max_f32', vMax, vT, 32)
        LOG2E = f2u(1.4426950408889634)
        e(f's_mov_b32 s53, {LOG2E:#x}')
        e(f'v_mul_f32 v{vNM}, {f2u(-1.4426950408889634):#x}, v{vMax}')
        e(f's_lshl_b32 s54, s3, 2\ns_add_u32 s54, s54, {L_MW:#x}\nv_mov_b32 v{vT}, s54')
        e(f'ds_write_b32 v{vT}, v{vMax}')
        e(f's_mov_b64 exec, 1\nv_mov_b32 v{vT}, 1\nds_add_u32 v{vCnt}, v{vT} offset:{7*4}\ns_mov_b64 exec, -1')
        self.stamp(3)
        c('---- V loop ----')
        assert self.edepth <= NS - 1
        vU = 61; vBig = 62
        if self.uq: e(f's_mov_b32 s56, 64\nv_mov_b32 v{vU}, 0\nv_mov_b32 v{vBig}, 64')
        e('L_vloop:')
        advance()
        PEEL = self.peel >= 0
        if not PEEL: e('s_cmp_eq_u32 s52, 30\ns_cselect_b32 s42, 0, s42')
        for hf in range(2):
            if self.prof: e('s_memrealtime s[62:63]')
            e(f'v_add_u32 v{vSa}, 0x100, v{vSa}')
            e('s_waitcnt lgkmcnt(0)')
            e(f'v_fma_f32 v{vT}, v{vSn}, s53, v{vNM}')
            e(f'ds_read_b32 v{vSn}, v{vSa}')
            e(f'v_exp_f32 v{vT}, v{vT}')
            halftop(not PEEL)
            e(f'v_cvt_pk_bf16_f32 v{vPp}, v{vT}, v{vT}\ns_nop 1')
            for u in range(4):
                qtop(True, u)
                if self.uq and not PEEL:
                    if u: e('s_waitcnt lgkmcnt(0)')
                    e(f'v_readfirstlane_b32 s57, v{vU}\ns_add_u32 s56, s56, 1')
                    e(f'ds_read_b32 v{vU}, v{vCnt} offset:24')
                    e(f's_add_u32 s57, s57, s56\ns_cmp_gt_u32 s57, {self.uq}')
                    if self.usync:
                        lq = self.lab('L_q')
                        e(f's_cbranch_scc0 {lq}\nds_write_b32 v{vCnt}, v{vBig} offset:24\n{lq}:')
                for t in range(4):
                    j = 16 * hf + 4 * u + t
                    for i in range(4):
                        e(f'v_and_b32_dpp v{AA+i}, v{vPp}, v{MK+i} row_newbcast:{4*t+u} row_mask:0xf bank_mask:0xf')
                    e('s_nop 1')
                    e(f'v_mfma_f32_16x16x32_bf16 v[{O}:{O+3}], v[{AA}:{AA+3}], v[{RING+4*j}:{RING+4*j+3}], v[{O}:{O+3}]')
                    gate(not PEEL, j); kload(j)
            e('s_add_u32 s52, s52, 1')
        e(f's_cmp_lt_u32 s52, {28 if PEEL else 32}\ns_cbranch_scc1 L_vloop')
        if PEEL:
            assert not LT
            c('---- last four halves: straight line, the last two without loads ----')
            PP = [vPp, 216, 217, 218]; AB = [AA, 212]
            advance()
            if self.prof: e('s_memrealtime s[62:63]')
            e('s_waitcnt lgkmcnt(0)')
            e(f'v_fma_f32 v{vT}, v{vSn}, s53, v{vNM}')
            for k in range(1, 4): e(f'ds_read_b32 v{PP[k]}, v{vSa} offset:{k*256}')
            if self.uq: e(f'ds_read_b32 v{vU}, v{vCnt} offset:24')
            e(f'v_exp_f32 v{vT}, v{vT}')
            halftop(False)
            e(f'v_cvt_pk_bf16_f32 v{vPp}, v{vT}, v{vT}\ns_nop 1')
            def ands(g):
                u, t = (g % 16) // 4, g % 4
                for i in range(4):
                    e(f'v_and_b32_dpp v{AB[g&1]+i}, v{PP[g//16]}, v{MK+i} row_newbcast:{4*t+u} row_mask:0xf bank_mask:0xf')
            def step(g, gated):
                j = g % 32
                if self.prof and g and g % 16 == 0:
                    e(f's_memrealtime s[62:63]\ns_waitcnt lgkmcnt(0)\nv_writelane_b32 v22, s62, {28 + g//16}')
                if g < 63: ands(g + 1)
                else: e('s_nop 0')
                if not gated: e(f's_waitcnt vmcnt({min(31, 63 - g)})')
                e(f'v_mfma_f32_16x16x32_bf16 v[{O}:{O+3}], v[{AB[g&1]}:{AB[g&1]+3}], v[{RING+4*j}:{RING+4*j+3}], v[{O}:{O+3}]')
                if g < 32:
                    if gated: gate(False, j)
                    kload(j)
            ands(0)
            G1 = 2 * self.uq if self.uq else self.peel
            assert 2 <= G1 <= 32
            for g in range(G1):
                if g == 1:
                    e('s_waitcnt lgkmcnt(0)')
                    for k in range(1, 4): e(f'v_fma_f32 v{PP[k]}, v{PP[k]}, s53, v{vNM}')
                    for k in range(1, 4): e(f'v_exp_f32 v{PP[k]}, v{PP[k]}')
                    e(f'v_and_b32 v{vA}, 15, v1\nv_lshlrev_b32 v{vA}, 5, v{vA}\nv_lshrrev_b32 v{vT}, 4, v1\nv_lshl_add_u32 v{vA}, v{vT}, 4, v{vA}')
                    e(f's_lshl_b32 s54, s3, 9\ns_add_u32 s54, s54, {L_DP:#x}\nv_add_u32 v{vA}, s54, v{vA}')
                    for k in range(1, 4): e(f'v_cvt_pk_bf16_f32 v{PP[k]}, v{PP[k]}, v{PP[k]}')
                    self.srd(36, 26, 27, None, W_SIZE)
                if self.uq and g >= 2 and g % 2 == 0:
                    e(f's_waitcnt lgkmcnt(0)\nv_readfirstlane_b32 s57, v{vU}\ns_nop 0')
                    e(f'ds_read_b32 v{vU}, v{vCnt} offset:24')
                    e(f's_cmp_ge_u32 s57, {self.uq - g // 2}\ns_cbranch_scc1 L_fast{g}')
                step(g, True)
            if self.uq:
                e(f's_branch L_fast{G1}')
                for g in range(2, 64):
                    if g % 2 == 0 and g <= G1:
                        e(f'L_fast{g}:')
                        if self.usync and g % 4 == 2 or g == G1 and self.usync: e(f'ds_write_b32 v{vCnt}, v{vBig} offset:24')
                    step(g, False)
            else:
                for g in range(G1, 64): step(g, False)
            e('s_mov_b32 exec_hi, 0\ns_nop 6')
            e(f'ds_write_b128 v{vA}, v[{O}:{O+3}]')
            e('s_mov_b64 exec, -1')
        if self.prof:
            e(f's_memrealtime s[62:63]\ns_add_u32 s96, s26, {W_STAMP+0x10000:#x}\ns_addc_u32 s97, s27, 0\ns_mov_b32 s98, 0x100000\ns_mov_b32 s99, 0x20000')
            e('s_waitcnt lgkmcnt(0)\nv_writelane_b32 v22, s62, 32\nv_writelane_b32 v22, s64, 33')
            e('s_getreg_b32 s54, hwreg(HW_REG_HW_ID)\ns_nop 0\nv_writelane_b32 v22, s54, 34\ns_getreg_b32 s54, hwreg(HW_REG_XCC_ID)\ns_nop 0\nv_writelane_b32 v22, s54, 35')
            e('s_lshl_b32 s54, s2, 2\ns_add_u32 s54, s54, s3\ns_lshl_b32 s54, s54, 8\nv_lshlrev_b32 v23, 2, v1')
            e('buffer_store_dword v22, v23, s[96:99], s54 offen')
        c('---- stream epilogue ----')
        if not PEEL:
            e(f'v_and_b32 v{vA}, 15, v1\nv_lshlrev_b32 v{vA}, 5, v{vA}\nv_lshrrev_b32 v{vT}, 4, v1\nv_lshl_add_u32 v{vA}, v{vT}, 4, v{vA}')
            e(f's_lshl_b32 s54, s3, 9\ns_add_u32 s54, s54, {L_DP:#x}\nv_add_u32 v{vA}, s54, v{vA}')
            e('s_mov_b32 exec_hi, 0')
            e(f'ds_write_b128 v{vA}, v[{O}:{O+3}]')
            e('s_mov_b64 exec, -1')
            self.srd(36, 26, 27, None, W_SIZE)
        e('s_waitcnt lgkmcnt(0)')
        self.stamp(4)
        e('s_barrier')
        e('s_cmp_eq_u32 s3, 0\ns_cbranch_scc1 L_final\ns_cmp_lg_u32 s3, 1\ns_cbranch_scc1 L_end')
        c('---- wave 1: combine o and publish ----')
        e(f'v_lshlrev_b32 v{vA}, 3, v1\nv_add_u32 v{vA}, {L_DP:#x}, v{vA}\nv_mov_b32 v{vB}, {L_FW:#x}')
        e(f'ds_read_b128 v[{Q}:{Q+3}], v{vB}')
        for w in range(4): e(f'ds_read_b64 v[{Q+4+2*w}:{Q+5+2*w}], v{vA} offset:{w*512}')
        e(f's_lshl_b32 s54, s46, 8\ns_add_u32 s54, s54, {W_OX:#x}\nv_lshlrev_b32 v{vT}, 2, v1')
        e('s_waitcnt lgkmcnt(0)')
        e(f'v_mul_f32 v{vA}, v{Q}, v{Q+4}\nv_mul_f32 v{vB}, v{Q}, v{Q+5}')
        for w in range(1, 4): e(f'v_fmac_f32 v{vA}, v{Q+w}, v{Q+4+2*w}\nv_fmac_f32 v{vB}, v{Q+w}, v{Q+5+2*w}')
        e(f'v_cvt_pk_bf16_f32 v{vA}, v{vA}, v{vB}')
        e(f'v_min_u32 v{vA}, 0xfffffffe, v{vA}')
        e(f'buffer_store_dword v{vA}, v{vT}, s[36:39], s54 offen sc1')
        self.stamp(5)
        c('collect o of the 8 batches of this head')
        R = RING
        e(f's_lshl_b32 s54, s45, 11\ns_add_u32 s54, s54, {W_OX:#x}\nv_lshlrev_b32 v{vT}, 4, v1')
        e(f'v_lshrrev_b32 v{vA}, 4, v1\nv_lshl_add_u32 v{vP}, v{vA}, 4, v{vT}\nv_add_u32 v{vP}, {L_OL:#x}, v{vP}')
        e('s_mov_b64 s[56:57], -1\ns_mov_b64 s[58:59], -1\ns_mov_b32 s55, 0')
        e('L_opoll:')
        for k in range(2):
            e(f's_mov_b64 exec, s[{56+2*k}:{57+2*k}]')
            e(f'buffer_load_dwordx4 v[{R+4*k}:{R+4*k+3}], v{vT}, s[36:39], s54 offen offset:{k*1024} sc1')
        e('s_mov_b64 exec, -1\ns_add_u32 s55, s55, 1\ns_waitcnt vmcnt(0)')
        e(f'v_max3_u32 v{vA}, v{R}, v{R+1}, v{R+2}\nv_max3_u32 v{vB}, v{R+4}, v{R+5}, v{R+6}\nv_max_u32 v{vA}, v{vA}, v{R+3}\nv_max_u32 v{vB}, v{vB}, v{R+7}')
        e(f'v_cmp_eq_u32 s[56:57], -1, v{vA}\nv_cmp_eq_u32 s[58:59], -1, v{vB}')
        e('s_cmp_ge_u32 s55, 0x10000\ns_cbranch_scc1 L_ogo\ns_or_b64 vcc, s[56:57], s[58:59]\ns_cbranch_scc1 L_opoll\nL_ogo:')
        e(f'ds_write_b128 v{vP}, v[{R}:{R+3}]\nds_write_b128 v{vP}, v[{R+4}:{R+7}] offset:{4*272}')
        e('s_waitcnt lgkmcnt(0)\ns_barrier')
        self.flush_stamps([5], 200)
        e('s_endpgm')
        c('---- wave 0: final reduction ----')
        e('L_final:')
        R = RING
        e(f'v_and_b32 v{vA}, 7, v1\nv_lshlrev_b32 v{vA}, 4, v{vA}\nv_add_u32 v{vA}, {L_FF:#x}, v{vA}')
        e(f'ds_read_b128 v[{Q}:{Q+3}], v{vA}\nds_read_b64 v[{Q+4}:{Q+5}], v{vCnt} offset:{L_NONCE-L_CNT}')
        e(f's_mul_i32 s54, s44, {W_BSTRIDE:#x}\ns_lshl_b32 s55, s45, 12\ns_add_u32 s54, s54, s55\ns_add_u32 s54, s54, {W_AP:#x}')
        e(f'v_lshlrev_b32 v{vT}, 4, v1')
        self.srd(32, 22, 23, None, 0x4000)
        e('s_mov_b32 s55, 0\ns_waitcnt vmcnt(0) lgkmcnt(0)')
        self.tags_from(Q + 4, MK)
        for i in range(4): e(f's_mov_b64 s[{56+2*i}:{57+2*i}], -1')
        def issue(S):
            for i in range(4):
                e(f's_mov_b64 exec, s[{56+2*i}:{57+2*i}]')
                e(f'buffer_load_dwordx4 v[{S+4*i}:{S+4*i+3}], v{vT}, s[36:39], s54 offen offset:{i*1024} sc1')
        def process(S, n):
            for i in range(4):
                e(f's_mov_b64 exec, s[{56+2*i}:{57+2*i}]\ns_waitcnt vmcnt({n+3-i})')
                for k in range(4): e(f'v_xor_b32 v{R+16+4*i+k}, v{S+4*i+k}, v{MK+k}')
                e(f'v_or3_b32 v{vA}, v{R+16+4*i}, v{R+17+4*i}, v{R+18+4*i}\nv_or_b32 v{vA}, v{vA}, v{R+19+4*i}\nv_and_b32 v{vA}, {TMASK:#x}, v{vA}')
                e(f'v_cmp_ne_u32 s[{56+2*i}:{57+2*i}], 0, v{vA}')
            e('s_or_b64 vcc, s[56:57], s[58:59]\ns_or_b64 s[50:51], s[60:61], s[62:63]\ns_or_b64 vcc, vcc, s[50:51]')
        if self.fp2:
            SA = R; SB = R + 32
            if 'early' in self.dbg: issue(SA)
            e('s_barrier')
            if 'early' in self.dbg: process(SA, 0)
            if 'nob4' not in self.dbg: e('s_barrier')
            issue(SA)
            e(f's_sleep {self.fp2}')
            e('L_fpoll:')
            issue(SB); process(SA, 4)
            e('s_cbranch_scc0 L_fgo')
            issue(SA); process(SB, 4)
            e('s_cbranch_scc0 L_fgo')
            e('s_add_u32 s55, s55, 1\ns_cmp_lt_u32 s55, 0x8000\ns_cbranch_scc1 L_fpoll')
            e('L_fgo:\ns_mov_b64 exec, -1')
        elif 'early' in self.dbg:
            issue(R)
            e('s_barrier')
            process(R, 0)
            if 'nob4' not in self.dbg: e('s_barrier')
            e('L_fpoll:')
            issue(R); process(R, 0)
            e('s_cbranch_scc0 L_fgo')
            e('s_add_u32 s55, s55, 1\ns_cmp_lt_u32 s55, 0x10000\ns_cbranch_scc1 L_fpoll')
            e('L_fgo:\ns_mov_b64 exec, -1')
        else:
            e('s_barrier')
            if 'nob4' not in self.dbg: e('s_barrier')
            e('L_fpoll:')
            for i in range(4):
                e(f's_mov_b64 exec, s[{56+2*i}:{57+2*i}]')
                e(f'buffer_load_dwordx4 v[{R+4*i}:{R+4*i+3}], v{vT}, s[36:39], s54 offen offset:{i*1024} sc1')
            e('s_mov_b64 exec, -1\ns_add_u32 s55, s55, 1')
            for i in range(4):
                e(f's_waitcnt vmcnt({3-i})')
                for k in range(4): e(f'v_xor_b32 v{R+16+4*i+k}, v{R+4*i+k}, v{MK+k}')
                e(f'v_or3_b32 v{vA}, v{R+16+4*i}, v{R+17+4*i}, v{R+18+4*i}\nv_or_b32 v{vA}, v{vA}, v{R+19+4*i}\nv_and_b32 v{vA}, {TMASK:#x}, v{vA}')
                e(f'v_cmp_ne_u32 s[{56+2*i}:{57+2*i}], 0, v{vA}')
            e('s_cmp_ge_u32 s55, 0x10000\ns_cbranch_scc1 L_fgo')
            e('s_or_b64 vcc, s[56:57], s[58:59]\ns_or_b64 s[50:51], s[60:61], s[62:63]\ns_or_b64 vcc, vcc, s[50:51]\ns_cbranch_scc1 L_fpoll\nL_fgo:')
        self.stamp(7)
        R = R + 16
        self.colsum(R, 4, vT)
        e('s_waitcnt lgkmcnt(0)')
        for i in range(4): e(f'v_add_f32 v{R+i}, v{Q+i}, v{R+i}')
        e(f'v_cvt_pk_bf16_f32 v{R}, v{R}, v{R+1}\nv_cvt_pk_bf16_f32 v{R+1}, v{R+2}, v{R+3}')
        e(f's_lshl_b32 s54, s2, 6\nv_lshlrev_b32 v{vT}, 3, v1\ns_mov_b64 exec, 0xff')
        e(f'buffer_store_dwordx2 v[{R}:{R+1}], v{vT}, s[32:35], s54 offen')
        e('s_mov_b64 exec, -1')
        self.stamp(6)
        self.flush_stamps([0, 1, 2, 3, 4, 6, 7], 200)
        e('s_endpgm')

    def colsum(self, R, n, vt):
        e = self.e
        for i in range(1, n):
            for k in range(4): e(f'v_add_f32 v{R+k}, v{R+k}, v{R+4*i+k}')
        e('s_nop 1')
        for k in range(4): e(f'v_add_f32_dpp v{R+k}, v{R+k}, v{R+k} row_ror:8 row_mask:0xf bank_mask:0xf')
        for which in (16, 32):
            for k in range(4): e(f'v_mov_b32 v{R+4+k}, v{R+k}')
            e('s_nop 0')
            for k in range(4): e(f'v_permlane{which}_swap_b32 v{R+k}, v{R+4+k}')
            for k in range(4): e(f'v_add_f32 v{R+k}, v{R+k}, v{R+4+k}')

    def tags_from(self, nv, tg):
        self.e(f'v_and_b32 v{tg}, {TMASK:#x}, v{nv}\nv_bfe_u32 v{tg+1}, v{nv}, 16, {TB}\nv_and_b32 v{tg+2}, {TMASK:#x}, v{nv+1}\nv_bfe_u32 v{tg+3}, v{nv+1}, 16, {TB}')
    def untag(self, R, n, tg, t0, t1, mask):
        e = self.e
        for i in range(4 * n): e(f'v_xor_b32 v{R+i}, v{R+i}, v{tg + (i & 3)}')
        e(f'v_or3_b32 v{t0}, v{R}, v{R+1}, v{R+2}\nv_or3_b32 v{t1}, v{R+3}, v{R+4}, v{R+5}')
        i = 6; k = 0
        while i < 4 * n:
            t = (t0, t1)[k & 1]; e(f'v_or3_b32 v{t}, v{t}, v{R+i}, v{R+i+1}'); i += 2; k += 1
        e(f'v_or_b32 v{t0}, v{t0}, v{t1}\nv_and_b32 v{t0}, {mask:#x}, v{t0}\nv_cmp_ne_u32 vcc, 0, v{t0}')

    def aux(self):
        e, c = self.e, self.c
        WP = self.wpol
        vCnt, vT, vT2, vG, vC, vC7, vSt, vTr, vL16, vX = 2, 3, 4, 5, 6, 7, 8, 9, 10, 11
        X = 16
        U = 32
        TG = 64
        XFr = 68
        NV = 28
        c('=== aux waves (4..7) ===')
        e('s_sub_u32 s3, s3, 4')
        e(f'v_mov_b32 v{vCnt}, {L_CNT:#x}')
        e(f'v_lshrrev_b32 v{vG}, 4, v1\nv_and_b32 v{vC}, 15, v1\nv_and_b32 v{vC7}, 7, v1\nv_lshlrev_b32 v{vL16}, 4, v1')
        e(f'v_lshrrev_b32 v{vT}, 5, v1\nv_lshlrev_b32 v{vT}, 11, v{vT}\nv_and_b32 v{vT2}, 31, v1')
        e(f's_lshl_b32 s49, s3, 12\nv_add_u32 v{vT}, s49, v{vT}')
        e(f'v_lshl_add_u32 v{vX}, v{vT2}, 4, v{vT}')
        vWq = 15
        e(f'v_lshrrev_b32 v{vT}, 3, v1\nv_lshlrev_b32 v{vWq}, 13, v{vT}\nv_lshl_add_u32 v{vWq}, v{vC7}, 4, v{vWq}')
        e('s_lshl_b32 s50, s48, 21\ns_lshl_b32 s51, s47, 7\ns_add_u32 s50, s50, s51\ns_sub_u32 s51, 0x800000, s50')
        e('s_lshl_b32 s53, s48, 9')
        e(f's_lshl_b32 s54, s3, 13\ns_add_u32 m0, s54, {L_WQ:#x}\ns_lshl_b32 s55, s3, 19')
        e('s_memrealtime s[62:63]')
        e(f'v_lshrrev_b32 v{vT}, 3, v{vC}\nv_lshlrev_b32 v{vSt}, 6, v{vT}\nv_lshl_add_u32 v{vSt}, v{vG}, 4, v{vSt}\nv_lshl_add_u32 v{vSt}, v{vC7}, 19, v{vSt}')
        e(f'v_mov_b32 v{vT2}, 0')
        e('s_xor_b32 s60, s3, 3\ns_or_b32 s60, s60, s2')
        e('s_waitcnt lgkmcnt(0)')
        self.srd(40, 24, 25, None, 256)
        self.srd(36, 26, 27, None, W_SIZE)
        e('s_cmp_lg_u32 s60, 0\ns_cbranch_scc1 L_a_noz')
        c('workgroup 0: publish the launch nonce: four fields of the clock, field 0 odd, field 1 even')
        e(f's_lshl_b32 s56, s62, 1\ns_or_b32 s56, s56, 1\ns_and_b32 s56, s56, {TMASK:#x}\ns_bfe_u32 s57, s62, {((TB-1) << 16) | (TB-1):#x}\ns_lshl_b32 s57, s57, 17\ns_or_b32 s56, s56, s57')
        e(f's_lshr_b64 s[62:63], s[62:63], {2*TB-2}\ns_and_b32 s57, s62, {TMASK:#x}\ns_bfe_u32 s62, s62, {(TB << 16) | TB:#x}\ns_lshl_b32 s62, s62, 16\ns_or_b32 s57, s57, s62\ns_or_b32 s57, s57, 0x80000000')
        e(f'v_mov_b32 v{TG}, s56\nv_mov_b32 v{TG+1}, s57\ns_mov_b64 exec, 1')
        e(f'buffer_store_dwordx2 v[{TG}:{TG+1}], v{vT2}, s[40:43], 0 offen sc1\ns_mov_b64 exec, -1')
        if self.ddepth:
            c('zero the progress counters (they only steer queue depth)')
            e(f'v_lshlrev_b32 v{vT}, 8, v1\ns_mov_b32 s56, {W_CT:#x}')
            nz = 8 if self.ltab else 4
            for i in range(nz):
                e(f'buffer_store_dword v{vT2}, v{vT}, s[36:39], s56 offen sc1')
                if i < nz - 1: e('s_add_u32 s56, s56, 0x4000')
        e('L_a_noz:')
        if 'preap' in self.dbg:
            e(f's_mul_i32 s56, s44, {W_BSTRIDE:#x}\ns_lshl_b32 s57, s45, 12\ns_add_u32 s56, s56, s57\ns_lshl_b32 s57, s3, 10\ns_add_u32 s56, s56, s57\ns_add_u32 s56, s56, {W_AP:#x}')
            e(f'buffer_load_dwordx4 v[116:119], v{vL16}, s[36:39], s56 offen sc1')
        if 'preq' in self.dbg:
            e('s_cmp_ge_u32 s3, 2\ns_cbranch_scc1 L_a_nopreq')
            e(f's_mul_i32 s56, s44, {W_BSTRIDE:#x}\ns_lshl_b32 s57, s45, 11\ns_add_u32 s56, s56, s57\ns_lshl_b32 s57, s3, 10\ns_add_u32 s56, s56, s57')
            e(f'buffer_load_dwordx4 v[120:123], v{vL16}, s[36:39], s56 offen sc1')
            e('L_a_nopreq:')
        if 'pre' in self.dbg or 'pre1' in self.dbg:
            e('s_cmp_ge_u32 s3, 2\ns_cbranch_scc1 L_a_nopre')
            e(f's_mul_i32 s56, s44, {W_BSTRIDE:#x}\ns_lshl_b32 s57, s45, 11\ns_add_u32 s56, s56, s57\ns_lshl_b32 s57, s3, 10\ns_add_u32 s56, s56, s57')
            if 'pre1' in self.dbg: e('s_mov_b64 exec, 1')
            e(f'buffer_load_dwordx4 v[120:123], v{vL16}, s[36:39], s56 offen sc1')
            e(f's_lshl_b32 s56, s46, 8\ns_lshl_b32 s57, s3, 7\ns_add_u32 s56, s56, s57')
            if 'pre1' in self.dbg: e('s_mov_b64 exec, 0xff\ns_add_u32 s56, s56, 0x10000')
            e(f'buffer_load_dwordx4 v[124:127], v{vSt}, s[36:39], s56 offen sc1')
            if 'pre1' in self.dbg: e('s_mov_b64 exec, -1')
            e('L_a_nopre:')
        self.srd(28, 4, 5, None, 0x4000)
        self.srd(32, 10, 11, 50, size_sgpr=51)
        for i in range(4): e(f'buffer_load_dwordx4 v[{X+4*i}:{X+4*i+3}], v{vX}, s[28:31], 0 offen offset:{i*512}')
        e(f'buffer_load_dwordx4 v[{XFr}:{XFr+3}], v{vX}, s[28:31], s53 offen')
        for i in range(8):
            e(f'buffer_load_dwordx4 v{vWq}, s[32:35], s55 offen {WP} lds')
            if i < 7: e(f's_add_u32 m0, m0, 0x400\ns_add_u32 s55, s55, 0x10000\ns_nop 0')
        c('a=2: clear own OX slot with the sentinel')
        e('s_cmp_lg_u32 s3, 2\ns_cbranch_scc1 L_a_nocl')
        for k in range(4): e(f'v_mov_b32 v{U+k}, -1')
        e(f's_lshl_b32 s54, s46, 8\ns_add_u32 s54, s54, {W_OX:#x}\ns_mov_b64 exec, 0xffff')
        e(f'buffer_store_dwordx4 v[{U}:{U+3}], v{vL16}, s[36:39], s54 offen sc1\ns_mov_b64 exec, -1\ns_nop 0')
        e('L_a_nocl:')
        e(f's_lshl_b32 s61, s44, 14\ns_lshl_b32 s55, s3, 12\ns_add_u32 s61, s61, s55\ns_lshl_b32 s55, s45, 7\ns_add_u32 s61, s61, s55\ns_add_u32 s61, s61, {W_AP:#x}')
        self.stamp(14)
        c('LN stats')
        e('s_waitcnt vmcnt(9)')
        self.stamp(15)
        for i in range(16):
            e(f'v_lshlrev_b32 v{U+2*i}, 16, v{X+i}\nv_and_b32 v{U+2*i+1}, 0xffff0000, v{X+i}')
        S0 = 12
        e(f'v_pk_add_f32 v[{S0}:{S0+1}], v[{U}:{U+1}], v[{U+2}:{U+3}]\nv_pk_add_f32 v[{S0+2}:{S0+3}], v[{U+4}:{U+5}], v[{U+6}:{U+7}]')
        for i in range(4, 16):
            a = S0 + 2 * (i & 1)
            e(f'v_pk_add_f32 v[{a}:{a+1}], v[{a}:{a+1}], v[{U+2*i}:{U+2*i+1}]')
        e(f'v_pk_add_f32 v[{S0}:{S0+1}], v[{S0}:{S0+1}], v[{S0+2}:{S0+3}]\nv_add_f32 v{S0}, v{S0}, v{S0+1}')
        self.ror_reduce('v_add_f32', S0)
        self.swap_reduce('v_add_f32', S0, vT, 16)
        M = X
        e(f'v_mul_f32 v{M}, {f2u(-1.0/1024):#x}, v{S0}\nv_mov_b32 v{M+1}, v{M}')
        for i in range(16): e(f'v_pk_add_f32 v[{U+2*i}:{U+2*i+1}], v[{U+2*i}:{U+2*i+1}], v[{M}:{M+1}]')
        e(f'v_pk_mul_f32 v[{S0}:{S0+1}], v[{U}:{U+1}], v[{U}:{U+1}]\nv_pk_mul_f32 v[{S0+2}:{S0+3}], v[{U+2}:{U+3}], v[{U+2}:{U+3}]')
        for i in range(2, 16):
            a = S0 + 2 * (i & 1)
            e(f'v_pk_fma_f32 v[{a}:{a+1}], v[{U+2*i}:{U+2*i+1}], v[{U+2*i}:{U+2*i+1}], v[{a}:{a+1}]')
        e(f'v_pk_add_f32 v[{S0}:{S0+1}], v[{S0}:{S0+1}], v[{S0+2}:{S0+3}]\nv_add_f32 v{S0}, v{S0}, v{S0+1}')
        self.ror_reduce('v_add_f32', S0)
        self.swap_reduce('v_add_f32', S0, vT, 16)
        RR, RC = S0, S0 + 1
        e(f'v_mul_f32 v{RR}, {f2u(1.0/1024):#x}, v{S0}'); self.rnd_bf16(RR)
        e(f'v_add_f32 v{RR}, {f2u(1e-5):#x}, v{RR}'); self.rnd_bf16(RR)
        e(f'v_sqrt_f32 v{RR}, v{RR}\ns_nop 0'); self.rnd_bf16(RR)
        e(f'v_rcp_f32 v{RC}, v{RR}')
        self.rnd_bf16(M)
        def norm(src, n):
            for i in range(n):
                a, b2, q0, q1 = U, U + 1, U + 2, U + 3
                e(f'v_lshlrev_b32 v{a}, 16, v{src+i}\nv_and_b32 v{b2}, 0xffff0000, v{src+i}')
                e(f'v_add_f32 v{a}, v{a}, v{M}\nv_add_f32 v{b2}, v{b2}, v{M}')
                e(f'v_cvt_pk_bf16_f32 v{b2}, v{a}, v{b2}')
                e(f'v_lshlrev_b32 v{a}, 16, v{b2}\nv_and_b32 v{b2}, 0xffff0000, v{b2}')
                e(f'v_mul_f32 v{q0}, v{a}, v{RC}\nv_mul_f32 v{q1}, v{b2}, v{RC}')
                e(f'v_fma_f32 v{a}, -v{q0}, v{RR}, v{a}\nv_fma_f32 v{b2}, -v{q1}, v{RR}, v{b2}')
                e(f'v_fmac_f32 v{q0}, v{a}, v{RC}\nv_fmac_f32 v{q1}, v{b2}, v{RC}')
                e(f'v_cvt_pk_bf16_f32 v{src+i}, v{q0}, v{q1}')
        e('s_waitcnt vmcnt(8)')
        e('s_cmp_lg_u32 s3, 3\ns_cbranch_scc1 L_a_nn1')
        if 'nonon' in self.dbg: e(f'v_mov_b32 v{NV}, 0x01230457\nv_mov_b32 v{NV+1}, 0x89ab0cde')
        else: e(f'buffer_load_dwordx2 v[{NV}:{NV+1}], v{vT2}, s[40:43], 0 offen sc1')
        e('L_a_nn1:')
        norm(XFr, 4)
        e(f's_lshl_b32 s54, s3, 10\ns_add_u32 s54, s54, {L_XF:#x}\nv_add_u32 v{vT}, s54, v{vL16}')
        e(f'ds_write_b128 v{vT}, v[{XFr}:{XFr+3}]')
        e(f'v_bfe_u32 v{vT}, v1, 2, 2\nv_lshl_add_u32 v{vX}, v{vG}, 3, v{vT}')
        vT3 = 15; vBa = 14; vCc = 13
        e(f'v_and_b32 v{vCc}, 3, v1\nv_lshlrev_b32 v{vCc}, 3, v{vCc}')
        e(f'v_lshl_add_u32 v{vTr}, v{vX}, 8, v{vCc}\ns_lshl_b32 s54, s3, 6\nv_add_u32 v{vTr}, s54, v{vTr}')
        e(f'v_lshl_add_u32 v{vT3}, v{vX}, 7, v{vCc}\nv_add_u32 v{vT3}, s54, v{vT3}')
        e('s_mov_b32 s58, 0xff00ff00\ns_mov_b32 s59, 0xff00ff00\ns_mov_b32 s100, 0\ns_mov_b32 s101, -1\ns_mov_b32 s49, ' + hex(0xffffffff ^ TMASK))
        e(f'v_lshlrev_b32 v{vBa}, 9, v{vC7}\nv_lshl_add_u32 v{vBa}, v{vG}, 4, v{vBa}\nv_add_u32 v{vBa}, {L_XF:#x}, v{vBa}')
        e('s_waitcnt vmcnt(0)')
        e('s_cmp_lg_u32 s3, 3\ns_cbranch_scc1 L_a_nn2\ns_mov_b32 s57, 0')
        e('L_npoll:')
        e(f'v_readfirstlane_b32 s56, v{NV+1}\ns_cmp_lg_u32 s56, 0\ns_cbranch_scc1 L_ngo')
        e(f'buffer_load_dwordx2 v[{NV}:{NV+1}], v{vT2}, s[40:43], 0 offen sc1')
        e('s_add_u32 s57, s57, 1\ns_waitcnt vmcnt(0)\ns_cmp_lt_u32 s57, 0x10000\ns_cbranch_scc1 L_npoll\nL_ngo:')
        e(f'ds_write_b64 v{vCnt}, v[{NV}:{NV+1}] offset:{L_NONCE-L_CNT}')
        e('L_a_nn2:')
        self.arrive(0, vCnt, vT, 56)
        self.lds_wait(0, 4, vCnt, vT, 56)
        self.stamp(8)
        e(f'ds_read_b64 v[{NV}:{NV+1}], v{vCnt} offset:{L_NONCE-L_CNT}')
        BB = 80; AW = 96; D0 = 72; D1 = 76
        B1 = 80; A1 = 112
        for kk in range(8): e(f'ds_read_b128 v[{B1+4*kk}:{B1+4*kk+3}], v{vBa} offset:{kk*64}')
        def tile128(base, va=vTr):
            for ct in range(2):
                for kk in range(4):
                    for hh in range(2):
                        r = AW + (ct * 4 + kk) * 4 + hh * 2
                        e(f'ds_read_b64_tr_b16 v[{r}:{r+1}], v{va} offset:{base + kk*8192 + hh*1024 + ct*32}')
                if ct == 0: e('s_waitcnt lgkmcnt(6)')
        def mm128(acc=False):
            for kk in range(4):
                for ct in range(2):
                    d = (D0, D1)[ct]; r = AW + (ct * 4 + kk) * 4
                    cc = '0' if kk == 0 and not acc else f'v[{d}:{d+3}]'
                    e(f'v_mfma_f32_16x16x32_bf16 v[{d}:{d+3}], v[{r}:{r+3}], v[{BB+4*kk}:{BB+4*kk+3}], {cc}')
        def merge_tag(da, db, tg, bits, smask):
            for i in range(4): e(f'v_cndmask_b32 v{da+i}, v{da+i}, v{db+i}, s[58:59]')
            for i in range(4): e(f'v_add_u32 v{da+i}, {1 << (bits-1):#x}, v{da+i}')
            for i in range(4): e(f'v_and_or_b32 v{da+i}, v{da+i}, s{smask}, v{tg+i}')
        def pair256(second, tg):
            for mat in range(2):
                for kk in range(8):
                    for hh in range(2):
                        r = A1 + (mat * 8 + kk) * 4 + hh * 2
                        e(f'ds_read_b64_tr_b16 v[{r}:{r+1}], v{vT3} offset:{mat*second + kk*4096 + hh*512}')
                    if kk % 4 == 3: e('s_waitcnt lgkmcnt(0)')
            for kk in range(8):
                for mat in range(2):
                    d = (D0, D1)[mat]; r = A1 + (mat * 8 + kk) * 4
                    cc = '0' if kk == 0 else f'v[{d}:{d+3}]'
                    e(f'v_mfma_f32_16x16x32_bf16 v[{d}:{d+3}], v[{r}:{r+3}], v[{B1+4*kk}:{B1+4*kk+3}], {cc}')
            e('s_nop 7')
            merge_tag(D0, D1, tg, 8, 60)
        def gpoll(name, n, emit_loads, sleep, tg, mask):
            e(f's_mov_b32 s57, 0\n{name}:')
            emit_loads()
            e(f's_add_u32 s57, s57, 1\ns_waitcnt vmcnt(0)')
            self.untag(U, n, tg, vT, vT2, mask)
            e(f's_cbranch_vccz {name}_go')
            if sleep: e(f's_sleep {sleep}')
            e(f's_cmp_lt_u32 s57, 0x10000\ns_cbranch_scc1 {name}\n{name}_go:')
        e('s_waitcnt lgkmcnt(0)')
        self.tags_from(NV, TG)
        TC = 20; TP = 24
        e(f's_mov_b32 s60, 0xffffff00\ns_mov_b32 s50, 0xaaaaaaaa\ns_mov_b32 s51, 0xaaaaaaaa\ns_mov_b32 s52, 0xffff0000\ns_mov_b32 s53, 0xffff0000')
        e(f'v_cndmask_b32 v{TC+3}, v{NV}, v{NV+1}, s[50:51]\nv_cndmask_b32 v{TP+3}, v{NV}, v{NV+1}, s[52:53]')
        for T in (TC, TP):
            e(f'v_and_b32 v{T}, 0xff, v{T+3}\nv_bfe_u32 v{T+1}, v{T+3}, 8, 8\nv_bfe_u32 v{T+2}, v{T+3}, 16, 8\nv_lshrrev_b32 v{T+3}, 24, v{T+3}')
        e('s_cmp_ge_u32 s3, 2\ns_cbranch_scc1 L_a_b1')
        c('q partial (a = 0,1): 32 columns each')
        assert L_WQ == 0
        pair256(32, TP)
        e(f's_lshl_b32 s54, s46, 8\ns_lshl_b32 s55, s3, 7\ns_add_u32 s54, s54, s55')
        e(f'buffer_store_dwordx4 v[{D0}:{D0+3}], v{vSt}, s[36:39], s54 offen {self.qpol} ')
        self.stamp(9)
        e('s_cmp_lg_u32 s3, 0\ns_cbranch_scc1 L_a_b1')
        c('wave a=0: gather q')
        e(f's_mul_i32 s54, s44, {W_BSTRIDE:#x}\ns_lshl_b32 s55, s45, 11\ns_add_u32 s54, s54, s55')
        if self.qj: self.lds_wait(12, 1, vCnt, vT, 56, sleep=2)
        def ql():
            for i in range(2): e(f'buffer_load_dwordx4 v[{U+4*i}:{U+4*i+3}], v{vL16}, s[36:39], s54 offen offset:{i*1024} {self.qpol}')
        gpoll('L_qpoll', 2, ql, self.qsleep, TC, 0xff)
        for k in range(4): e(f'v_permlane32_swap_b32 v{U+k}, v{U+4+k}')
        for k in range(4): e(f'v_add_f32 v{U+k}, v{U+k}, v{U+4+k}')
        for k in range(4): e(f'v_mov_b32 v{U+4+k}, v{U+k}')
        e(f'v_lshrrev_b32 v{vT}, 5, v1\nv_lshlrev_b32 v{vT}, 7, v{vT}\nv_lshl_add_u32 v{vT}, v{vC}, 3, v{vT}\nv_add_u32 v{vT}, {L_QL:#x}, v{vT}')
        for k in range(4): e(f'v_permlane16_swap_b32 v{U+k}, v{U+4+k}')
        for k in range(4): e(f'v_add_f32 v{U+k}, v{U+k}, v{U+4+k}')
        e(f'v_cvt_pk_bf16_f32 v{U}, v{U}, v{U+1}\nv_cvt_pk_bf16_f32 v{U+1}, v{U+2}, v{U+3}')
        e(f'ds_write_b64 v{vT}, v[{U}:{U+1}]')
        e('L_a_b1:')
        e(f's_lshl_b32 s54, s3, 5\ns_sub_u32 s54, {L_GATE:#x}, s54\nv_add_u32 v{vT3}, s54, v{vT3}')
        e('s_waitcnt lgkmcnt(0)')
        self.stamp(10)
        e('s_barrier')
        c('FFN stage 1')
        e('s_cmp_ge_u32 s46, 224\ns_cbranch_scc1 L_a_s1done')
        if self.skip >= 3: e('s_branch L_a_s1done')
        pair256(0x8000, TC)
        e(f's_lshl_b32 s54, s46, 12\ns_lshl_b32 s55, s3, 10\ns_add_u32 s54, s54, s55\ns_add_u32 s54, s54, {W_GU:#x}')
        e(f'buffer_store_dwordx4 v[{D0}:{D0+3}], v{vL16}, s[36:39], s54 offen {self.fpol}')
        e('L_a_s1done:')
        self.arrive(2, vCnt, vT, 56)
        self.lds_wait(2, 4, vCnt, vT, 56)
        c('wo tile DMA')
        e('s_lshl_b32 s50, s45, 18\ns_lshl_b32 s51, s44, 8\ns_add_u32 s50, s50, s51\ns_sub_u32 s51, 0x800000, s50')
        self.srd(32, 12, 13, 50, size_sgpr=51)
        e(f'v_lshlrev_b32 v{vT}, 11, v{vG}\nv_lshl_add_u32 v{vT}, v{vC}, 4, v{vT}')
        e(f's_lshl_b32 s54, s3, 13\ns_add_u32 m0, s54, {L_WO:#x}\ns_lshl_b32 s55, s3, 16\ns_nop 0')
        for i in range(8 if self.skip < 4 else 0):
            if self.wod and i >= self.wod: e(f's_waitcnt vmcnt({self.wod-1})')
            e(f'buffer_load_dwordx4 v{vT}, s[32:35], s55 offen {WP} lds')
            if i < 7: e(f's_add_u32 m0, m0, 0x400\ns_add_u32 s55, s55, 0x2000\ns_nop 0')
        c('down tile operands')
        e(f'v_add_u32 v{vT3}, {L_DOWN:#x}, v{vTr}')
        tile128(0, vT3)
        e(f'v_lshrrev_b32 v{vT}, 5, v1\nv_lshlrev_b32 v{vBa}, 8, v{vT}\nv_lshl_add_u32 v{vBa}, v{vC7}, 5, v{vBa}\nv_and_b32 v{vT}, 1, v{vG}\nv_lshl_add_u32 v{vBa}, v{vT}, 4, v{vBa}\nv_add_u32 v{vBa}, {L_HL:#x}, v{vBa}')
        e('s_waitcnt lgkmcnt(0)')
        for ct in range(2):
            for i in range(4):
                r = AW + (ct * 4 + 3) * 4 + i
                e(f'v_cndmask_b32 v{r}, v{r}, 0, s[100:101]')
        e('s_cmp_lg_u32 s3, 0\ns_cbranch_scc1 L_a_hw')
        c('wave a=0: reduce one 16-column piece of g,u -> h ; then fetch the 7 pieces this workgroup needs')
        if self.skip >= 2: e('s_branch L_a_hdone')
        e('s_cmp_ge_u32 s46, 224\ns_cbranch_scc1 L_a_s15done')
        if self.gwait: self.lds_wait(8, self.gwait, vCnt, vT, 56, sleep=8)
        e(f's_lshl_b32 s54, s47, 14\ns_lshl_b32 s55, s48, 10\ns_add_u32 s54, s54, s55\ns_add_u32 s54, s54, {W_GU:#x}')
        e('s_add_u32 s55, s54, 0x1000\ns_add_u32 s50, s54, 0x2000\ns_add_u32 s51, s54, 0x3000')
        def gl():
            for k, so in enumerate((54, 55, 50, 51)): e(f'buffer_load_dwordx4 v[{U+4*k}:{U+4*k+3}], v{vL16}, s[36:39], s{so} offen {self.fpol}')
        gpoll('L_gpoll', 4, gl, 32, TC, 0xff)
        e(f'v_lshlrev_b32 v{vT}, 6, v{vC7}\nv_lshl_add_u32 v{vT}, v{vG}, 4, v{vT}\ns_lshl_b32 s54, s46, 9\ns_add_u32 s54, s54, {W_H:#x}')
        for i in range(1, 4):
            for k in range(4): e(f'v_add_f32 v{U+k}, v{U+k}, v{U+4*i+k}')
        for k in range(4): self.rnd_bf16(U + k)
        e('s_nop 1')
        for k in range(4): e(f'v_mul_f32_dpp v{U+4+k}, v{U+k}, v{U+k} row_ror:8 row_mask:0xf bank_mask:0xf')
        for k in range(4): self.rnd_bf16(U + 4 + k)
        for k in range(4): e(f'v_or_b32 v{U+4+k}, v{U+4+k}, v{TG+k}')
        e('s_not_b64 exec, s[58:59]')
        e(f'buffer_store_dwordx4 v[{U+4}:{U+7}], v{vT}, s[36:39], s54 offen {self.fpol}\ns_mov_b64 exec, -1')
        e('L_a_s15done:')
        if self.hwait: self.lds_wait(8, self.hwait, vCnt, vT, 56, sleep=8)
        e(f's_mul_i32 s54, s45, {7*512}\ns_add_u32 s54, s54, {W_H:#x}\nv_and_b32 v{vCc}, 0x1ff, v{vL16}')
        def hl():
            for k in range(3): e(f'buffer_load_dwordx4 v[{U+4*k}:{U+4*k+3}], v{vL16}, s[36:39], s54 offen offset:{k*1024} {self.fpol}')
            e(f'buffer_load_dwordx4 v[{U+12}:{U+15}], v{vCc}, s[36:39], s54 offen offset:3072 {self.fpol}')
        gpoll('L_hpoll', 4, hl, 32, TG, TMASK)
        e(f'v_lshlrev_b32 v{vT}, 3, v1\nv_add_u32 v{vT}, {L_HL:#x}, v{vT}')
        for k in range(4):
            e(f'v_cvt_pk_bf16_f32 v{U+4*k}, v{U+4*k}, v{U+4*k+1}\nv_cvt_pk_bf16_f32 v{U+4*k+1}, v{U+4*k+2}, v{U+4*k+3}')
            e(f'ds_write_b64 v{vT}, v[{U+4*k}:{U+4*k+1}] offset:{k*512}')
        e('L_a_hdone:')
        self.arrive(3, vCnt, vT, 56)
        e('L_a_hw:')
        self.lds_wait(3, 1, vCnt, vT, 56, sleep=8)
        for kk in range(4): e(f'ds_read_b128 v[{BB+4*kk}:{BB+4*kk+3}], v{vBa} offset:{kk*512}')
        e('s_waitcnt lgkmcnt(0)')
        mm128()
        e('s_waitcnt vmcnt(0)')
        self.arrive(4, vCnt, vT, 56)
        self.lds_wait(4, 4, vCnt, vT, 56)
        self.stamp(11)
        c('preload wo operands')
        tile128(L_WO)
        e('s_cmp_eq_u32 s3, 1\ns_cbranch_scc1 L_a_stats\ns_cmp_eq_u32 s3, 2\ns_cbranch_scc1 L_a_ctl\ns_cmp_lg_u32 s3, 0\ns_cbranch_scc1 L_a_b2')
        c('wave a=0: residual input')
        e(f's_lshl_b32 s54, s2, 6\nv_lshlrev_b32 v{vT}, 3, v{vC7}')
        e(f'buffer_load_dwordx2 v[{U}:{U+1}], v{vT}, s[28:31], s54 offen')
        e(f'v_lshlrev_b32 v{vT}, 4, v{vC7}\nv_add_u32 v{vT}, {L_FF:#x}, v{vT}\ns_waitcnt vmcnt(0)')
        e(f'v_lshlrev_b32 v{U+4}, 16, v{U}\nv_and_b32 v{U+5}, 0xffff0000, v{U}\nv_lshlrev_b32 v{U+6}, 16, v{U+1}\nv_and_b32 v{U+7}, 0xffff0000, v{U+1}')
        e(f'ds_write_b128 v{vT}, v[{U+4}:{U+7}]')
        self.stamp(12)
        e('s_branch L_a_b2')
        c('wave a=2: queue-depth controller (rank of this workgroup at each checkpoint)')
        e('L_a_ctl:')
        if self.ddepth:
            e(f's_bfe_u32 s55, s2, 0x10003\ns_bfe_u32 s54, s2, 0x20006\ns_lshl_b32 s54, s54, 1\ns_or_b32 s55, s55, s54\ns_lshl_b32 s55, s55, 13\ns_add_u32 s55, s55, {W_CT:#x}')
            tab = 0
            for r, dty in enumerate(self.table): tab |= dty << (4 * r)
            e(f's_mov_b32 s50, {tab & 0xffffffff:#x}\ns_mov_b32 s51, {tab >> 32:#x}')
            cps = self.cps or list(range(self.cstart, self.usw - 1, self.cper))
            e(f's_mov_b32 s57, 0\ns_mov_b32 s53, 0\nv_mov_b32 v{vT2}, 0\ns_mov_b64 exec, 1')
            for cp in cps + ([self.fcp] if self.fcp else []):
                fin = self.fcp and cp == self.fcp
                lw = self.lab('L_ctl'); lg = self.lab('L_ctl_go')
                e(f'{lw}:')
                e(f's_cmp_ge_u32 s57, 0x100000\ns_cbranch_scc1 L_ctl_done')
                e(f'ds_read_b32 v{vT}, v{vCnt} offset:32\ns_add_u32 s57, s57, 1\ns_waitcnt lgkmcnt(0)\nv_readfirstlane_b32 s56, v{vT}')
                e(f's_cmp_ge_u32 s56, {cp}\ns_cbranch_scc1 {lg}\ns_sleep {self.csleep}\ns_branch {lw}')
                e(f'{lg}:')
                e(f's_add_u32 s54, s55, {cp << 8:#x}\nv_mov_b32 v{vT}, 1')
                if 'noat' not in self.dbg: e(f'buffer_atomic_add v{vT}, v{vT2}, s[36:39], s54 offen sc0 sc1')
                if fin:
                    ut = 0
                    for r, dty in enumerate(self.utab): ut |= dty << (4 * r)
                    e(f's_mov_b32 s50, {ut & 0xffffffff:#x}\ns_mov_b32 s51, {ut >> 32:#x}')
                e(f's_waitcnt vmcnt(0)\nv_readfirstlane_b32 s54, v{vT}\ns_and_b32 s54, s54, 30\ns_lshl_b32 s54, s54, 1\ns_lshr_b64 s[62:63], s[50:51], s54\ns_and_b32 s54, s62, 15')
                if fin:
                    e(f'v_mov_b32 v{vT}, s54\nds_max_u32 v{vCnt}, v{vT} offset:24')
                else:
                    if self.leak:
                        e(f's_lshr_b32 s53, s53, {self.leak}\ns_add_u32 s54, s54, s53\ns_min_u32 s54, s54, 4\ns_mov_b32 s53, s54')
                    e(f's_add_u32 s56, s54, {cp + 2}\ns_cmp_eq_u32 s54, 0\ns_cselect_b32 s56, 0, s56\nv_mov_b32 v{vT}, s56')
                    e(f'ds_write_b32 v{vCnt}, v{vT} offset:20')
            e('L_ctl_done:\ns_mov_b64 exec, -1')
        e('s_branch L_a_b2')
        c('wave a=1: softmax statistics')
        e('L_a_stats:')
        self.lds_wait(7, 4, vCnt, vT, 56, sleep=32)
        SV = 128
        e(f'v_mov_b32 v{vT}, {L_MW:#x}\nds_read_b128 v[{U}:{U+3}], v{vT}')
        vSl = vL16
        for i in range(16):
            e(f'ds_read_b128 v[{SV+4*i}:{SV+4*i+3}], v{vSl} offset:{L_S + i*1024}')
            if i % 8 == 7: e('s_waitcnt lgkmcnt(0)')
        e(f'v_max3_f32 v{vT}, v{U}, v{U+1}, v{U+2}\nv_max_f32 v{vT}, v{vT}, v{U+3}')
        e(f'v_mul_f32 v{vT}, {f2u(-1.4426950408889634):#x}, v{vT}\ns_mov_b32 s53, {f2u(1.4426950408889634):#x}')
        for i in range(64): e(f'v_fma_f32 v{SV+i}, v{SV+i}, s53, v{vT}')
        for i in range(64): e(f'v_exp_f32 v{SV+i}, v{SV+i}')
        for k in range(4): e(f'v_fma_f32 v{U+k}, v{U+k}, s53, v{vT}')
        for k in range(4): e(f'v_exp_f32 v{U+k}, v{U+k}')
        n = 32
        while n >= 2:
            for i in range(0, n, 2): e(f'v_pk_add_f32 v[{SV+i}:{SV+i+1}], v[{SV+i}:{SV+i+1}], v[{SV+n+i}:{SV+n+i+1}]')
            n //= 2
        e(f'v_add_f32 v{SV}, v{SV}, v{SV+1}')
        self.ror_reduce('v_add_f32', SV)
        self.swap_reduce('v_add_f32', SV, vT, 16)
        self.swap_reduce('v_add_f32', SV, vT, 32)
        e(f'v_rcp_f32 v{SV}, v{SV}\ns_nop 0')
        for k in range(4): e(f'v_mul_f32 v{U+k}, v{U+k}, v{SV}')
        e(f'v_mov_b32 v{vT}, {L_FW:#x}\nds_write_b128 v{vT}, v[{U}:{U+3}]')
        e('L_a_b2:')
        e(f'v_mul_u32_u24 v{vBa}, 272, v{vC7}\nv_lshl_add_u32 v{vBa}, v{vG}, 4, v{vBa}\nv_add_u32 v{vBa}, {L_OL:#x}, v{vBa}')
        e('s_waitcnt lgkmcnt(0)')
        e('s_barrier')
        e('s_barrier')
        if 'st3' in self.dbg: self.stamp(12)
        for kk in range(4): e(f'ds_read_b128 v[{BB+4*kk}:{BB+4*kk+3}], v{vBa} offset:{kk*64}')
        e('s_waitcnt lgkmcnt(0)')
        mm128(True)
        e('s_nop 7')
        merge_tag(D0, D1, TG, TB, 49)
        e(f'buffer_store_dwordx4 v[{D0}:{D0+3}], v{vSt}, s[36:39], s61 offen sc1')
        if 'b4x' in self.dbg: e('s_barrier')
        if self.stamps:
            self.stamp(13)
            e('s_cmp_lg_u32 s3, 0\ns_cbranch_scc1 L_end')
            self.flush_stamps([8, 9, 10, 11, 12, 13, 14, 15], 200)

if __name__ == '__main__':
    import argparse
    ap = argparse.ArgumentParser()
    ap.add_argument('out'); ap.add_argument('--depth', type=int, default=5); ap.add_argument('--pdepth', type=int, default=5)
    ap.add_argument('--stamps', action='store_true'); ap.add_argument('--wpol', default='nt')
    ap.add_argument('--edepth', type=int, default=31); ap.add_argument('--usw', type=int, default=28); ap.add_argument('--ddepth', type=int, default=0); ap.add_argument('--thr', type=int, default=48); ap.add_argument('--cstart', type=int, default=6); ap.add_argument('--dbg', default=''); ap.add_argument('--cper', type=int, default=4); ap.add_argument('--table', default='0000000000112234'); ap.add_argument('--qsleep', type=int, default=0); ap.add_argument('--gwait', type=int, default=2); ap.add_argument('--hwait', type=int, default=4); ap.add_argument('--csleep', type=int, default=4); ap.add_argument('--burst', type=int, default=0); ap.add_argument('--xs', default='sc1'); ap.add_argument('--qj', type=int, default=0); ap.add_argument('--qpol', default='sc1'); ap.add_argument('--fpol', default='sc1'); ap.add_argument('--xl', default='sc1'); ap.add_argument('--prio', type=int, default=0); ap.add_argument('--prof', action='store_true'); ap.add_argument('--skip', type=int, default=0); ap.add_argument('--pmask', type=lambda x: int(x, 16), default=0); ap.add_argument('--ppol', default='none'); ap.add_argument('--cps', default=''); ap.add_argument('--fcp', type=int, default=0); ap.add_argument('--utab', default='0000000000000000'); ap.add_argument('--uq', type=int, default=0); ap.add_argument('--usync', type=int, default=0); ap.add_argument('--leak', type=int, default=0); ap.add_argument('--amap', default='12,14'); ap.add_argument('--bmap', default=''); ap.add_argument('--xr', default=''); ap.add_argument('--dpat', default=''); ap.add_argument('--ppat', default=''); ap.add_argument('--epat', default=''); ap.add_argument('--ltab', default=''); ap.add_argument('--lq', type=int, default=2); ap.add_argument('--fp2', type=int, default=0); ap.add_argument('--gdepth', default=''); ap.add_argument('--wod', type=int, default=0); ap.add_argument('--wqd', type=int, default=0); ap.add_argument('--peel', type=int, default=-1)
    a = ap.parse_args()
    open(a.out, 'w').write(Gen(a.depth, a.pdepth, a.stamps, a.wpol.replace('none', ''), a.edepth, a.usw, a.prio, a.prof, a.skip, a.ddepth, a.thr, a.cstart, a.dbg, a.cper, a.table, a.qsleep, a.gwait, a.hwait, a.csleep, a.burst, a.xs, a.xl, a.qj, a.qpol, a.fpol, a.pmask, a.ppol, a.cps, a.fcp, a.utab, a.uq, a.usync, a.leak, a.amap, a.bmap, a.xr, a.dpat, a.ppat, a.epat, a.ltab, a.lq, a.fp2, a.gdepth, a.wod, a.wqd, a.peel).build())
```

```python
import sys, struct
KN = 'parallel_sum__mha_block_cached__glu_gated_bilinear__decode_kernel'

def f2u(x): return struct.unpack('<I', struct.pack('<f', x))[0]

L_WQ = 0x00000
L_S = 0x00000
L_GATE = 0x08000
L_WO = 0x08000
L_UP = 0x10000
L_DOWN = 0x18000
L_XQ = 0x20000
L_XF = 0x20800
L_OL = 0x20800
L_QL = 0x21800
L_HL = 0x21900
L_DP = 0x22100
L_MW = 0x22900
L_FW = 0x22910
L_FF = 0x22920
L_CNT = 0x229a0
L_ZERO = 0x229e0
L_NONCE = 0x22a20
LDS_SIZE = 0x22a80
W_BSTRIDE = 0x80000
W_QP = 0x00000
W_AP = 0x20000
W_GU = 0x400000
W_OX = 0x500000
W_H = 0x520000
W_CT = 0x540000
W_CL = 0x550000
W_SIZE = 0x600000
W_STAMP = 0x20000000

TB = 12
TMASK = (1 << TB) - 1

class Gen:
    def __init__(self, depth=5, pdepth=5, stamps=False, wpol='nt', edepth=31, usw=28, prio=0, prof=False, skip=0, ddepth=0, thr=48, cstart=6, dbg='', cper=4, table='0000000000112234', qsleep=0, gwait=2, hwait=4, csleep=4, burst=0, xs='sc1', xl='sc1', qj=0, qpol='sc1', fpol='sc1', pmask=0, ppol='', cps='', fcp=0, utab='', uq=0, usync=0, leak=0, amap='12,14', bmap='', xr='', dpat='', ppat='', epat='', ltab='', lq=2, fp2=0, gdepth='', wod=0, wqd=0, peel=-1, wolate=0, wog=32, d0=0):
        self.d0 = d0
        self.wog = wog
        self.wolate = wolate
        self.peel = peel
        self.wod = wod; self.wqd = wqd
        self.gdepth = [int(x) for x in gdepth]
        self.fp2 = fp2
        self.ltab = [int(ch, 16) for ch in ltab]; self.lq = lq
        self.dpat = [int(x) for x in dpat] or [depth]; self.ppat = [int(x) for x in ppat] or [pdepth]; self.epat = [int(x, 16) for x in epat] or [ddepth]; self.pc = 0
        self.bmap = [int(x) for x in bmap.split(',')] if bmap else None; self.xr = [int(x, 0) for x in xr.split(',')] if xr else None
        self.pw, self.pu = [int(x) for x in amap.split(',')]
        self.cps = [int(x) for x in cps.split(',')] if cps else None; self.fcp = fcp; self.utab = [int(ch, 16) for ch in utab]; self.uq = uq; self.usync = usync; self.leak = leak
        self.pmask = pmask; self.ppol = ppol.replace('+', ' ').replace('none', '')
        self.qj = qj; self.qpol = qpol.replace('+', ' '); self.fpol = fpol.replace('+', ' ')
        self.xs = xs.replace('+', ' '); self.xl = xl.replace('+', ' ')
        self.burst = burst
        self.qsleep = qsleep; self.gwait = gwait; self.hwait = hwait; self.csleep = csleep
        self.cper = cper; self.table = [int(ch, 16) for ch in table]
        self.dbg = set(dbg.split(','))
        self.skip = skip; self.ddepth = ddepth; self.thr = thr; self.cstart = cstart
        self.edepth = edepth; self.usw = usw; self.prio = prio; self.prof = prof
        self.L = []; self.depth = depth; self.pdepth = pdepth; self.stamps = stamps; self.uid = 0; self.wpol = wpol
    def e(self, s):
        for l in s.split('\n'): self.L.append('    ' + l.strip() if not l.strip().endswith(':') else l.strip())
    def c(self, s): self.L.append('    ; ' + s)
    def lab(self, p='L'):
        self.uid += 1; return f'{p}_{self.uid}'
    def srd(self, d, plo, phi, off_lo=None, size=None, size_sgpr=None):
        e = self.e
        if off_lo is None:
            e(f's_mov_b32 s{d}, s{plo}\ns_mov_b32 s{d+1}, s{phi}')
        else:
            e(f's_add_u32 s{d}, s{plo}, s{off_lo}\ns_addc_u32 s{d+1}, s{phi}, 0')
        if size_sgpr is not None: e(f's_mov_b32 s{d+2}, s{size_sgpr}')
        else: e(f's_mov_b32 s{d+2}, {size:#x}')
        e(f's_mov_b32 s{d+3}, 0x20000')
    def stamp(self, idx):
        if self.stamps:
            self.e(f's_memrealtime s[{64+2*idx}:{65+2*idx}]\ns_waitcnt lgkmcnt(0)')
    def flush_stamps(self, idxs, vt):
        if not self.stamps: return
        e = self.e
        e(f's_add_u32 s96, s26, {W_STAMP:#x}\ns_addc_u32 s97, s27, 0\ns_mov_b32 s98, 0x10000\ns_mov_b32 s99, 0x20000')
        e(f's_lshl_b32 s60, s2, 7\nv_mov_b32 v{vt+2}, s60')
        for i in idxs:
            e(f'v_mov_b32 v{vt}, s{64+2*i}\nv_mov_b32 v{vt+1}, s{65+2*i}')
            e(f'buffer_store_dwordx2 v[{vt}:{vt+1}], v{vt+2}, s[96:99], 0 offen offset:{i*8}\ns_nop 1')
    def ror_reduce(self, op, v, steps=(8, 4, 2, 1)):
        for s in steps:
            self.e(f's_nop 1\n{op}_dpp v{v}, v{v}, v{v} row_ror:{s} row_mask:0xf bank_mask:0xf')
    def swap_reduce(self, op, v, t, which):
        self.e(f'v_mov_b32 v{t}, v{v}\ns_nop 1\nv_permlane{which}_swap_b32 v{v}, v{t}\ns_nop 0\n{op} v{v}, v{v}, v{t}')
    def rnd_bf16(self, v, t=None):
        self.e(f'v_cvt_pk_bf16_f32 v{v}, v{v}, v{v}\nv_and_b32 v{v}, 0xffff0000, v{v}')
    def arrive(self, cnt, vaddr_zero, vt, sret):
        e = self.e
        e(f's_mov_b64 exec, 1\nv_mov_b32 v{vt}, 1')
        e(f'ds_add_rtn_u32 v{vt}, v{vaddr_zero}, v{vt} offset:{cnt*4}')
        e(f's_waitcnt lgkmcnt(0)\nv_readfirstlane_b32 s{sret}, v{vt}\ns_mov_b64 exec, -1')
    def lds_wait(self, cnt, target, vaddr_zero, vt, st, sleep=0):
        e = self.e; l = self.lab('L_w'); d = self.lab('L_wd')
        e(f's_mov_b32 s{st+1}, 0')
        e(f'{l}:')
        e(f'ds_read_b32 v{vt}, v{vaddr_zero} offset:{cnt*4}')
        e(f's_waitcnt lgkmcnt(0)\nv_readfirstlane_b32 s{st}, v{vt}')
        e(f's_cmp_ge_u32 s{st}, {target}\ns_cbranch_scc1 {d}')
        if sleep: e(f's_sleep {sleep}')
        e(f's_add_u32 s{st+1}, s{st+1}, 1\ns_cmp_lt_u32 s{st+1}, 0x100000\ns_cbranch_scc1 {l}')
        e(f'{d}:')

    def build(self):
        e, c = self.e, self.c
        D = self.depth; PD = self.pdepth; WP = self.wpol
        hdr = open('parallel_sum__mha_block_cached__glu_gated_bilinear__decode.s.ref').read().split('; @launch')[0]
        self.L.append(hdr.rstrip('\n'))
        self.L.append(f'; @launch grid=(256,1,1) block=(512,1,1) lds={LDS_SIZE}')
        self.L.append('.amdgcn_target "amdgcn-amd-amdhsa--gfx950"\n.text')
        self.L.append(f'.globl {KN}\n.p2align 8\n.type {KN},@function\n{KN}:')
        e('s_cmp_ge_u32 s2, 256\ns_cbranch_scc1 L_end')
        if self.stamps: e('s_memrealtime s[64:65]')
        e('v_cmp_gt_u32 vcc, 32, v0\ns_cbranch_vccz L_nozero')
        e(f'v_lshlrev_b32 v1, 2, v0\nv_and_b32 v1, 63, v1\nv_mov_b32 v2, 0\nds_write_b32 v1, v2 offset:{L_CNT & 0xffff}' if False else
          f'v_lshlrev_b32 v1, 2, v0\nv_and_b32 v1, 127, v1\nv_add_u32 v1, {L_CNT:#x}, v1\nv_mov_b32 v2, 0\nds_write_b32 v1, v2\ns_waitcnt lgkmcnt(0)')
        e('L_nozero:')
        e('s_load_dwordx16 s[4:19], s[0:1], 0\ns_load_dwordx8 s[20:27], s[0:1], 64')
        e('v_and_b32 v1, 63, v0\nv_lshrrev_b32 v2, 6, v0')
        e('s_lshr_b32 s44, s2, 5\ns_and_b32 s45, s2, 31')
        e('v_readfirstlane_b32 s3, v2')
        e('s_lshl_b32 s46, s45, 3\ns_add_u32 s46, s46, s44\ns_lshr_b32 s47, s46, 2\ns_and_b32 s48, s46, 3')
        e('s_barrier')
        e('s_cmp_ge_u32 s3, 4\ns_cbranch_scc1 L_aux')
        self.stream()
        e('L_aux:')
        self.aux()
        e('L_end:\ns_endpgm')
        self.L.append('.section .rodata,"a"\n.p2align 6')
        self.L.append(f'.amdhsa_kernel {KN}\n  .amdhsa_next_free_vgpr 256\n  .amdhsa_next_free_sgpr 102\n  .amdhsa_accum_offset 256')
        self.L.append('  .amdhsa_group_segment_fixed_size 0\n  .amdhsa_kernarg_size 96\n  .amdhsa_user_sgpr_count 2\n  .amdhsa_user_sgpr_kernarg_segment_ptr 1\n  .amdhsa_system_sgpr_workgroup_id_x 1\n.end_amdhsa_kernel')
        out = []
        for l in '\n'.join(self.L).split('\n'):
            if 's[36:39]' in l and l.rstrip().endswith(' sc1') and 'atomic' not in l:
                if 'store' in l: l = l.rstrip()[:-4] + ' ' + self.xs
                else: l = l.rstrip()[:-4] + ' ' + self.xl
            out.append(l)
        return '\n'.join(out) + '\n'

    def stream(self):
        e, c = self.e, self.c
        D = self.depth; PD = self.pdepth; WP = self.wpol; DP = self.ddepth
        vP, vV, vGU, vDN, vSa, vMax, vS, vA, vB, vT, vNM, vSn, vPp = 2, 6, 10, 11, 12, 13, 14, 15, 16, 17, 18, 19, 20
        vCnt = 21; vDec = 10; vPr = 11; vIt = 60
        DD = [24, 28]; Q = 32; MK = 48; AA = 52; O = 56; RING = 64
        NS = 32
        c('=== stream waves (0..3) ===')
        if self.prio: e(f's_setprio {self.prio}')
        e(f'v_mov_b32 v{vCnt}, {L_CNT:#x}')
        e(f'v_and_b32 v{vP}, 3, v1\nv_lshlrev_b32 v{vP}, 4, v{vP}')
        e(f'v_bfe_u32 v{vT}, v1, 2, 2\nv_lshl_add_u32 v{vP}, v{vT}, 8, v{vP}')
        e(f'v_lshrrev_b32 v{vT}, 4, v1\nv_lshl_add_u32 v{vP}, v{vT}, 6, v{vP}')
        AM = 0xff000 & ~(3 << self.pw) & ~(3 << self.pu)
        assert bin(AM).count('1') == 4
        HB = AM & -AM; AM2 = AM ^ HB; PB = AM2 & -AM2
        def advance():
            if AM2 == PB * 7: e(f's_add_u32 s51, s51, {PB:#x}\ns_add_u32 s55, s55, {PB:#x}')
            else: e(f's_or_b32 s51, s51, {0xffffffff ^ AM2:#x}\ns_add_u32 s51, s51, {PB:#x}\ns_and_b32 s51, s51, {AM2:#x}\ns_or_b32 s55, s51, {HB:#x}')
        P16 = 192
        if self.bmap:
            bm = self.bmap; assert sorted(bm) == list(range(10, 16))
            HB = 0x10000
            def advance():
                e('s_add_u32 s100, s100, 0x20000\ns_xor_b32 s51, s100, s101\ns_xor_b32 s55, s51, 0x10000')
            e(f's_lshl_b32 s49, s3, 12\ns_and_b32 s53, s3, 1\ns_lshl_b32 s53, s53, {bm[4]}\ns_lshr_b32 s54, s3, 1\ns_lshl_b32 s54, s54, {bm[5]}\ns_or_b32 s53, s53, s54')
            if self.xr:
                e(f's_mul_i32 s54, s2, {self.xr[0]}\ns_lshl_b32 s54, s54, {self.xr[1]}\ns_and_b32 s54, s54, {self.xr[2]:#x}')
                e('s_and_b32 s101, s54, 0xf0000\ns_and_b32 s54, s54, 0xfc00\ns_xor_b32 s53, s53, s54')
            else: e('s_mov_b32 s101, 0')
            e(f'v_xor_b32 v{vP}, s53, v{vP}')
            for j in range(16):
                cj = sum(((j >> i) & 1) << bm[i] for i in range(4))
                e(f'v_xor_b32 v{P16+j}, {cj:#x}, v{vP}')
            e('s_lshl_b32 s50, s2, 20\ns_mov_b32 s100, 0\ns_mov_b32 s51, s101\ns_xor_b32 s55, s101, 0x10000')
        else:
            e(f's_lshl_b32 s49, s3, 12\ns_lshl_b32 s53, s3, {self.pw}')
            e(f'v_add_u32 v{vP}, s53, v{vP}')
            for u in range(1, 4): e(f'v_add_u32 v{vP+u}, {u << self.pu:#x}, v{vP}')
            e('s_lshl_b32 s50, s2, 20')
            e(f's_mov_b32 s51, 0\ns_mov_b32 s55, {HB:#x}')
        e('s_waitcnt lgkmcnt(0)')
        self.srd(40, 6, 7, 50, 0x100000)
        def kload(j):
            so = 's51' if j < 16 else 's55'
            if self.bmap:
                e(f'buffer_load_dwordx4 v[{RING+4*j}:{RING+4*j+3}], v{P16+j%16}, s[40:43], {so} offen nt'); return
            e(f'buffer_load_dwordx4 v[{RING+4*j}:{RING+4*j+3}], v{vP+(j%16)//4}, s[40:43], {so} offen offset:{(j%4)*1024} ' + (self.ppol if (self.pmask >> j) & 1 else 'nt'))
        def pst(i):
            if self.prof: e(f's_memrealtime s[62:63]\ns_waitcnt lgkmcnt(0)\nv_writelane_b32 v22, s62, {36+i}')
        B0 = self.burst or PD
        pst(0)
        for j in range(B0): kload(j)
        pst(1)
        if self.bmap:
            e(f'v_lshlrev_b32 v{vV}, 4, v1\nv_xor_b32 v{vV}, v{vP}, v{vV}\nv_and_b32 v{vV}, 0x3ff, v{vV}')
        else:
            e(f'v_lshlrev_b32 v{vV}, 4, v1\nv_add_u32 v{vV}, s53, v{vV}')
            for u in range(1, 4): e(f'v_add_u32 v{vV+u}, {u << self.pu:#x}, v{vV}')
        def pwait():
            e(f's_waitcnt vmcnt({self.ppat[self.pc % len(self.ppat)]-1})'); self.pc += 1
        def dma(srd, vo, n, step):
            for i in range(n):
                if self.gdepth: e(f's_waitcnt vmcnt({self.gdepth[(srd-28)//4]-1})')
                else: pwait()
                e(f'buffer_load_dwordx4 v{vo}, s[{srd}:{srd+3}], s54 offen {WP} lds')
                if i < n - 1: e(f's_add_u32 m0, m0, 0x400\ns_add_u32 s54, s54, {step}')
        e('s_cmp_ge_u32 s46, 224\ns_cbranch_scc1 L_s_nodma')
        e(f'v_lshrrev_b32 v{vT}, 3, v1\nv_mul_u32_u24 v{vGU}, 7168, v{vT}\nv_and_b32 v{vT}, 7, v1\nv_lshl_add_u32 v{vGU}, v{vT}, 4, v{vGU}')
        e(f's_mul_i32 s52, s48, {256*7168}\ns_lshl_b32 s53, s47, 7\ns_add_u32 s52, s52, s53\ns_sub_u32 s53, {1024*7168}, s52')
        if 'cgu' in self.dbg:
            e(f'v_lshlrev_b32 v{vGU}, 4, v1\ns_lshl_b32 s52, s46, 15\ns_sub_u32 s53, {1024*7168}, s52')
        self.srd(28, 16, 17, 52, size_sgpr=53)
        self.srd(32, 18, 19, 52, size_sgpr=53)
        e(f's_lshl_b32 s56, s3, 13')
        for (srd, lbase) in ((28, L_GATE), (32, L_UP)):
            if 'cgu' in self.dbg:
                e(f's_add_u32 m0, s56, {lbase:#x}\ns_mul_i32 s54, s3, 8192')
                dma(srd, vGU, 8, 1024)
                continue
            e(f's_add_u32 m0, s56, {lbase:#x}\ns_mul_i32 s54, s3, {64*7168}')
            dma(srd, vGU, 8, 8*7168)
            pst(2 if srd == 28 else 3)
        e('L_s_nodma:')
        e(f'v_lshrrev_b32 v{vT}, 4, v1\nv_lshlrev_b32 v{vDN}, 11, v{vT}\nv_and_b32 v{vT}, 15, v1\nv_lshl_add_u32 v{vDN}, v{vT}, 4, v{vDN}')
        e(f's_mul_i32 s52, s45, {112*2048}\ns_lshl_b32 s53, s44, 8\ns_add_u32 s52, s52, s53\ns_sub_u32 s53, {3584*2048}, s52')
        if 'cdn' in self.dbg:
            e(f'v_lshlrev_b32 v{vDN}, 4, v1\ns_mul_i32 s52, s2, 28672\ns_sub_u32 s53, {3584*2048}, s52')
            self.srd(36, 20, 21, 52, size_sgpr=53)
            e(f's_mul_i32 s56, s3, 7168\ns_add_u32 m0, s56, {L_DOWN:#x}\ns_mul_i32 s54, s3, 7168')
            dma(36, vDN, 7, 1024)
        else:
            self.srd(36, 20, 21, 52, size_sgpr=53)
            e(f's_mul_i32 s56, s3, 7168\ns_add_u32 m0, s56, {L_DOWN:#x}\ns_mul_i32 s54, s3, {28*2048}')
            dma(36, vDN, 7, 4*2048)
        pst(4)
        for u in range(1, 4):
            m = 0x11111111 << u
            e(f's_mov_b32 s{54+2*u}, {m:#x}\ns_mov_b32 s{55+2*u}, {m:#x}')
        e(f'v_and_b32 v{vT}, 1, v1\nv_cmp_eq_u32 vcc, 1, v{vT}\nv_mov_b32 v{vA}, 0xffff\nv_mov_b32 v{vB}, 0xffff0000')
        e(f'v_cndmask_b32 v{vA}, v{vA}, v{vB}, vcc')
        e(f'v_bfe_u32 v{vT}, v1, 1, 3')
        for i in range(4):
            e(f'v_cmp_eq_u32 vcc, {i}, v{vT}\ns_nop 1\nv_cndmask_b32 v{MK+i}, 0, v{vA}, vcc')
        e(f'v_lshlrev_b32 v{vSa}, 2, v1\nv_add_u32 v{vSa}, s49, v{vSa}')
        if L_S: e(f'v_add_u32 v{vSa}, {L_S:#x}, v{vSa}')
        e(f'v_mov_b32 v{vMax}, 0xff800000')
        for i in range(4): e(f'v_mov_b32 v{O+i}, 0')
        e(f'v_mov_b32 v{vDec}, {self.d0}\ns_lshl_b32 s54, s3, 2\nv_add_u32 v{vPr}, s54, v{vCnt}')
        if self.d0: e(f'ds_write_b32 v{vCnt}, v{vDec} offset:20')
        e(f'v_and_b32 v{vA}, 3, v1\nv_lshrrev_b32 v{vT}, 4, v1\nv_lshl_add_u32 v{vA}, v{vT}, 2, v{vA}\nv_lshlrev_b32 v{vA}, 4, v{vA}\nv_add_u32 v{vA}, {L_QL:#x}, v{vA}')
        e(f'v_bfe_u32 v{vT}, v1, 2, 2\nv_mov_b32 v{vB}, {L_ZERO:#x}')
        for t in range(4):
            e(f'v_cmp_eq_u32 vcc, {t}, v{vT}\ns_nop 1\nv_cndmask_b32 v{AA+t}, v{vB}, v{vA}, vcc')
        for j in range(B0, NS):
            pwait(); kload(j)
            if j == 19: pst(5)
            if j == self.qj: e(f'ds_write_b32 v{vPr}, v{vCnt} offset:48')
        if self.ltab:
            assert not self.uq and DP
            lt = 0
            for r, dty in enumerate(self.ltab): lt |= dty << (4 * r)
            self.srd(36, 26, 27, None, W_SIZE)
            e(f's_mov_b32 s28, 0\ns_mov_b32 s29, 0\ns_mov_b32 s32, {lt & 0xffffffff:#x}\ns_mov_b32 s33, {lt >> 32:#x}\nv_mov_b32 v209, 0')
            e(f's_getreg_b32 s30, hwreg(HW_REG_XCC_ID, 0, 3)\ns_lshl_b32 s30, s30, 13\ns_add_u32 s30, s30, {W_CL:#x}')
        pst(6)
        self.stamp(1)
        e('s_barrier')
        for t in range(4): e(f'ds_read_b128 v[{Q+4*t}:{Q+4*t+3}], v{AA+t}')
        e('s_waitcnt lgkmcnt(0)')
        self.stamp(2)
        e('s_mov_b32 s52, 0')
        vR = 208; vZ = 209; LT = self.ltab
        def qtop(isv, u):
            if not LT: return
            if u == self.lq:
                e(f'v_readfirstlane_b32 s31, v{vR}\ns_nop 0\ns_bfe_u32 s31, s31, 0x40003\ns_lshl_b32 s31, s31, 2\ns_lshr_b64 s[34:35], s[32:33], s31\ns_and_b32 s31, s34, 15')
                e('s_add_u32 s31, s31, s28\ns_max_u32 s29, s29, s31')
            e('s_cmp_lt_u32 s28, s29\ns_cselect_b64 vcc, -1, 0\ns_add_u32 s28, s28, 1')
            if isv: e(f's_cmp_ge_u32 s52, {self.usw}')
        def halftop(isv):
            if self.prof: e('s_mov_b32 m0, s52\ns_nop 0\nv_writelane_b32 v22, s62, m0')
            e(f'v_mov_b32 v{vIt}, s52\nds_write_b32 v{vPr}, v{vIt} offset:32')
            if DP:
                e(f'v_readfirstlane_b32 s54, v{vDec}\ns_nop 0')
                e(f'ds_read_b32 v{vDec}, v{vCnt} offset:20')
                if LT:
                    e('s_lshl_b32 s54, s54, 2\ns_max_u32 s29, s29, s54')
                    e(f'v_mov_b32 v{vR}, 1\ns_mov_b64 exec, 1')
                    e(f'buffer_atomic_add v{vR}, v{vZ}, s[36:39], s30 offen sc0')
                    e('s_mov_b64 exec, -1\ns_add_u32 s30, s30, 0x100')
                    return
                e('s_cmp_lt_u32 s52, s54\ns_cselect_b64 vcc, -1, 0')
            if isv and not self.uq: e(f's_cmp_ge_u32 s52, {self.usw}')
        def gate(isv, j):
            D = self.dpat[j % len(self.dpat)]; DP = self.epat[j % len(self.epat)]
            if LT:
                if j % 16 < D: D += 1
                if j % 16 < DP: DP += 1
            lm = self.lab('L_m'); lx = self.lab('L_x')
            if isv: e(f's_cbranch_scc1 {lx}')
            if DP: e(f's_cbranch_vccnz {lm}')
            e(f's_waitcnt vmcnt({D-1})')
            if DP: e(f'{lm}:\ns_waitcnt vmcnt({DP-1})')
            if isv: e(f'{lx}:\ns_waitcnt vmcnt({self.edepth-1})')
        c('---- K loop ----')
        e('L_kloop:')
        advance()
        e('s_cmp_lg_u32 s52, 14\ns_cbranch_scc1 L_k_go')
        if self.bmap:
            e('s_add_u32 s40, s8, s50\ns_addc_u32 s41, s9, 0\ns_mov_b32 s100, 0\ns_mov_b32 s51, s101\ns_xor_b32 s55, s101, 0x10000')
            for j in range(16): e(f'v_xor_b32 v{P16+j}, v{vV}, v{P16+j}')
        else:
            e(f's_add_u32 s40, s8, s50\ns_addc_u32 s41, s9, 0\ns_mov_b32 s51, 0\ns_mov_b32 s55, {HB:#x}')
            for u in range(4): e(f'v_mov_b32 v{vP+u}, v{vV+u}')
        e('L_k_go:')
        def reduce(u):
            d = DD[u & 1]
            q1, q2, q3 = (u + 1) & 3, (u + 2) & 3, (u + 3) & 3
            e(f'v_add_f32_dpp v{vA}, v{d+q1}, v{d+q2} quad_perm:[{q1},{q1},{q1},{q1}] row_mask:0xf bank_mask:0xf')
            e(f'v_add_f32_dpp v{vB}, v{d+q3}, v{d+u} quad_perm:[{q3},{q3},{q3},{q3}] row_mask:0xf bank_mask:0xf')
            e('s_nop 0')
            dst = vS if u == 0 else vB
            e(f'v_add_f32_dpp v{dst}, v{vA}, v{vB} quad_perm:[{q2},{q2},{q2},{q2}] row_mask:0xf bank_mask:0xf')
            if u: e(f'v_cndmask_b32 v{vS}, v{vS}, v{vB}, s[{54+2*u}:{55+2*u}]')
        for hf in range(2):
            if self.prof: e('s_memrealtime s[62:63]')
            if DP or self.prof: e('s_waitcnt lgkmcnt(0)')
            halftop(False)
            for u in range(4):
                d = DD[u & 1]
                qtop(False, u)
                for t in range(4):
                    j = 16 * hf + 4 * u + t
                    cc = '0' if t == 0 else f'v[{d}:{d+3}]'
                    e(f'v_mfma_f32_16x16x32_bf16 v[{d}:{d+3}], v[{RING+4*j}:{RING+4*j+3}], v[{Q+4*t}:{Q+4*t+3}], {cc}')
                    if t == 2 and u > 0: reduce(u - 1)
                    gate(False, j); kload(j)
            e('s_nop 5')
            reduce(3)
            e(f'v_cvt_pk_bf16_f32 v{vS}, v{vS}, v{vS}\nv_lshlrev_b32 v{vS}, 16, v{vS}\nv_mul_f32 v{vS}, {f2u(128.0**-0.5):#x}, v{vS}')
            self.rnd_bf16(vS)
            e(f'v_max_f32 v{vMax}, v{vMax}, v{vS}\nds_write_b32 v{vSa}, v{vS}\nv_add_u32 v{vSa}, 0x100, v{vSa}')
            e('s_add_u32 s52, s52, 1')
        e('s_cmp_lt_u32 s52, 16\ns_cbranch_scc1 L_kloop')
        c('---- transition ----')
        e(f'v_add_u32 v{vSa}, -4096, v{vSa}')
        e(f'ds_read_b32 v{vSn}, v{vSa}')
        self.ror_reduce('v_max_f32', vMax)
        self.swap_reduce('v_max_f32', vMax, vT, 16)
        self.swap_reduce('v_max_f32', vMax, vT, 32)
        LOG2E = f2u(1.4426950408889634)
        e(f's_mov_b32 s53, {LOG2E:#x}')
        e(f'v_mul_f32 v{vNM}, {f2u(-1.4426950408889634):#x}, v{vMax}')
        e(f's_lshl_b32 s54, s3, 2\ns_add_u32 s54, s54, {L_MW:#x}\nv_mov_b32 v{vT}, s54')
        e(f'ds_write_b32 v{vT}, v{vMax}')
        e(f's_mov_b64 exec, 1\nv_mov_b32 v{vT}, 1\nds_add_u32 v{vCnt}, v{vT} offset:{7*4}\ns_mov_b64 exec, -1')
        self.stamp(3)
        c('---- V loop ----')
        assert self.edepth <= NS - 1
        vU = 61; vBig = 62
        if self.uq: e(f's_mov_b32 s56, 64\nv_mov_b32 v{vU}, 0\nv_mov_b32 v{vBig}, 64')
        e('L_vloop:')
        advance()
        PEEL = self.peel >= 0
        if not PEEL: e('s_cmp_eq_u32 s52, 30\ns_cselect_b32 s42, 0, s42')
        for hf in range(2):
            if self.prof: e('s_memrealtime s[62:63]')
            e(f'v_add_u32 v{vSa}, 0x100, v{vSa}')
            e('s_waitcnt lgkmcnt(0)')
            e(f'v_fma_f32 v{vT}, v{vSn}, s53, v{vNM}')
            e(f'ds_read_b32 v{vSn}, v{vSa}')
            e(f'v_exp_f32 v{vT}, v{vT}')
            halftop(not PEEL)
            e(f'v_cvt_pk_bf16_f32 v{vPp}, v{vT}, v{vT}\ns_nop 1')
            for u in range(4):
                qtop(True, u)
                if self.uq and not PEEL:
                    if u: e('s_waitcnt lgkmcnt(0)')
                    e(f'v_readfirstlane_b32 s57, v{vU}\ns_add_u32 s56, s56, 1')
                    e(f'ds_read_b32 v{vU}, v{vCnt} offset:24')
                    e(f's_add_u32 s57, s57, s56\ns_cmp_gt_u32 s57, {self.uq}')
                    if self.usync:
                        lq = self.lab('L_q')
                        e(f's_cbranch_scc0 {lq}\nds_write_b32 v{vCnt}, v{vBig} offset:24\n{lq}:')
                for t in range(4):
                    j = 16 * hf + 4 * u + t
                    for i in range(4):
                        e(f'v_and_b32_dpp v{AA+i}, v{vPp}, v{MK+i} row_newbcast:{4*t+u} row_mask:0xf bank_mask:0xf')
                    e('s_nop 1')
                    e(f'v_mfma_f32_16x16x32_bf16 v[{O}:{O+3}], v[{AA}:{AA+3}], v[{RING+4*j}:{RING+4*j+3}], v[{O}:{O+3}]')
                    gate(not PEEL, j); kload(j)
            e('s_add_u32 s52, s52, 1')
        e(f's_cmp_lt_u32 s52, {28 if PEEL else 32}\ns_cbranch_scc1 L_vloop')
        if PEEL:
            assert not LT
            c('---- last four halves: straight line, the last two without loads ----')
            PP = [vPp, 216, 217, 218]; AB = [AA, 212]
            advance()
            if self.prof: e('s_memrealtime s[62:63]')
            e('s_waitcnt lgkmcnt(0)')
            e(f'v_fma_f32 v{vT}, v{vSn}, s53, v{vNM}')
            for k in range(1, 4): e(f'ds_read_b32 v{PP[k]}, v{vSa} offset:{k*256}')
            if self.uq: e(f'ds_read_b32 v{vU}, v{vCnt} offset:24')
            e(f'v_exp_f32 v{vT}, v{vT}')
            halftop(False)
            e(f'v_cvt_pk_bf16_f32 v{vPp}, v{vT}, v{vT}\ns_nop 1')
            def ands(g):
                u, t = (g % 16) // 4, g % 4
                for i in range(4):
                    e(f'v_and_b32_dpp v{AB[g&1]+i}, v{PP[g//16]}, v{MK+i} row_newbcast:{4*t+u} row_mask:0xf bank_mask:0xf')
            def step(g, gated):
                j = g % 32
                if self.wolate > 100 and g == self.wog:
                    assert not gated
                    e(f's_mov_b64 exec, 1\nds_add_u32 v{vCnt}, v{vBig} offset:4\ns_mov_b64 exec, -1')
                if self.prof and g and g % 16 == 0:
                    e(f's_memrealtime s[62:63]\ns_waitcnt lgkmcnt(0)\nv_writelane_b32 v22, s62, {28 + g//16}')
                if g < 63: ands(g + 1)
                else: e('s_nop 0')
                if not gated: e(f's_waitcnt vmcnt({min(31, 63 - g)})')
                e(f'v_mfma_f32_16x16x32_bf16 v[{O}:{O+3}], v[{AB[g&1]}:{AB[g&1]+3}], v[{RING+4*j}:{RING+4*j+3}], v[{O}:{O+3}]')
                if g < 32:
                    if gated: gate(False, j)
                    kload(j)
            ands(0)
            G1 = 2 * self.uq if self.uq else self.peel
            assert 2 <= G1 <= 32
            for g in range(G1):
                if g == 1:
                    e('s_waitcnt lgkmcnt(0)')
                    for k in range(1, 4): e(f'v_fma_f32 v{PP[k]}, v{PP[k]}, s53, v{vNM}')
                    for k in range(1, 4): e(f'v_exp_f32 v{PP[k]}, v{PP[k]}')
                    e(f'v_and_b32 v{vA}, 15, v1\nv_lshlrev_b32 v{vA}, 5, v{vA}\nv_lshrrev_b32 v{vT}, 4, v1\nv_lshl_add_u32 v{vA}, v{vT}, 4, v{vA}')
                    e(f's_lshl_b32 s54, s3, 9\ns_add_u32 s54, s54, {L_DP:#x}\nv_add_u32 v{vA}, s54, v{vA}')
                    for k in range(1, 4): e(f'v_cvt_pk_bf16_f32 v{PP[k]}, v{PP[k]}, v{PP[k]}')
                    self.srd(36, 26, 27, None, W_SIZE)
                if self.uq and g >= 2 and g % 2 == 0:
                    e(f's_waitcnt lgkmcnt(0)\nv_readfirstlane_b32 s57, v{vU}\ns_nop 0')
                    e(f'ds_read_b32 v{vU}, v{vCnt} offset:24')
                    e(f's_cmp_ge_u32 s57, {self.uq - g // 2}\ns_cbranch_scc1 L_fast{g}')
                step(g, True)
            if self.uq:
                e(f's_branch L_fast{G1}')
                for g in range(2, 64):
                    if g % 2 == 0 and g <= G1:
                        e(f'L_fast{g}:')
                        if self.usync and g % 4 == 2 or g == G1 and self.usync: e(f'ds_write_b32 v{vCnt}, v{vBig} offset:24')
                    step(g, False)
            else:
                for g in range(G1, 64): step(g, False)
            e('s_mov_b32 exec_hi, 0\ns_nop 6')
            e(f'ds_write_b128 v{vA}, v[{O}:{O+3}]')
            e('s_mov_b64 exec, -1')
        if self.prof:
            e(f's_memrealtime s[62:63]\ns_add_u32 s96, s26, {W_STAMP+0x10000:#x}\ns_addc_u32 s97, s27, 0\ns_mov_b32 s98, 0x100000\ns_mov_b32 s99, 0x20000')
            e('s_waitcnt lgkmcnt(0)\nv_writelane_b32 v22, s62, 32\nv_writelane_b32 v22, s64, 33')
            e('s_getreg_b32 s54, hwreg(HW_REG_HW_ID)\ns_nop 0\nv_writelane_b32 v22, s54, 34\ns_getreg_b32 s54, hwreg(HW_REG_XCC_ID)\ns_nop 0\nv_writelane_b32 v22, s54, 35')
            e('s_lshl_b32 s54, s2, 2\ns_add_u32 s54, s54, s3\ns_lshl_b32 s54, s54, 8\nv_lshlrev_b32 v23, 2, v1')
            e('buffer_store_dword v22, v23, s[96:99], s54 offen')
        c('---- stream epilogue ----')
        if not PEEL:
            e(f'v_and_b32 v{vA}, 15, v1\nv_lshlrev_b32 v{vA}, 5, v{vA}\nv_lshrrev_b32 v{vT}, 4, v1\nv_lshl_add_u32 v{vA}, v{vT}, 4, v{vA}')
            e(f's_lshl_b32 s54, s3, 9\ns_add_u32 s54, s54, {L_DP:#x}\nv_add_u32 v{vA}, s54, v{vA}')
            e('s_mov_b32 exec_hi, 0')
            e(f'ds_write_b128 v{vA}, v[{O}:{O+3}]')
            e('s_mov_b64 exec, -1')
            self.srd(36, 26, 27, None, W_SIZE)
        e('s_waitcnt lgkmcnt(0)')
        self.stamp(4)
        e('s_barrier')
        e('s_cmp_eq_u32 s3, 0\ns_cbranch_scc1 L_final\ns_cmp_lg_u32 s3, 1\ns_cbranch_scc1 L_end')
        c('---- wave 1: combine o and publish ----')
        e(f'v_lshlrev_b32 v{vA}, 3, v1\nv_add_u32 v{vA}, {L_DP:#x}, v{vA}\nv_mov_b32 v{vB}, {L_FW:#x}')
        e(f'ds_read_b128 v[{Q}:{Q+3}], v{vB}')
        for w in range(4): e(f'ds_read_b64 v[{Q+4+2*w}:{Q+5+2*w}], v{vA} offset:{w*512}')
        e(f's_lshl_b32 s54, s46, 8\ns_add_u32 s54, s54, {W_OX:#x}\nv_lshlrev_b32 v{vT}, 2, v1')
        e('s_waitcnt lgkmcnt(0)')
        e(f'v_mul_f32 v{vA}, v{Q}, v{Q+4}\nv_mul_f32 v{vB}, v{Q}, v{Q+5}')
        for w in range(1, 4): e(f'v_fmac_f32 v{vA}, v{Q+w}, v{Q+4+2*w}\nv_fmac_f32 v{vB}, v{Q+w}, v{Q+5+2*w}')
        e(f'v_cvt_pk_bf16_f32 v{vA}, v{vA}, v{vB}')
        e(f'v_min_u32 v{vA}, 0xfffffffe, v{vA}')
        e(f'buffer_store_dword v{vA}, v{vT}, s[36:39], s54 offen sc1')
        self.stamp(5)
        c('collect o of the 8 batches of this head')
        R = RING
        e(f's_lshl_b32 s54, s45, 11\ns_add_u32 s54, s54, {W_OX:#x}\nv_lshlrev_b32 v{vT}, 4, v1')
        e(f'v_lshrrev_b32 v{vA}, 4, v1\nv_lshl_add_u32 v{vP}, v{vA}, 4, v{vT}\nv_add_u32 v{vP}, {L_OL:#x}, v{vP}')
        e('s_mov_b64 s[56:57], -1\ns_mov_b64 s[58:59], -1\ns_mov_b32 s55, 0')
        e('L_opoll:')
        for k in range(2):
            e(f's_mov_b64 exec, s[{56+2*k}:{57+2*k}]')
            e(f'buffer_load_dwordx4 v[{R+4*k}:{R+4*k+3}], v{vT}, s[36:39], s54 offen offset:{k*1024} sc1')
        e('s_mov_b64 exec, -1\ns_add_u32 s55, s55, 1\ns_waitcnt vmcnt(0)')
        e(f'v_max3_u32 v{vA}, v{R}, v{R+1}, v{R+2}\nv_max3_u32 v{vB}, v{R+4}, v{R+5}, v{R+6}\nv_max_u32 v{vA}, v{vA}, v{R+3}\nv_max_u32 v{vB}, v{vB}, v{R+7}')
        e(f'v_cmp_eq_u32 s[56:57], -1, v{vA}\nv_cmp_eq_u32 s[58:59], -1, v{vB}')
        e('s_cmp_ge_u32 s55, 0x10000\ns_cbranch_scc1 L_ogo\ns_or_b64 vcc, s[56:57], s[58:59]\ns_cbranch_scc1 L_opoll\nL_ogo:')
        e(f'ds_write_b128 v{vP}, v[{R}:{R+3}]\nds_write_b128 v{vP}, v[{R+4}:{R+7}] offset:{4*272}')
        e('s_waitcnt lgkmcnt(0)\ns_barrier')
        self.flush_stamps([5], 200)
        e('s_endpgm')
        c('---- wave 0: final reduction ----')
        e('L_final:')
        R = RING
        e(f'v_and_b32 v{vA}, 7, v1\nv_lshlrev_b32 v{vA}, 4, v{vA}\nv_add_u32 v{vA}, {L_FF:#x}, v{vA}')
        e(f'ds_read_b128 v[{Q}:{Q+3}], v{vA}\nds_read_b64 v[{Q+4}:{Q+5}], v{vCnt} offset:{L_NONCE-L_CNT}')
        e(f's_mul_i32 s54, s44, {W_BSTRIDE:#x}\ns_lshl_b32 s55, s45, 12\ns_add_u32 s54, s54, s55\ns_add_u32 s54, s54, {W_AP:#x}')
        e(f'v_lshlrev_b32 v{vT}, 4, v1')
        self.srd(32, 22, 23, None, 0x4000)
        e('s_mov_b32 s55, 0\ns_waitcnt vmcnt(0) lgkmcnt(0)')
        self.tags_from(Q + 4, MK)
        for i in range(4): e(f's_mov_b64 s[{56+2*i}:{57+2*i}], -1')
        def issue(S):
            for i in range(4):
                e(f's_mov_b64 exec, s[{56+2*i}:{57+2*i}]')
                e(f'buffer_load_dwordx4 v[{S+4*i}:{S+4*i+3}], v{vT}, s[36:39], s54 offen offset:{i*1024} sc1')
        def process(S, n):
            for i in range(4):
                e(f's_mov_b64 exec, s[{56+2*i}:{57+2*i}]\ns_waitcnt vmcnt({n+3-i})')
                for k in range(4): e(f'v_xor_b32 v{R+16+4*i+k}, v{S+4*i+k}, v{MK+k}')
                e(f'v_or3_b32 v{vA}, v{R+16+4*i}, v{R+17+4*i}, v{R+18+4*i}\nv_or_b32 v{vA}, v{vA}, v{R+19+4*i}\nv_and_b32 v{vA}, {TMASK:#x}, v{vA}')
                e(f'v_cmp_ne_u32 s[{56+2*i}:{57+2*i}], 0, v{vA}')
            e('s_or_b64 vcc, s[56:57], s[58:59]\ns_or_b64 s[50:51], s[60:61], s[62:63]\ns_or_b64 vcc, vcc, s[50:51]')
        if self.fp2:
            SA = R; SB = R + 32
            if 'early' in self.dbg: issue(SA)
            e('s_barrier')
            if 'early' in self.dbg: process(SA, 0)
            if 'nob4' not in self.dbg: e('s_barrier')
            issue(SA)
            e(f's_sleep {self.fp2}')
            e('L_fpoll:')
            issue(SB); process(SA, 4)
            e('s_cbranch_scc0 L_fgo')
            issue(SA); process(SB, 4)
            e('s_cbranch_scc0 L_fgo')
            e('s_add_u32 s55, s55, 1\ns_cmp_lt_u32 s55, 0x8000\ns_cbranch_scc1 L_fpoll')
            e('L_fgo:\ns_mov_b64 exec, -1')
        elif 'early' in self.dbg:
            issue(R)
            e('s_barrier')
            process(R, 0)
            if 'nob4' not in self.dbg: e('s_barrier')
            e('L_fpoll:')
            issue(R); process(R, 0)
            e('s_cbranch_scc0 L_fgo')
            e('s_add_u32 s55, s55, 1\ns_cmp_lt_u32 s55, 0x10000\ns_cbranch_scc1 L_fpoll')
            e('L_fgo:\ns_mov_b64 exec, -1')
        else:
            e('s_barrier')
            if 'nob4' not in self.dbg: e('s_barrier')
            e('L_fpoll:')
            for i in range(4):
                e(f's_mov_b64 exec, s[{56+2*i}:{57+2*i}]')
                e(f'buffer_load_dwordx4 v[{R+4*i}:{R+4*i+3}], v{vT}, s[36:39], s54 offen offset:{i*1024} sc1')
            e('s_mov_b64 exec, -1\ns_add_u32 s55, s55, 1')
            for i in range(4):
                e(f's_waitcnt vmcnt({3-i})')
                for k in range(4): e(f'v_xor_b32 v{R+16+4*i+k}, v{R+4*i+k}, v{MK+k}')
                e(f'v_or3_b32 v{vA}, v{R+16+4*i}, v{R+17+4*i}, v{R+18+4*i}\nv_or_b32 v{vA}, v{vA}, v{R+19+4*i}\nv_and_b32 v{vA}, {TMASK:#x}, v{vA}')
                e(f'v_cmp_ne_u32 s[{56+2*i}:{57+2*i}], 0, v{vA}')
            e('s_cmp_ge_u32 s55, 0x10000\ns_cbranch_scc1 L_fgo')
            e('s_or_b64 vcc, s[56:57], s[58:59]\ns_or_b64 s[50:51], s[60:61], s[62:63]\ns_or_b64 vcc, vcc, s[50:51]\ns_cbranch_scc1 L_fpoll\nL_fgo:')
        self.stamp(7)
        R = R + 16
        self.colsum(R, 4, vT)
        e('s_waitcnt lgkmcnt(0)')
        for i in range(4): e(f'v_add_f32 v{R+i}, v{Q+i}, v{R+i}')
        e(f'v_cvt_pk_bf16_f32 v{R}, v{R}, v{R+1}\nv_cvt_pk_bf16_f32 v{R+1}, v{R+2}, v{R+3}')
        e(f's_lshl_b32 s54, s2, 6\nv_lshlrev_b32 v{vT}, 3, v1\ns_mov_b64 exec, 0xff')
        e(f'buffer_store_dwordx2 v[{R}:{R+1}], v{vT}, s[32:35], s54 offen')
        e('s_mov_b64 exec, -1')
        self.stamp(6)
        self.flush_stamps([0, 1, 2, 3, 4, 6, 7], 200)
        e('s_endpgm')

    def colsum(self, R, n, vt):
        e = self.e
        for i in range(1, n):
            for k in range(4): e(f'v_add_f32 v{R+k}, v{R+k}, v{R+4*i+k}')
        e('s_nop 1')
        for k in range(4): e(f'v_add_f32_dpp v{R+k}, v{R+k}, v{R+k} row_ror:8 row_mask:0xf bank_mask:0xf')
        for which in (16, 32):
            for k in range(4): e(f'v_mov_b32 v{R+4+k}, v{R+k}')
            e('s_nop 0')
            for k in range(4): e(f'v_permlane{which}_swap_b32 v{R+k}, v{R+4+k}')
            for k in range(4): e(f'v_add_f32 v{R+k}, v{R+k}, v{R+4+k}')

    def tags_from(self, nv, tg):
        self.e(f'v_and_b32 v{tg}, {TMASK:#x}, v{nv}\nv_bfe_u32 v{tg+1}, v{nv}, 16, {TB}\nv_and_b32 v{tg+2}, {TMASK:#x}, v{nv+1}\nv_bfe_u32 v{tg+3}, v{nv+1}, 16, {TB}')
    def untag(self, R, n, tg, t0, t1, mask):
        e = self.e
        for i in range(4 * n): e(f'v_xor_b32 v{R+i}, v{R+i}, v{tg + (i & 3)}')
        e(f'v_or3_b32 v{t0}, v{R}, v{R+1}, v{R+2}\nv_or3_b32 v{t1}, v{R+3}, v{R+4}, v{R+5}')
        i = 6; k = 0
        while i < 4 * n:
            t = (t0, t1)[k & 1]; e(f'v_or3_b32 v{t}, v{t}, v{R+i}, v{R+i+1}'); i += 2; k += 1
        e(f'v_or_b32 v{t0}, v{t0}, v{t1}\nv_and_b32 v{t0}, {mask:#x}, v{t0}\nv_cmp_ne_u32 vcc, 0, v{t0}')

    def aux(self):
        e, c = self.e, self.c
        WP = self.wpol
        vCnt, vT, vT2, vG, vC, vC7, vSt, vTr, vL16, vX = 2, 3, 4, 5, 6, 7, 8, 9, 10, 11
        X = 16
        U = 32
        TG = 64
        XFr = 68
        NV = 28
        c('=== aux waves (4..7) ===')
        e('s_sub_u32 s3, s3, 4')
        e(f'v_mov_b32 v{vCnt}, {L_CNT:#x}')
        e(f'v_lshrrev_b32 v{vG}, 4, v1\nv_and_b32 v{vC}, 15, v1\nv_and_b32 v{vC7}, 7, v1\nv_lshlrev_b32 v{vL16}, 4, v1')
        e(f'v_lshrrev_b32 v{vT}, 5, v1\nv_lshlrev_b32 v{vT}, 11, v{vT}\nv_and_b32 v{vT2}, 31, v1')
        e(f's_lshl_b32 s49, s3, 12\nv_add_u32 v{vT}, s49, v{vT}')
        e(f'v_lshl_add_u32 v{vX}, v{vT2}, 4, v{vT}')
        vWq = 15
        e(f'v_lshrrev_b32 v{vT}, 3, v1\nv_lshlrev_b32 v{vWq}, 13, v{vT}\nv_lshl_add_u32 v{vWq}, v{vC7}, 4, v{vWq}')
        e('s_lshl_b32 s50, s48, 21\ns_lshl_b32 s51, s47, 7\ns_add_u32 s50, s50, s51\ns_sub_u32 s51, 0x800000, s50')
        e('s_lshl_b32 s53, s48, 9')
        e(f's_lshl_b32 s54, s3, 13\ns_add_u32 m0, s54, {L_WQ:#x}\ns_lshl_b32 s55, s3, 19')
        e('s_memrealtime s[62:63]')
        e(f'v_lshrrev_b32 v{vT}, 3, v{vC}\nv_lshlrev_b32 v{vSt}, 6, v{vT}\nv_lshl_add_u32 v{vSt}, v{vG}, 4, v{vSt}\nv_lshl_add_u32 v{vSt}, v{vC7}, 19, v{vSt}')
        e(f'v_mov_b32 v{vT2}, 0')
        e('s_xor_b32 s60, s3, 3\ns_or_b32 s60, s60, s2')
        e('s_waitcnt lgkmcnt(0)')
        self.srd(40, 24, 25, None, 256)
        self.srd(36, 26, 27, None, W_SIZE)
        e('s_cmp_lg_u32 s60, 0\ns_cbranch_scc1 L_a_noz')
        c('workgroup 0: publish the launch nonce: four fields of the clock, field 0 odd, field 1 even')
        e(f's_lshl_b32 s56, s62, 1\ns_or_b32 s56, s56, 1\ns_and_b32 s56, s56, {TMASK:#x}\ns_bfe_u32 s57, s62, {((TB-1) << 16) | (TB-1):#x}\ns_lshl_b32 s57, s57, 17\ns_or_b32 s56, s56, s57')
        e(f's_lshr_b64 s[62:63], s[62:63], {2*TB-2}\ns_and_b32 s57, s62, {TMASK:#x}\ns_bfe_u32 s62, s62, {(TB << 16) | TB:#x}\ns_lshl_b32 s62, s62, 16\ns_or_b32 s57, s57, s62\ns_or_b32 s57, s57, 0x80000000')
        e(f'v_mov_b32 v{TG}, s56\nv_mov_b32 v{TG+1}, s57\ns_mov_b64 exec, 1')
        e(f'buffer_store_dwordx2 v[{TG}:{TG+1}], v{vT2}, s[40:43], 0 offen sc1\ns_mov_b64 exec, -1')
        if self.ddepth:
            c('zero the progress counters (they only steer queue depth)')
            e(f'v_lshlrev_b32 v{vT}, 8, v1\ns_mov_b32 s56, {W_CT:#x}')
            nz = 8 if self.ltab else 4
            for i in range(nz):
                e(f'buffer_store_dword v{vT2}, v{vT}, s[36:39], s56 offen sc1')
                if i < nz - 1: e('s_add_u32 s56, s56, 0x4000')
        e('L_a_noz:')
        if 'preap' in self.dbg:
            e(f's_mul_i32 s56, s44, {W_BSTRIDE:#x}\ns_lshl_b32 s57, s45, 12\ns_add_u32 s56, s56, s57\ns_lshl_b32 s57, s3, 10\ns_add_u32 s56, s56, s57\ns_add_u32 s56, s56, {W_AP:#x}')
            e(f'buffer_load_dwordx4 v[116:119], v{vL16}, s[36:39], s56 offen sc1')
        if 'preq' in self.dbg:
            e('s_cmp_ge_u32 s3, 2\ns_cbranch_scc1 L_a_nopreq')
            e(f's_mul_i32 s56, s44, {W_BSTRIDE:#x}\ns_lshl_b32 s57, s45, 11\ns_add_u32 s56, s56, s57\ns_lshl_b32 s57, s3, 10\ns_add_u32 s56, s56, s57')
            e(f'buffer_load_dwordx4 v[120:123], v{vL16}, s[36:39], s56 offen sc1')
            e('L_a_nopreq:')
        if 'pre' in self.dbg or 'pre1' in self.dbg:
            e('s_cmp_ge_u32 s3, 2\ns_cbranch_scc1 L_a_nopre')
            e(f's_mul_i32 s56, s44, {W_BSTRIDE:#x}\ns_lshl_b32 s57, s45, 11\ns_add_u32 s56, s56, s57\ns_lshl_b32 s57, s3, 10\ns_add_u32 s56, s56, s57')
            if 'pre1' in self.dbg: e('s_mov_b64 exec, 1')
            e(f'buffer_load_dwordx4 v[120:123], v{vL16}, s[36:39], s56 offen sc1')
            e(f's_lshl_b32 s56, s46, 8\ns_lshl_b32 s57, s3, 7\ns_add_u32 s56, s56, s57')
            if 'pre1' in self.dbg: e('s_mov_b64 exec, 0xff\ns_add_u32 s56, s56, 0x10000')
            e(f'buffer_load_dwordx4 v[124:127], v{vSt}, s[36:39], s56 offen sc1')
            if 'pre1' in self.dbg: e('s_mov_b64 exec, -1')
            e('L_a_nopre:')
        self.srd(28, 4, 5, None, 0x4000)
        self.srd(32, 10, 11, 50, size_sgpr=51)
        for i in range(4): e(f'buffer_load_dwordx4 v[{X+4*i}:{X+4*i+3}], v{vX}, s[28:31], 0 offen offset:{i*512}')
        e(f'buffer_load_dwordx4 v[{XFr}:{XFr+3}], v{vX}, s[28:31], s53 offen')
        for i in range(8):
            e(f'buffer_load_dwordx4 v{vWq}, s[32:35], s55 offen {WP} lds')
            if i < 7: e(f's_add_u32 m0, m0, 0x400\ns_add_u32 s55, s55, 0x10000\ns_nop 0')
        c('a=2: clear own OX slot with the sentinel')
        e('s_cmp_lg_u32 s3, 2\ns_cbranch_scc1 L_a_nocl')
        for k in range(4): e(f'v_mov_b32 v{U+k}, -1')
        e(f's_lshl_b32 s54, s46, 8\ns_add_u32 s54, s54, {W_OX:#x}\ns_mov_b64 exec, 0xffff')
        e(f'buffer_store_dwordx4 v[{U}:{U+3}], v{vL16}, s[36:39], s54 offen sc1\ns_mov_b64 exec, -1\ns_nop 0')
        e('L_a_nocl:')
        e(f's_lshl_b32 s61, s44, 14\ns_lshl_b32 s55, s3, 12\ns_add_u32 s61, s61, s55\ns_lshl_b32 s55, s45, 7\ns_add_u32 s61, s61, s55\ns_add_u32 s61, s61, {W_AP:#x}')
        self.stamp(14)
        c('LN stats')
        e('s_waitcnt vmcnt(9)')
        self.stamp(15)
        for i in range(16):
            e(f'v_lshlrev_b32 v{U+2*i}, 16, v{X+i}\nv_and_b32 v{U+2*i+1}, 0xffff0000, v{X+i}')
        S0 = 12
        e(f'v_pk_add_f32 v[{S0}:{S0+1}], v[{U}:{U+1}], v[{U+2}:{U+3}]\nv_pk_add_f32 v[{S0+2}:{S0+3}], v[{U+4}:{U+5}], v[{U+6}:{U+7}]')
        for i in range(4, 16):
            a = S0 + 2 * (i & 1)
            e(f'v_pk_add_f32 v[{a}:{a+1}], v[{a}:{a+1}], v[{U+2*i}:{U+2*i+1}]')
        e(f'v_pk_add_f32 v[{S0}:{S0+1}], v[{S0}:{S0+1}], v[{S0+2}:{S0+3}]\nv_add_f32 v{S0}, v{S0}, v{S0+1}')
        self.ror_reduce('v_add_f32', S0)
        self.swap_reduce('v_add_f32', S0, vT, 16)
        M = X
        e(f'v_mul_f32 v{M}, {f2u(-1.0/1024):#x}, v{S0}\nv_mov_b32 v{M+1}, v{M}')
        for i in range(16): e(f'v_pk_add_f32 v[{U+2*i}:{U+2*i+1}], v[{U+2*i}:{U+2*i+1}], v[{M}:{M+1}]')
        e(f'v_pk_mul_f32 v[{S0}:{S0+1}], v[{U}:{U+1}], v[{U}:{U+1}]\nv_pk_mul_f32 v[{S0+2}:{S0+3}], v[{U+2}:{U+3}], v[{U+2}:{U+3}]')
        for i in range(2, 16):
            a = S0 + 2 * (i & 1)
            e(f'v_pk_fma_f32 v[{a}:{a+1}], v[{U+2*i}:{U+2*i+1}], v[{U+2*i}:{U+2*i+1}], v[{a}:{a+1}]')
        e(f'v_pk_add_f32 v[{S0}:{S0+1}], v[{S0}:{S0+1}], v[{S0+2}:{S0+3}]\nv_add_f32 v{S0}, v{S0}, v{S0+1}')
        self.ror_reduce('v_add_f32', S0)
        self.swap_reduce('v_add_f32', S0, vT, 16)
        RR, RC = S0, S0 + 1
        e(f'v_mul_f32 v{RR}, {f2u(1.0/1024):#x}, v{S0}'); self.rnd_bf16(RR)
        e(f'v_add_f32 v{RR}, {f2u(1e-5):#x}, v{RR}'); self.rnd_bf16(RR)
        e(f'v_sqrt_f32 v{RR}, v{RR}\ns_nop 0'); self.rnd_bf16(RR)
        e(f'v_rcp_f32 v{RC}, v{RR}')
        self.rnd_bf16(M)
        def norm(src, n):
            for i in range(n):
                a, b2, q0, q1 = U, U + 1, U + 2, U + 3
                e(f'v_lshlrev_b32 v{a}, 16, v{src+i}\nv_and_b32 v{b2}, 0xffff0000, v{src+i}')
                e(f'v_add_f32 v{a}, v{a}, v{M}\nv_add_f32 v{b2}, v{b2}, v{M}')
                e(f'v_cvt_pk_bf16_f32 v{b2}, v{a}, v{b2}')
                e(f'v_lshlrev_b32 v{a}, 16, v{b2}\nv_and_b32 v{b2}, 0xffff0000, v{b2}')
                e(f'v_mul_f32 v{q0}, v{a}, v{RC}\nv_mul_f32 v{q1}, v{b2}, v{RC}')
                e(f'v_fma_f32 v{a}, -v{q0}, v{RR}, v{a}\nv_fma_f32 v{b2}, -v{q1}, v{RR}, v{b2}')
                e(f'v_fmac_f32 v{q0}, v{a}, v{RC}\nv_fmac_f32 v{q1}, v{b2}, v{RC}')
                e(f'v_cvt_pk_bf16_f32 v{src+i}, v{q0}, v{q1}')
        e('s_waitcnt vmcnt(8)')
        e('s_cmp_lg_u32 s3, 3\ns_cbranch_scc1 L_a_nn1')
        if 'nonon' in self.dbg: e(f'v_mov_b32 v{NV}, 0x01230457\nv_mov_b32 v{NV+1}, 0x89ab0cde')
        else: e(f'buffer_load_dwordx2 v[{NV}:{NV+1}], v{vT2}, s[40:43], 0 offen sc1')
        e('L_a_nn1:')
        norm(XFr, 4)
        e(f's_lshl_b32 s54, s3, 10\ns_add_u32 s54, s54, {L_XF:#x}\nv_add_u32 v{vT}, s54, v{vL16}')
        e(f'ds_write_b128 v{vT}, v[{XFr}:{XFr+3}]')
        e(f'v_bfe_u32 v{vT}, v1, 2, 2\nv_lshl_add_u32 v{vX}, v{vG}, 3, v{vT}')
        vT3 = 15; vBa = 14; vCc = 13
        e(f'v_and_b32 v{vCc}, 3, v1\nv_lshlrev_b32 v{vCc}, 3, v{vCc}')
        e(f'v_lshl_add_u32 v{vTr}, v{vX}, 8, v{vCc}\ns_lshl_b32 s54, s3, 6\nv_add_u32 v{vTr}, s54, v{vTr}')
        e(f'v_lshl_add_u32 v{vT3}, v{vX}, 7, v{vCc}\nv_add_u32 v{vT3}, s54, v{vT3}')
        e('s_mov_b32 s58, 0xff00ff00\ns_mov_b32 s59, 0xff00ff00\ns_mov_b32 s100, 0\ns_mov_b32 s101, -1\ns_mov_b32 s49, ' + hex(0xffffffff ^ TMASK))
        e(f'v_lshlrev_b32 v{vBa}, 9, v{vC7}\nv_lshl_add_u32 v{vBa}, v{vG}, 4, v{vBa}\nv_add_u32 v{vBa}, {L_XF:#x}, v{vBa}')
        e('s_waitcnt vmcnt(0)')
        e('s_cmp_lg_u32 s3, 3\ns_cbranch_scc1 L_a_nn2\ns_mov_b32 s57, 0')
        e('L_npoll:')
        e(f'v_readfirstlane_b32 s56, v{NV+1}\ns_cmp_lg_u32 s56, 0\ns_cbranch_scc1 L_ngo')
        e(f'buffer_load_dwordx2 v[{NV}:{NV+1}], v{vT2}, s[40:43], 0 offen sc1')
        e('s_add_u32 s57, s57, 1\ns_waitcnt vmcnt(0)\ns_cmp_lt_u32 s57, 0x10000\ns_cbranch_scc1 L_npoll\nL_ngo:')
        e(f'ds_write_b64 v{vCnt}, v[{NV}:{NV+1}] offset:{L_NONCE-L_CNT}')
        e('L_a_nn2:')
        self.arrive(0, vCnt, vT, 56)
        self.lds_wait(0, 4, vCnt, vT, 56)
        self.stamp(8)
        e(f'ds_read_b64 v[{NV}:{NV+1}], v{vCnt} offset:{L_NONCE-L_CNT}')
        BB = 80; AW = 96; D0 = 72; D1 = 76
        B1 = 80; A1 = 112
        for kk in range(8): e(f'ds_read_b128 v[{B1+4*kk}:{B1+4*kk+3}], v{vBa} offset:{kk*64}')
        def tile128(base, va=vTr):
            for ct in range(2):
                for kk in range(4):
                    for hh in range(2):
                        r = AW + (ct * 4 + kk) * 4 + hh * 2
                        e(f'ds_read_b64_tr_b16 v[{r}:{r+1}], v{va} offset:{base + kk*8192 + hh*1024 + ct*32}')
                if ct == 0: e('s_waitcnt lgkmcnt(6)')
        def mm128(acc=False):
            for kk in range(4):
                for ct in range(2):
                    d = (D0, D1)[ct]; r = AW + (ct * 4 + kk) * 4
                    cc = '0' if kk == 0 and not acc else f'v[{d}:{d+3}]'
                    e(f'v_mfma_f32_16x16x32_bf16 v[{d}:{d+3}], v[{r}:{r+3}], v[{BB+4*kk}:{BB+4*kk+3}], {cc}')
        def merge_tag(da, db, tg, bits, smask):
            for i in range(4): e(f'v_cndmask_b32 v{da+i}, v{da+i}, v{db+i}, s[58:59]')
            for i in range(4): e(f'v_add_u32 v{da+i}, {1 << (bits-1):#x}, v{da+i}')
            for i in range(4): e(f'v_and_or_b32 v{da+i}, v{da+i}, s{smask}, v{tg+i}')
        def pair256(second, tg):
            for mat in range(2):
                for kk in range(8):
                    for hh in range(2):
                        r = A1 + (mat * 8 + kk) * 4 + hh * 2
                        e(f'ds_read_b64_tr_b16 v[{r}:{r+1}], v{vT3} offset:{mat*second + kk*4096 + hh*512}')
                    if kk % 4 == 3: e('s_waitcnt lgkmcnt(0)')
            for kk in range(8):
                for mat in range(2):
                    d = (D0, D1)[mat]; r = A1 + (mat * 8 + kk) * 4
                    cc = '0' if kk == 0 else f'v[{d}:{d+3}]'
                    e(f'v_mfma_f32_16x16x32_bf16 v[{d}:{d+3}], v[{r}:{r+3}], v[{B1+4*kk}:{B1+4*kk+3}], {cc}')
            e('s_nop 7')
            merge_tag(D0, D1, tg, 8, 60)
        def gpoll(name, n, emit_loads, sleep, tg, mask):
            e(f's_mov_b32 s57, 0\n{name}:')
            emit_loads()
            e(f's_add_u32 s57, s57, 1\ns_waitcnt vmcnt(0)')
            self.untag(U, n, tg, vT, vT2, mask)
            e(f's_cbranch_vccz {name}_go')
            if sleep: e(f's_sleep {sleep}')
            e(f's_cmp_lt_u32 s57, 0x10000\ns_cbranch_scc1 {name}\n{name}_go:')
        e('s_waitcnt lgkmcnt(0)')
        self.tags_from(NV, TG)
        TC = 20; TP = 24
        e(f's_mov_b32 s60, 0xffffff00\ns_mov_b32 s50, 0xaaaaaaaa\ns_mov_b32 s51, 0xaaaaaaaa\ns_mov_b32 s52, 0xffff0000\ns_mov_b32 s53, 0xffff0000')
        e(f'v_cndmask_b32 v{TC+3}, v{NV}, v{NV+1}, s[50:51]\nv_cndmask_b32 v{TP+3}, v{NV}, v{NV+1}, s[52:53]')
        for T in (TC, TP):
            e(f'v_and_b32 v{T}, 0xff, v{T+3}\nv_bfe_u32 v{T+1}, v{T+3}, 8, 8\nv_bfe_u32 v{T+2}, v{T+3}, 16, 8\nv_lshrrev_b32 v{T+3}, 24, v{T+3}')
        e('s_cmp_ge_u32 s3, 2\ns_cbranch_scc1 L_a_b1')
        c('q partial (a = 0,1): 32 columns each')
        assert L_WQ == 0
        pair256(32, TP)
        e(f's_lshl_b32 s54, s46, 8\ns_lshl_b32 s55, s3, 7\ns_add_u32 s54, s54, s55')
        e(f'buffer_store_dwordx4 v[{D0}:{D0+3}], v{vSt}, s[36:39], s54 offen {self.qpol} ')
        self.stamp(9)
        e('s_cmp_lg_u32 s3, 0\ns_cbranch_scc1 L_a_b1')
        c('wave a=0: gather q')
        e(f's_mul_i32 s54, s44, {W_BSTRIDE:#x}\ns_lshl_b32 s55, s45, 11\ns_add_u32 s54, s54, s55')
        if self.qj: self.lds_wait(12, 1, vCnt, vT, 56, sleep=2)
        def ql():
            for i in range(2): e(f'buffer_load_dwordx4 v[{U+4*i}:{U+4*i+3}], v{vL16}, s[36:39], s54 offen offset:{i*1024} {self.qpol}')
        gpoll('L_qpoll', 2, ql, self.qsleep, TC, 0xff)
        for k in range(4): e(f'v_permlane32_swap_b32 v{U+k}, v{U+4+k}')
        for k in range(4): e(f'v_add_f32 v{U+k}, v{U+k}, v{U+4+k}')
        for k in range(4): e(f'v_mov_b32 v{U+4+k}, v{U+k}')
        e(f'v_lshrrev_b32 v{vT}, 5, v1\nv_lshlrev_b32 v{vT}, 7, v{vT}\nv_lshl_add_u32 v{vT}, v{vC}, 3, v{vT}\nv_add_u32 v{vT}, {L_QL:#x}, v{vT}')
        for k in range(4): e(f'v_permlane16_swap_b32 v{U+k}, v{U+4+k}')
        for k in range(4): e(f'v_add_f32 v{U+k}, v{U+k}, v{U+4+k}')
        e(f'v_cvt_pk_bf16_f32 v{U}, v{U}, v{U+1}\nv_cvt_pk_bf16_f32 v{U+1}, v{U+2}, v{U+3}')
        e(f'ds_write_b64 v{vT}, v[{U}:{U+1}]')
        e('L_a_b1:')
        e(f's_lshl_b32 s54, s3, 5\ns_sub_u32 s54, {L_GATE:#x}, s54\nv_add_u32 v{vT3}, s54, v{vT3}')
        e('s_waitcnt lgkmcnt(0)')
        self.stamp(10)
        e('s_barrier')
        c('FFN stage 1')
        e('s_cmp_ge_u32 s46, 224\ns_cbranch_scc1 L_a_s1done')
        if self.skip >= 3: e('s_branch L_a_s1done')
        pair256(0x8000, TC)
        e(f's_lshl_b32 s54, s46, 12\ns_lshl_b32 s55, s3, 10\ns_add_u32 s54, s54, s55\ns_add_u32 s54, s54, {W_GU:#x}')
        e(f'buffer_store_dwordx4 v[{D0}:{D0+3}], v{vL16}, s[36:39], s54 offen {self.fpol}')
        e('L_a_s1done:')
        if 'touch' in self.dbg:
            c('a=3: one small read of the pages that are first used late (wo tile, V)')
            e('s_cmp_lg_u32 s3, 3\ns_cbranch_scc1 L_a_notouch')
            e(f'v_mov_b32 v{vT}, 0\ns_mov_b64 exec, 1')
            if 'touchout' in self.dbg:
                self.srd(32, 22, 23, None, 0x4000)
                e(f's_lshl_b32 s54, s2, 6\nbuffer_load_dword v176, v{vT}, s[32:35], s54 offen')
            self.srd(32, 12, 13, None, 0x800000)
            e(f's_lshl_b32 s54, s45, 18\nbuffer_load_dword v177, v{vT}, s[32:35], s54 offen nt')
            e('s_lshl_b32 s54, s2, 20')
            self.srd(32, 8, 9, 54, 0x100000)
            e(f'buffer_load_dword v178, v{vT}, s[32:35], 0 offen nt')
            e('s_mov_b64 exec, -1')
            e('L_a_notouch:')
        self.arrive(2, vCnt, vT, 56)
        self.lds_wait(2, 4, vCnt, vT, 56)
        def wodma():
            c('wo tile DMA')
            e('s_lshl_b32 s50, s45, 18\ns_lshl_b32 s51, s44, 8\ns_add_u32 s50, s50, s51\ns_sub_u32 s51, 0x800000, s50')
            self.srd(32, 12, 13, 50, size_sgpr=51)
            e(f'v_lshlrev_b32 v{vT}, 11, v{vG}\nv_lshl_add_u32 v{vT}, v{vC}, 4, v{vT}')
            e(f's_lshl_b32 s54, s3, 13\ns_add_u32 m0, s54, {L_WO:#x}\ns_lshl_b32 s55, s3, 16\ns_nop 0')
            for i in range(8 if self.skip < 4 else 0):
                if self.wod and i >= self.wod: e(f's_waitcnt vmcnt({self.wod-1})')
                e(f'buffer_load_dwordx4 v{vT}, s[32:35], s55 offen {WP} lds')
                if i < 7: e(f's_add_u32 m0, m0, 0x400\ns_add_u32 s55, s55, 0x2000\ns_nop 0')
        if not self.wolate: wodma()
        c('down tile operands')
        e(f'v_add_u32 v{vT3}, {L_DOWN:#x}, v{vTr}')
        tile128(0, vT3)
        e(f'v_lshrrev_b32 v{vT}, 5, v1\nv_lshlrev_b32 v{vBa}, 8, v{vT}\nv_lshl_add_u32 v{vBa}, v{vC7}, 5, v{vBa}\nv_and_b32 v{vT}, 1, v{vG}\nv_lshl_add_u32 v{vBa}, v{vT}, 4, v{vBa}\nv_add_u32 v{vBa}, {L_HL:#x}, v{vBa}')
        e('s_waitcnt lgkmcnt(0)')
        for ct in range(2):
            for i in range(4):
                r = AW + (ct * 4 + 3) * 4 + i
                e(f'v_cndmask_b32 v{r}, v{r}, 0, s[100:101]')
        e('s_cmp_lg_u32 s3, 0\ns_cbranch_scc1 L_a_hw')
        c('wave a=0: reduce one 16-column piece of g,u -> h ; then fetch the 7 pieces this workgroup needs')
        if self.skip >= 2: e('s_branch L_a_hdone')
        e('s_cmp_ge_u32 s46, 224\ns_cbranch_scc1 L_a_s15done')
        if self.gwait: self.lds_wait(8, self.gwait, vCnt, vT, 56, sleep=8)
        e(f's_lshl_b32 s54, s47, 14\ns_lshl_b32 s55, s48, 10\ns_add_u32 s54, s54, s55\ns_add_u32 s54, s54, {W_GU:#x}')
        e('s_add_u32 s55, s54, 0x1000\ns_add_u32 s50, s54, 0x2000\ns_add_u32 s51, s54, 0x3000')
        def gl():
            for k, so in enumerate((54, 55, 50, 51)): e(f'buffer_load_dwordx4 v[{U+4*k}:{U+4*k+3}], v{vL16}, s[36:39], s{so} offen {self.fpol}')
        gpoll('L_gpoll', 4, gl, 32, TC, 0xff)
        e(f'v_lshlrev_b32 v{vT}, 6, v{vC7}\nv_lshl_add_u32 v{vT}, v{vG}, 4, v{vT}\ns_lshl_b32 s54, s46, 9\ns_add_u32 s54, s54, {W_H:#x}')
        for i in range(1, 4):
            for k in range(4): e(f'v_add_f32 v{U+k}, v{U+k}, v{U+4*i+k}')
        for k in range(4): self.rnd_bf16(U + k)
        e('s_nop 1')
        for k in range(4): e(f'v_mul_f32_dpp v{U+4+k}, v{U+k}, v{U+k} row_ror:8 row_mask:0xf bank_mask:0xf')
        for k in range(4): self.rnd_bf16(U + 4 + k)
        for k in range(4): e(f'v_or_b32 v{U+4+k}, v{U+4+k}, v{TG+k}')
        e('s_not_b64 exec, s[58:59]')
        e(f'buffer_store_dwordx4 v[{U+4}:{U+7}], v{vT}, s[36:39], s54 offen {self.fpol}\ns_mov_b64 exec, -1')
        e('L_a_s15done:')
        if self.hwait: self.lds_wait(8, self.hwait, vCnt, vT, 56, sleep=8)
        e(f's_mul_i32 s54, s45, {7*512}\ns_add_u32 s54, s54, {W_H:#x}\nv_and_b32 v{vCc}, 0x1ff, v{vL16}')
        def hl():
            for k in range(3): e(f'buffer_load_dwordx4 v[{U+4*k}:{U+4*k+3}], v{vL16}, s[36:39], s54 offen offset:{k*1024} {self.fpol}')
            e(f'buffer_load_dwordx4 v[{U+12}:{U+15}], v{vCc}, s[36:39], s54 offen offset:3072 {self.fpol}')
        gpoll('L_hpoll', 4, hl, 32, TG, TMASK)
        e(f'v_lshlrev_b32 v{vT}, 3, v1\nv_add_u32 v{vT}, {L_HL:#x}, v{vT}')
        for k in range(4):
            e(f'v_cvt_pk_bf16_f32 v{U+4*k}, v{U+4*k}, v{U+4*k+1}\nv_cvt_pk_bf16_f32 v{U+4*k+1}, v{U+4*k+2}, v{U+4*k+3}')
            e(f'ds_write_b64 v{vT}, v[{U+4*k}:{U+4*k+1}] offset:{k*512}')
        e('L_a_hdone:')
        self.arrive(3, vCnt, vT, 56)
        e('L_a_hw:')
        self.lds_wait(3, 1, vCnt, vT, 56, sleep=8)
        for kk in range(4): e(f'ds_read_b128 v[{BB+4*kk}:{BB+4*kk+3}], v{vBa} offset:{kk*512}')
        e('s_waitcnt lgkmcnt(0)')
        mm128()
        def woops():
            e('s_waitcnt vmcnt(0)')
            self.arrive(4, vCnt, vT, 56)
            self.lds_wait(4, 4, vCnt, vT, 56)
            c('preload wo operands')
            tile128(L_WO)
        if not self.wolate: woops()
        self.stamp(11)
        e('s_cmp_eq_u32 s3, 1\ns_cbranch_scc1 L_a_stats\ns_cmp_eq_u32 s3, 2\ns_cbranch_scc1 L_a_ctl\ns_cmp_lg_u32 s3, 0\ns_cbranch_scc1 L_a_b2')
        c('wave a=0: residual input')
        e(f's_lshl_b32 s54, s2, 6\nv_lshlrev_b32 v{vT}, 3, v{vC7}')
        e(f'buffer_load_dwordx2 v[{U}:{U+1}], v{vT}, s[28:31], s54 offen')
        e(f'v_lshlrev_b32 v{vT}, 4, v{vC7}\nv_add_u32 v{vT}, {L_FF:#x}, v{vT}\ns_waitcnt vmcnt(0)')
        e(f'v_lshlrev_b32 v{U+4}, 16, v{U}\nv_and_b32 v{U+5}, 0xffff0000, v{U}\nv_lshlrev_b32 v{U+6}, 16, v{U+1}\nv_and_b32 v{U+7}, 0xffff0000, v{U+1}')
        e(f'ds_write_b128 v{vT}, v[{U+4}:{U+7}]')
        self.stamp(12)
        e('s_branch L_a_b2')
        c('wave a=2: queue-depth controller (rank of this workgroup at each checkpoint)')
        e('L_a_ctl:')
        if self.ddepth:
            e(f's_bfe_u32 s55, s2, 0x10003\ns_bfe_u32 s54, s2, 0x20006\ns_lshl_b32 s54, s54, 1\ns_or_b32 s55, s55, s54\ns_lshl_b32 s55, s55, 13\ns_add_u32 s55, s55, {W_CT:#x}')
            tab = 0
            for r, dty in enumerate(self.table): tab |= dty << (4 * r)
            e(f's_mov_b32 s50, {tab & 0xffffffff:#x}\ns_mov_b32 s51, {tab >> 32:#x}')
            cps = self.cps or list(range(self.cstart, self.usw - 1, self.cper))
            e(f's_mov_b32 s57, 0\ns_mov_b32 s53, 0\nv_mov_b32 v{vT2}, 0\ns_mov_b64 exec, 1')
            for cp in cps + ([self.fcp] if self.fcp else []):
                fin = self.fcp and cp == self.fcp
                lw = self.lab('L_ctl'); lg = self.lab('L_ctl_go')
                e(f'{lw}:')
                e(f's_cmp_ge_u32 s57, 0x100000\ns_cbranch_scc1 L_ctl_done')
                e(f'ds_read_b32 v{vT}, v{vCnt} offset:32\ns_add_u32 s57, s57, 1\ns_waitcnt lgkmcnt(0)\nv_readfirstlane_b32 s56, v{vT}')
                e(f's_cmp_ge_u32 s56, {cp}\ns_cbranch_scc1 {lg}\ns_sleep {self.csleep}\ns_branch {lw}')
                e(f'{lg}:')
                e(f's_add_u32 s54, s55, {cp << 8:#x}\nv_mov_b32 v{vT}, 1')
                if 'noat' not in self.dbg: e(f'buffer_atomic_add v{vT}, v{vT2}, s[36:39], s54 offen sc0 sc1')
                if fin:
                    ut = 0
                    for r, dty in enumerate(self.utab): ut |= dty << (4 * r)
                    e(f's_mov_b32 s50, {ut & 0xffffffff:#x}\ns_mov_b32 s51, {ut >> 32:#x}')
                e(f's_waitcnt vmcnt(0)\nv_readfirstlane_b32 s54, v{vT}\ns_and_b32 s54, s54, 30\ns_lshl_b32 s54, s54, 1\ns_lshr_b64 s[62:63], s[50:51], s54\ns_and_b32 s54, s62, 15')
                if fin:
                    e(f'v_mov_b32 v{vT}, s54\nds_max_u32 v{vCnt}, v{vT} offset:24')
                else:
                    if self.leak:
                        e(f's_lshr_b32 s53, s53, {self.leak}\ns_add_u32 s54, s54, s53\ns_min_u32 s54, s54, 4\ns_mov_b32 s53, s54')
                    e(f's_add_u32 s56, s54, {cp + 2}\ns_cmp_eq_u32 s54, 0\ns_cselect_b32 s56, 0, s56\nv_mov_b32 v{vT}, s56')
                    e(f'ds_write_b32 v{vCnt}, v{vT} offset:20')
            e('L_ctl_done:\ns_mov_b64 exec, -1')
        e('s_branch L_a_b2')
        c('wave a=1: softmax statistics')
        e('L_a_stats:')
        self.lds_wait(7, 4, vCnt, vT, 56, sleep=32)
        SV = 128
        e(f'v_mov_b32 v{vT}, {L_MW:#x}\nds_read_b128 v[{U}:{U+3}], v{vT}')
        vSl = vL16
        for i in range(16):
            e(f'ds_read_b128 v[{SV+4*i}:{SV+4*i+3}], v{vSl} offset:{L_S + i*1024}')
            if i % 8 == 7: e('s_waitcnt lgkmcnt(0)')
        e(f'v_max3_f32 v{vT}, v{U}, v{U+1}, v{U+2}\nv_max_f32 v{vT}, v{vT}, v{U+3}')
        e(f'v_mul_f32 v{vT}, {f2u(-1.4426950408889634):#x}, v{vT}\ns_mov_b32 s53, {f2u(1.4426950408889634):#x}')
        for i in range(64): e(f'v_fma_f32 v{SV+i}, v{SV+i}, s53, v{vT}')
        for i in range(64): e(f'v_exp_f32 v{SV+i}, v{SV+i}')
        for k in range(4): e(f'v_fma_f32 v{U+k}, v{U+k}, s53, v{vT}')
        for k in range(4): e(f'v_exp_f32 v{U+k}, v{U+k}')
        n = 32
        while n >= 2:
            for i in range(0, n, 2): e(f'v_pk_add_f32 v[{SV+i}:{SV+i+1}], v[{SV+i}:{SV+i+1}], v[{SV+n+i}:{SV+n+i+1}]')
            n //= 2
        e(f'v_add_f32 v{SV}, v{SV}, v{SV+1}')
        self.ror_reduce('v_add_f32', SV)
        self.swap_reduce('v_add_f32', SV, vT, 16)
        self.swap_reduce('v_add_f32', SV, vT, 32)
        e(f'v_rcp_f32 v{SV}, v{SV}\ns_nop 0')
        for k in range(4): e(f'v_mul_f32 v{U+k}, v{U+k}, v{SV}')
        e(f'v_mov_b32 v{vT}, {L_FW:#x}\nds_write_b128 v{vT}, v[{U}:{U+3}]')
        e('L_a_b2:')
        e(f'v_mul_u32_u24 v{vBa}, 272, v{vC7}\nv_lshl_add_u32 v{vBa}, v{vG}, 4, v{vBa}\nv_add_u32 v{vBa}, {L_OL:#x}, v{vBa}')
        if self.wolate:
            if self.wolate == 99: self.lds_wait(6, 64, vCnt, vT, 56, sleep=4)
            elif self.wolate > 100:
                self.lds_wait(8, 28, vCnt, vT, 56, sleep=8)
                self.lds_wait(1, 64 * (self.wolate - 100), vCnt, vT, 56, sleep=1)
            else: self.lds_wait(8, self.wolate, vCnt, vT, 56, sleep=4)
            wodma()
        e('s_waitcnt lgkmcnt(0)')
        e('s_barrier')
        if self.wolate: woops()
        e('s_barrier')
        if 'st3' in self.dbg: self.stamp(12)
        for kk in range(4): e(f'ds_read_b128 v[{BB+4*kk}:{BB+4*kk+3}], v{vBa} offset:{kk*64}')
        e('s_waitcnt lgkmcnt(0)')
        mm128(True)
        e('s_nop 7')
        merge_tag(D0, D1, TG, TB, 49)
        e(f'buffer_store_dwordx4 v[{D0}:{D0+3}], v{vSt}, s[36:39], s61 offen sc1')
        if 'b4x' in self.dbg: e('s_barrier')
        if self.stamps:
            self.stamp(13)
            e('s_cmp_lg_u32 s3, 0\ns_cbranch_scc1 L_end')
            self.flush_stamps([8, 9, 10, 11, 12, 13, 14, 15], 200)

if __name__ == '__main__':
    import argparse
    ap = argparse.ArgumentParser()
    ap.add_argument('out'); ap.add_argument('--depth', type=int, default=5); ap.add_argument('--pdepth', type=int, default=5)
    ap.add_argument('--stamps', action='store_true'); ap.add_argument('--wpol', default='nt')
    ap.add_argument('--edepth', type=int, default=31); ap.add_argument('--usw', type=int, default=28); ap.add_argument('--ddepth', type=int, default=0); ap.add_argument('--thr', type=int, default=48); ap.add_argument('--cstart', type=int, default=6); ap.add_argument('--dbg', default=''); ap.add_argument('--cper', type=int, default=4); ap.add_argument('--table', default='0000000000112234'); ap.add_argument('--qsleep', type=int, default=0); ap.add_argument('--gwait', type=int, default=2); ap.add_argument('--hwait', type=int, default=4); ap.add_argument('--csleep', type=int, default=4); ap.add_argument('--burst', type=int, default=0); ap.add_argument('--xs', default='sc1'); ap.add_argument('--qj', type=int, default=0); ap.add_argument('--qpol', default='sc1'); ap.add_argument('--fpol', default='sc1'); ap.add_argument('--xl', default='sc1'); ap.add_argument('--prio', type=int, default=0); ap.add_argument('--prof', action='store_true'); ap.add_argument('--skip', type=int, default=0); ap.add_argument('--pmask', type=lambda x: int(x, 16), default=0); ap.add_argument('--ppol', default='none'); ap.add_argument('--cps', default=''); ap.add_argument('--fcp', type=int, default=0); ap.add_argument('--utab', default='0000000000000000'); ap.add_argument('--uq', type=int, default=0); ap.add_argument('--usync', type=int, default=0); ap.add_argument('--leak', type=int, default=0); ap.add_argument('--amap', default='12,14'); ap.add_argument('--bmap', default=''); ap.add_argument('--xr', default=''); ap.add_argument('--dpat', default=''); ap.add_argument('--ppat', default=''); ap.add_argument('--epat', default=''); ap.add_argument('--ltab', default=''); ap.add_argument('--lq', type=int, default=2); ap.add_argument('--fp2', type=int, default=0); ap.add_argument('--gdepth', default=''); ap.add_argument('--wod', type=int, default=0); ap.add_argument('--wqd', type=int, default=0); ap.add_argument('--peel', type=int, default=-1); ap.add_argument('--wolate', type=int, default=0); ap.add_argument('--wog', type=int, default=32); ap.add_argument('--d0', type=int, default=0)
    a = ap.parse_args()
    open(a.out, 'w').write(Gen(a.depth, a.pdepth, a.stamps, a.wpol.replace('none', ''), a.edepth, a.usw, a.prio, a.prof, a.skip, a.ddepth, a.thr, a.cstart, a.dbg, a.cper, a.table, a.qsleep, a.gwait, a.hwait, a.csleep, a.burst, a.xs, a.xl, a.qj, a.qpol, a.fpol, a.pmask, a.ppol, a.cps, a.fcp, a.utab, a.uq, a.usync, a.leak, a.amap, a.bmap, a.xr, a.dpat, a.ppat, a.epat, a.ltab, a.lq, a.fp2, a.gdepth, a.wod, a.wqd, a.peel, a.wolate, a.wog, a.d0).build())
```

```python
import sys, struct
KN = 'parallel_sum__mha_block_cached__glu_gated_bilinear__decode_kernel'

def f2u(x): return struct.unpack('<I', struct.pack('<f', x))[0]

L_WQ = 0x00000
L_S = 0x00000
L_GATE = 0x08000
L_WO = 0x08000
L_UP = 0x10000
L_DOWN = 0x18000
L_XQ = 0x20000
L_XF = 0x20800
L_OL = 0x20800
L_QL = 0x21800
L_HL = 0x21900
L_DP = 0x22100
L_MW = 0x22900
L_FW = 0x22910
L_FF = 0x22920
L_CNT = 0x229a0
L_ZERO = 0x229e0
L_NONCE = 0x22a20
LDS_SIZE = 0x22a80
W_BSTRIDE = 0x80000
W_QP = 0x00000
W_AP = 0x20000
W_GU = 0x400000
W_OX = 0x500000
W_H = 0x520000
W_CT = 0x540000
W_CL = 0x550000
W_SIZE = 0x600000
W_STAMP = 0x20000000

TB = 12
TMASK = (1 << TB) - 1

class Gen:
    def __init__(self, depth=5, pdepth=5, stamps=False, wpol='nt', edepth=31, usw=28, prio=0, prof=False, skip=0, ddepth=0, thr=48, cstart=6, dbg='', cper=4, table='0000000000112234', qsleep=0, gwait=2, hwait=4, csleep=4, burst=0, xs='sc1', xl='sc1', qj=0, qpol='sc1', fpol='sc1', pmask=0, ppol='', cps='', fcp=0, utab='', uq=0, usync=0, leak=0, amap='12,14', bmap='', xr='', dpat='', ppat='', epat='', ltab='', lq=2, fp2=0, gdepth='', wod=0, wqd=0, peel=-1, wolate=0, wog=32, d0=0, fst='', gus=0):
        self.gus = gus
        self.fst = fst.replace('+', ' ').replace('none', ' ')
        self.d0 = d0
        self.wog = wog
        self.wolate = wolate
        self.peel = peel
        self.wod = wod; self.wqd = wqd
        self.gdepth = [int(x) for x in gdepth]
        self.fp2 = fp2
        self.ltab = [int(ch, 16) for ch in ltab]; self.lq = lq
        self.dpat = [int(x) for x in dpat] or [depth]; self.ppat = [int(x) for x in ppat] or [pdepth]; self.epat = [int(x, 16) for x in epat] or [ddepth]; self.pc = 0
        self.bmap = [int(x) for x in bmap.split(',')] if bmap else None; self.xr = [int(x, 0) for x in xr.split(',')] if xr else None
        self.pw, self.pu = [int(x) for x in amap.split(',')]
        self.cps = [int(x) for x in cps.split(',')] if cps else None; self.fcp = fcp; self.utab = [int(ch, 16) for ch in utab]; self.uq = uq; self.usync = usync; self.leak = leak
        self.pmask = pmask; self.ppol = ppol.replace('+', ' ').replace('none', '')
        self.qj = qj; self.qpol = qpol.replace('+', ' '); self.fpol = fpol.replace('+', ' ')
        self.xs = xs.replace('+', ' '); self.xl = xl.replace('+', ' ')
        self.burst = burst
        self.qsleep = qsleep; self.gwait = gwait; self.hwait = hwait; self.csleep = csleep
        self.cper = cper; self.table = [int(ch, 16) for ch in table]
        self.dbg = set(dbg.split(','))
        self.skip = skip; self.ddepth = ddepth; self.thr = thr; self.cstart = cstart
        self.edepth = edepth; self.usw = usw; self.prio = prio; self.prof = prof
        self.L = []; self.depth = depth; self.pdepth = pdepth; self.stamps = stamps; self.uid = 0; self.wpol = wpol
    def e(self, s):
        for l in s.split('\n'): self.L.append('    ' + l.strip() if not l.strip().endswith(':') else l.strip())
    def c(self, s): self.L.append('    ; ' + s)
    def lab(self, p='L'):
        self.uid += 1; return f'{p}_{self.uid}'
    def srd(self, d, plo, phi, off_lo=None, size=None, size_sgpr=None):
        e = self.e
        if off_lo is None:
            e(f's_mov_b32 s{d}, s{plo}\ns_mov_b32 s{d+1}, s{phi}')
        else:
            e(f's_add_u32 s{d}, s{plo}, s{off_lo}\ns_addc_u32 s{d+1}, s{phi}, 0')
        if size_sgpr is not None: e(f's_mov_b32 s{d+2}, s{size_sgpr}')
        else: e(f's_mov_b32 s{d+2}, {size:#x}')
        e(f's_mov_b32 s{d+3}, 0x20000')
    def stamp(self, idx):
        if self.stamps:
            self.e(f's_memrealtime s[{64+2*idx}:{65+2*idx}]\ns_waitcnt lgkmcnt(0)')
    def flush_stamps(self, idxs, vt):
        if not self.stamps: return
        e = self.e
        e(f's_add_u32 s96, s26, {W_STAMP:#x}\ns_addc_u32 s97, s27, 0\ns_mov_b32 s98, 0x10000\ns_mov_b32 s99, 0x20000')
        e(f's_lshl_b32 s60, s2, 7\nv_mov_b32 v{vt+2}, s60')
        for i in idxs:
            e(f'v_mov_b32 v{vt}, s{64+2*i}\nv_mov_b32 v{vt+1}, s{65+2*i}')
            e(f'buffer_store_dwordx2 v[{vt}:{vt+1}], v{vt+2}, s[96:99], 0 offen offset:{i*8}\ns_nop 1')
    def ror_reduce(self, op, v, steps=(8, 4, 2, 1)):
        for s in steps:
            self.e(f's_nop 1\n{op}_dpp v{v}, v{v}, v{v} row_ror:{s} row_mask:0xf bank_mask:0xf')
    def swap_reduce(self, op, v, t, which):
        self.e(f'v_mov_b32 v{t}, v{v}\ns_nop 1\nv_permlane{which}_swap_b32 v{v}, v{t}\ns_nop 0\n{op} v{v}, v{v}, v{t}')
    def rnd_bf16(self, v, t=None):
        self.e(f'v_cvt_pk_bf16_f32 v{v}, v{v}, v{v}\nv_and_b32 v{v}, 0xffff0000, v{v}')
    def arrive(self, cnt, vaddr_zero, vt, sret):
        e = self.e
        e(f's_mov_b64 exec, 1\nv_mov_b32 v{vt}, 1')
        e(f'ds_add_rtn_u32 v{vt}, v{vaddr_zero}, v{vt} offset:{cnt*4}')
        e(f's_waitcnt lgkmcnt(0)\nv_readfirstlane_b32 s{sret}, v{vt}\ns_mov_b64 exec, -1')
    def lds_wait(self, cnt, target, vaddr_zero, vt, st, sleep=0):
        e = self.e; l = self.lab('L_w'); d = self.lab('L_wd')
        e(f's_mov_b32 s{st+1}, 0')
        e(f'{l}:')
        e(f'ds_read_b32 v{vt}, v{vaddr_zero} offset:{cnt*4}')
        e(f's_waitcnt lgkmcnt(0)\nv_readfirstlane_b32 s{st}, v{vt}')
        e(f's_cmp_ge_u32 s{st}, {target}\ns_cbranch_scc1 {d}')
        if sleep: e(f's_sleep {sleep}')
        e(f's_add_u32 s{st+1}, s{st+1}, 1\ns_cmp_lt_u32 s{st+1}, 0x100000\ns_cbranch_scc1 {l}')
        e(f'{d}:')

    def build(self):
        e, c = self.e, self.c
        D = self.depth; PD = self.pdepth; WP = self.wpol
        hdr = open('parallel_sum__mha_block_cached__glu_gated_bilinear__decode.s.ref').read().split('; @launch')[0]
        self.L.append(hdr.rstrip('\n'))
        self.L.append(f'; @launch grid=(256,1,1) block=(512,1,1) lds={LDS_SIZE}')
        self.L.append('.amdgcn_target "amdgcn-amd-amdhsa--gfx950"\n.text')
        self.L.append(f'.globl {KN}\n.p2align 8\n.type {KN},@function\n{KN}:')
        e('s_cmp_ge_u32 s2, 256\ns_cbranch_scc1 L_end')
        if self.stamps: e('s_memrealtime s[64:65]')
        e('v_cmp_gt_u32 vcc, 32, v0\ns_cbranch_vccz L_nozero')
        e(f'v_lshlrev_b32 v1, 2, v0\nv_and_b32 v1, 63, v1\nv_mov_b32 v2, 0\nds_write_b32 v1, v2 offset:{L_CNT & 0xffff}' if False else
          f'v_lshlrev_b32 v1, 2, v0\nv_and_b32 v1, 127, v1\nv_add_u32 v1, {L_CNT:#x}, v1\nv_mov_b32 v2, 0\nds_write_b32 v1, v2\ns_waitcnt lgkmcnt(0)')
        e('L_nozero:')
        e('s_load_dwordx16 s[4:19], s[0:1], 0\ns_load_dwordx8 s[20:27], s[0:1], 64')
        e('v_and_b32 v1, 63, v0\nv_lshrrev_b32 v2, 6, v0')
        e('s_lshr_b32 s44, s2, 5\ns_and_b32 s45, s2, 31')
        e('v_readfirstlane_b32 s3, v2')
        e('s_lshl_b32 s46, s45, 3\ns_add_u32 s46, s46, s44\ns_lshr_b32 s47, s46, 2\ns_and_b32 s48, s46, 3')
        if 'lateb0' not in self.dbg: e('s_barrier')
        e('s_cmp_ge_u32 s3, 4\ns_cbranch_scc1 L_aux')
        self.stream()
        e('L_aux:')
        self.aux()
        e('L_end:\ns_endpgm')
        self.L.append('.section .rodata,"a"\n.p2align 6')
        self.L.append(f'.amdhsa_kernel {KN}\n  .amdhsa_next_free_vgpr 256\n  .amdhsa_next_free_sgpr 102\n  .amdhsa_accum_offset 256')
        self.L.append('  .amdhsa_group_segment_fixed_size 0\n  .amdhsa_kernarg_size 96\n  .amdhsa_user_sgpr_count 2\n  .amdhsa_user_sgpr_kernarg_segment_ptr 1\n  .amdhsa_system_sgpr_workgroup_id_x 1\n.end_amdhsa_kernel')
        out = []
        for l in '\n'.join(self.L).split('\n'):
            if 's[36:39]' in l and l.rstrip().endswith(' sc1') and 'atomic' not in l and ' nt ' not in l:
                if 'store' in l: l = l.rstrip()[:-4] + ' ' + self.xs
                else: l = l.rstrip()[:-4] + ' ' + self.xl
            out.append(l)
        return '\n'.join(out) + '\n'

    def stream(self):
        e, c = self.e, self.c
        D = self.depth; PD = self.pdepth; WP = self.wpol; DP = self.ddepth
        vP, vV, vGU, vDN, vSa, vMax, vS, vA, vB, vT, vNM, vSn, vPp = 2, 6, 10, 11, 12, 13, 14, 15, 16, 17, 18, 19, 20
        vCnt = 21; vDec = 10; vPr = 11; vIt = 60
        DD = [24, 28]; Q = 32; MK = 48; AA = 52; O = 56; RING = 64
        NS = 32
        c('=== stream waves (0..3) ===')
        if self.prio: e(f's_setprio {self.prio}')
        e(f'v_mov_b32 v{vCnt}, {L_CNT:#x}')
        e(f'v_and_b32 v{vP}, 3, v1\nv_lshlrev_b32 v{vP}, 4, v{vP}')
        e(f'v_bfe_u32 v{vT}, v1, 2, 2\nv_lshl_add_u32 v{vP}, v{vT}, 8, v{vP}')
        e(f'v_lshrrev_b32 v{vT}, 4, v1\nv_lshl_add_u32 v{vP}, v{vT}, 6, v{vP}')
        AM = 0xff000 & ~(3 << self.pw) & ~(3 << self.pu)
        assert bin(AM).count('1') == 4
        HB = AM & -AM; AM2 = AM ^ HB; PB = AM2 & -AM2
        def advance():
            if AM2 == PB * 7: e(f's_add_u32 s51, s51, {PB:#x}\ns_add_u32 s55, s55, {PB:#x}')
            else: e(f's_or_b32 s51, s51, {0xffffffff ^ AM2:#x}\ns_add_u32 s51, s51, {PB:#x}\ns_and_b32 s51, s51, {AM2:#x}\ns_or_b32 s55, s51, {HB:#x}')
        P16 = 192
        if self.bmap:
            bm = self.bmap; assert sorted(bm) == list(range(10, 16))
            HB = 0x10000
            def advance():
                e('s_add_u32 s100, s100, 0x20000\ns_xor_b32 s51, s100, s101\ns_xor_b32 s55, s51, 0x10000')
            e(f's_lshl_b32 s49, s3, 12\ns_and_b32 s53, s3, 1\ns_lshl_b32 s53, s53, {bm[4]}\ns_lshr_b32 s54, s3, 1\ns_lshl_b32 s54, s54, {bm[5]}\ns_or_b32 s53, s53, s54')
            if self.xr:
                e(f's_mul_i32 s54, s2, {self.xr[0]}\ns_lshl_b32 s54, s54, {self.xr[1]}\ns_and_b32 s54, s54, {self.xr[2]:#x}')
                e('s_and_b32 s101, s54, 0xf0000\ns_and_b32 s54, s54, 0xfc00\ns_xor_b32 s53, s53, s54')
            else: e('s_mov_b32 s101, 0')
            e(f'v_xor_b32 v{vP}, s53, v{vP}')
            for j in range(16):
                cj = sum(((j >> i) & 1) << bm[i] for i in range(4))
                e(f'v_xor_b32 v{P16+j}, {cj:#x}, v{vP}')
            e('s_lshl_b32 s50, s2, 20\ns_mov_b32 s100, 0\ns_mov_b32 s51, s101\ns_xor_b32 s55, s101, 0x10000')
        else:
            e(f's_lshl_b32 s49, s3, 12\ns_lshl_b32 s53, s3, {self.pw}')
            e(f'v_add_u32 v{vP}, s53, v{vP}')
            for u in range(1, 4): e(f'v_add_u32 v{vP+u}, {u << self.pu:#x}, v{vP}')
            e('s_lshl_b32 s50, s2, 20')
            e(f's_mov_b32 s51, 0\ns_mov_b32 s55, {HB:#x}')
        e('s_waitcnt lgkmcnt(0)')
        self.srd(40, 6, 7, 50, 0x100000)
        def kload(j):
            so = 's51' if j < 16 else 's55'
            if self.bmap:
                e(f'buffer_load_dwordx4 v[{RING+4*j}:{RING+4*j+3}], v{P16+j%16}, s[40:43], {so} offen nt'); return
            e(f'buffer_load_dwordx4 v[{RING+4*j}:{RING+4*j+3}], v{vP+(j%16)//4}, s[40:43], {so} offen offset:{(j%4)*1024} ' + (self.ppol if (self.pmask >> j) & 1 else 'nt'))
        def pst(i):
            if self.prof: e(f's_memrealtime s[62:63]\ns_waitcnt lgkmcnt(0)\nv_writelane_b32 v22, s62, {36+i}')
        B0 = self.burst or PD
        pst(0)
        for j in range(B0): kload(j)
        if 'lateb0' in self.dbg: e('s_barrier')
        pst(1)
        if self.bmap:
            e(f'v_lshlrev_b32 v{vV}, 4, v1\nv_xor_b32 v{vV}, v{vP}, v{vV}\nv_and_b32 v{vV}, 0x3ff, v{vV}')
        else:
            e(f'v_lshlrev_b32 v{vV}, 4, v1\nv_add_u32 v{vV}, s53, v{vV}')
            for u in range(1, 4): e(f'v_add_u32 v{vV+u}, {u << self.pu:#x}, v{vV}')
        def pwait():
            e(f's_waitcnt vmcnt({self.ppat[self.pc % len(self.ppat)]-1})'); self.pc += 1
        def dma(srd, vo, n, step):
            for i in range(n):
                if self.gdepth: e(f's_waitcnt vmcnt({self.gdepth[(srd-28)//4]-1})')
                else: pwait()
                e(f'buffer_load_dwordx4 v{vo}, s[{srd}:{srd+3}], s54 offen {WP} lds')
                if i < n - 1: e(f's_add_u32 m0, m0, 0x400\ns_add_u32 s54, s54, {step}')
        e('s_cmp_ge_u32 s46, 224\ns_cbranch_scc1 L_s_nodma')
        e(f'v_lshrrev_b32 v{vT}, 3, v1\nv_mul_u32_u24 v{vGU}, 7168, v{vT}\nv_and_b32 v{vT}, 7, v1\nv_lshl_add_u32 v{vGU}, v{vT}, 4, v{vGU}')
        e(f's_mul_i32 s52, s48, {256*7168}\ns_lshl_b32 s53, s47, 7\ns_add_u32 s52, s52, s53\ns_sub_u32 s53, {1024*7168}, s52')
        if 'cgu' in self.dbg:
            e(f'v_lshlrev_b32 v{vGU}, 4, v1\ns_lshl_b32 s52, s46, 15\ns_sub_u32 s53, {1024*7168}, s52')
        self.srd(28, 16, 17, 52, size_sgpr=53)
        self.srd(32, 18, 19, 52, size_sgpr=53)
        e(f's_lshl_b32 s56, s3, 13')
        for (srd, lbase) in ((28, L_GATE), (32, L_UP)):
            if 'cgu' in self.dbg:
                e(f's_add_u32 m0, s56, {lbase:#x}\ns_mul_i32 s54, s3, 8192')
                dma(srd, vGU, 8, 1024)
                continue
            e(f's_add_u32 m0, s56, {lbase:#x}\ns_mul_i32 s54, s3, {64*7168}')
            dma(srd, vGU, 8, 8*7168)
            pst(2 if srd == 28 else 3)
        e('L_s_nodma:')
        e(f'v_lshrrev_b32 v{vT}, 4, v1\nv_lshlrev_b32 v{vDN}, 11, v{vT}\nv_and_b32 v{vT}, 15, v1\nv_lshl_add_u32 v{vDN}, v{vT}, 4, v{vDN}')
        e(f's_mul_i32 s52, s45, {112*2048}\ns_lshl_b32 s53, s44, 8\ns_add_u32 s52, s52, s53\ns_sub_u32 s53, {3584*2048}, s52')
        if 'cdn' in self.dbg:
            e(f'v_lshlrev_b32 v{vDN}, 4, v1\ns_mul_i32 s52, s2, 28672\ns_sub_u32 s53, {3584*2048}, s52')
            self.srd(36, 20, 21, 52, size_sgpr=53)
            e(f's_mul_i32 s56, s3, 7168\ns_add_u32 m0, s56, {L_DOWN:#x}\ns_mul_i32 s54, s3, 7168')
            dma(36, vDN, 7, 1024)
        else:
            self.srd(36, 20, 21, 52, size_sgpr=53)
            e(f's_mul_i32 s56, s3, 7168\ns_add_u32 m0, s56, {L_DOWN:#x}\ns_mul_i32 s54, s3, {28*2048}')
            dma(36, vDN, 7, 4*2048)
        pst(4)
        for u in range(1, 4):
            m = 0x11111111 << u
            e(f's_mov_b32 s{54+2*u}, {m:#x}\ns_mov_b32 s{55+2*u}, {m:#x}')
        e(f'v_and_b32 v{vT}, 1, v1\nv_cmp_eq_u32 vcc, 1, v{vT}\nv_mov_b32 v{vA}, 0xffff\nv_mov_b32 v{vB}, 0xffff0000')
        e(f'v_cndmask_b32 v{vA}, v{vA}, v{vB}, vcc')
        e(f'v_bfe_u32 v{vT}, v1, 1, 3')
        for i in range(4):
            e(f'v_cmp_eq_u32 vcc, {i}, v{vT}\ns_nop 1\nv_cndmask_b32 v{MK+i}, 0, v{vA}, vcc')
        e(f'v_lshlrev_b32 v{vSa}, 2, v1\nv_add_u32 v{vSa}, s49, v{vSa}')
        if L_S: e(f'v_add_u32 v{vSa}, {L_S:#x}, v{vSa}')
        e(f'v_mov_b32 v{vMax}, 0xff800000')
        for i in range(4): e(f'v_mov_b32 v{O+i}, 0')
        e(f'v_mov_b32 v{vDec}, {self.d0}\ns_lshl_b32 s54, s3, 2\nv_add_u32 v{vPr}, s54, v{vCnt}')
        if self.d0: e(f'ds_write_b32 v{vCnt}, v{vDec} offset:20')
        e(f'v_and_b32 v{vA}, 3, v1\nv_lshrrev_b32 v{vT}, 4, v1\nv_lshl_add_u32 v{vA}, v{vT}, 2, v{vA}\nv_lshlrev_b32 v{vA}, 4, v{vA}\nv_add_u32 v{vA}, {L_QL:#x}, v{vA}')
        e(f'v_bfe_u32 v{vT}, v1, 2, 2\nv_mov_b32 v{vB}, {L_ZERO:#x}')
        for t in range(4):
            e(f'v_cmp_eq_u32 vcc, {t}, v{vT}\ns_nop 1\nv_cndmask_b32 v{AA+t}, v{vB}, v{vA}, vcc')
        for j in range(B0, NS):
            pwait(); kload(j)
            if j == 19: pst(5)
            if j == self.qj: e(f'ds_write_b32 v{vPr}, v{vCnt} offset:48')
        if self.ltab:
            assert not self.uq and DP
            lt = 0
            for r, dty in enumerate(self.ltab): lt |= dty << (4 * r)
            self.srd(36, 26, 27, None, W_SIZE)
            e(f's_mov_b32 s28, 0\ns_mov_b32 s29, 0\ns_mov_b32 s32, {lt & 0xffffffff:#x}\ns_mov_b32 s33, {lt >> 32:#x}\nv_mov_b32 v209, 0')
            e(f's_getreg_b32 s30, hwreg(HW_REG_XCC_ID, 0, 3)\ns_lshl_b32 s30, s30, 13\ns_add_u32 s30, s30, {W_CL:#x}')
        pst(6)
        self.stamp(1)
        e('s_barrier')
        for t in range(4): e(f'ds_read_b128 v[{Q+4*t}:{Q+4*t+3}], v{AA+t}')
        e('s_waitcnt lgkmcnt(0)')
        self.stamp(2)
        e('s_mov_b32 s52, 0')
        vR = 208; vZ = 209; LT = self.ltab
        def qtop(isv, u):
            if not LT: return
            if u == self.lq:
                e(f'v_readfirstlane_b32 s31, v{vR}\ns_nop 0\ns_bfe_u32 s31, s31, 0x40003\ns_lshl_b32 s31, s31, 2\ns_lshr_b64 s[34:35], s[32:33], s31\ns_and_b32 s31, s34, 15')
                e('s_add_u32 s31, s31, s28\ns_max_u32 s29, s29, s31')
            e('s_cmp_lt_u32 s28, s29\ns_cselect_b64 vcc, -1, 0\ns_add_u32 s28, s28, 1')
            if isv: e(f's_cmp_ge_u32 s52, {self.usw}')
        def halftop(isv):
            if self.prof: e('s_mov_b32 m0, s52\ns_nop 0\nv_writelane_b32 v22, s62, m0')
            e(f'v_mov_b32 v{vIt}, s52\nds_write_b32 v{vPr}, v{vIt} offset:32')
            if DP:
                e(f'v_readfirstlane_b32 s54, v{vDec}\ns_nop 0')
                e(f'ds_read_b32 v{vDec}, v{vCnt} offset:20')
                if LT:
                    e('s_lshl_b32 s54, s54, 2\ns_max_u32 s29, s29, s54')
                    e(f'v_mov_b32 v{vR}, 1\ns_mov_b64 exec, 1')
                    e(f'buffer_atomic_add v{vR}, v{vZ}, s[36:39], s30 offen sc0')
                    e('s_mov_b64 exec, -1\ns_add_u32 s30, s30, 0x100')
                    return
                e('s_cmp_lt_u32 s52, s54\ns_cselect_b64 vcc, -1, 0')
            if isv and not self.uq: e(f's_cmp_ge_u32 s52, {self.usw}')
        def gate(isv, j):
            D = self.dpat[j % len(self.dpat)]; DP = self.epat[j % len(self.epat)]
            if LT:
                if j % 16 < D: D += 1
                if j % 16 < DP: DP += 1
            lm = self.lab('L_m'); lx = self.lab('L_x')
            if isv: e(f's_cbranch_scc1 {lx}')
            if DP: e(f's_cbranch_vccnz {lm}')
            e(f's_waitcnt vmcnt({D-1})')
            if DP: e(f'{lm}:\ns_waitcnt vmcnt({DP-1})')
            if isv: e(f'{lx}:\ns_waitcnt vmcnt({self.edepth-1})')
        c('---- K loop ----')
        e('L_kloop:')
        advance()
        e('s_cmp_lg_u32 s52, 14\ns_cbranch_scc1 L_k_go')
        if self.bmap:
            e('s_add_u32 s40, s8, s50\ns_addc_u32 s41, s9, 0\ns_mov_b32 s100, 0\ns_mov_b32 s51, s101\ns_xor_b32 s55, s101, 0x10000')
            for j in range(16): e(f'v_xor_b32 v{P16+j}, v{vV}, v{P16+j}')
        else:
            e(f's_add_u32 s40, s8, s50\ns_addc_u32 s41, s9, 0\ns_mov_b32 s51, 0\ns_mov_b32 s55, {HB:#x}')
            for u in range(4): e(f'v_mov_b32 v{vP+u}, v{vV+u}')
        e('L_k_go:')
        def reduce(u):
            d = DD[u & 1]
            q1, q2, q3 = (u + 1) & 3, (u + 2) & 3, (u + 3) & 3
            e(f'v_add_f32_dpp v{vA}, v{d+q1}, v{d+q2} quad_perm:[{q1},{q1},{q1},{q1}] row_mask:0xf bank_mask:0xf')
            e(f'v_add_f32_dpp v{vB}, v{d+q3}, v{d+u} quad_perm:[{q3},{q3},{q3},{q3}] row_mask:0xf bank_mask:0xf')
            e('s_nop 0')
            dst = vS if u == 0 else vB
            e(f'v_add_f32_dpp v{dst}, v{vA}, v{vB} quad_perm:[{q2},{q2},{q2},{q2}] row_mask:0xf bank_mask:0xf')
            if u: e(f'v_cndmask_b32 v{vS}, v{vS}, v{vB}, s[{54+2*u}:{55+2*u}]')
        for hf in range(2):
            if self.prof: e('s_memrealtime s[62:63]')
            if DP or self.prof: e('s_waitcnt lgkmcnt(0)')
            halftop(False)
            for u in range(4):
                d = DD[u & 1]
                qtop(False, u)
                for t in range(4):
                    j = 16 * hf + 4 * u + t
                    cc = '0' if t == 0 else f'v[{d}:{d+3}]'
                    e(f'v_mfma_f32_16x16x32_bf16 v[{d}:{d+3}], v[{RING+4*j}:{RING+4*j+3}], v[{Q+4*t}:{Q+4*t+3}], {cc}')
                    if t == 2 and u > 0: reduce(u - 1)
                    gate(False, j); kload(j)
            e('s_nop 5')
            reduce(3)
            e(f'v_cvt_pk_bf16_f32 v{vS}, v{vS}, v{vS}\nv_lshlrev_b32 v{vS}, 16, v{vS}\nv_mul_f32 v{vS}, {f2u(128.0**-0.5):#x}, v{vS}')
            self.rnd_bf16(vS)
            e(f'v_max_f32 v{vMax}, v{vMax}, v{vS}\nds_write_b32 v{vSa}, v{vS}\nv_add_u32 v{vSa}, 0x100, v{vSa}')
            e('s_add_u32 s52, s52, 1')
        e('s_cmp_lt_u32 s52, 16\ns_cbranch_scc1 L_kloop')
        c('---- transition ----')
        e(f'v_add_u32 v{vSa}, -4096, v{vSa}')
        e(f'ds_read_b32 v{vSn}, v{vSa}')
        self.ror_reduce('v_max_f32', vMax)
        self.swap_reduce('v_max_f32', vMax, vT, 16)
        self.swap_reduce('v_max_f32', vMax, vT, 32)
        LOG2E = f2u(1.4426950408889634)
        e(f's_mov_b32 s53, {LOG2E:#x}')
        e(f'v_mul_f32 v{vNM}, {f2u(-1.4426950408889634):#x}, v{vMax}')
        e(f's_lshl_b32 s54, s3, 2\ns_add_u32 s54, s54, {L_MW:#x}\nv_mov_b32 v{vT}, s54')
        e(f'ds_write_b32 v{vT}, v{vMax}')
        e(f's_mov_b64 exec, 1\nv_mov_b32 v{vT}, 1\nds_add_u32 v{vCnt}, v{vT} offset:{7*4}\ns_mov_b64 exec, -1')
        self.stamp(3)
        c('---- V loop ----')
        assert self.edepth <= NS - 1
        vU = 61; vBig = 62
        if self.uq: e(f's_mov_b32 s56, 64\nv_mov_b32 v{vU}, 0\nv_mov_b32 v{vBig}, 64')
        e('L_vloop:')
        advance()
        PEEL = self.peel >= 0
        if not PEEL: e('s_cmp_eq_u32 s52, 30\ns_cselect_b32 s42, 0, s42')
        for hf in range(2):
            if self.prof: e('s_memrealtime s[62:63]')
            e(f'v_add_u32 v{vSa}, 0x100, v{vSa}')
            e('s_waitcnt lgkmcnt(0)')
            e(f'v_fma_f32 v{vT}, v{vSn}, s53, v{vNM}')
            e(f'ds_read_b32 v{vSn}, v{vSa}')
            e(f'v_exp_f32 v{vT}, v{vT}')
            halftop(not PEEL)
            e(f'v_cvt_pk_bf16_f32 v{vPp}, v{vT}, v{vT}\ns_nop 1')
            for u in range(4):
                qtop(True, u)
                if self.uq and not PEEL:
                    if u: e('s_waitcnt lgkmcnt(0)')
                    e(f'v_readfirstlane_b32 s57, v{vU}\ns_add_u32 s56, s56, 1')
                    e(f'ds_read_b32 v{vU}, v{vCnt} offset:24')
                    e(f's_add_u32 s57, s57, s56\ns_cmp_gt_u32 s57, {self.uq}')
                    if self.usync:
                        lq = self.lab('L_q')
                        e(f's_cbranch_scc0 {lq}\nds_write_b32 v{vCnt}, v{vBig} offset:24\n{lq}:')
                for t in range(4):
                    j = 16 * hf + 4 * u + t
                    for i in range(4):
                        e(f'v_and_b32_dpp v{AA+i}, v{vPp}, v{MK+i} row_newbcast:{4*t+u} row_mask:0xf bank_mask:0xf')
                    e('s_nop 1')
                    e(f'v_mfma_f32_16x16x32_bf16 v[{O}:{O+3}], v[{AA}:{AA+3}], v[{RING+4*j}:{RING+4*j+3}], v[{O}:{O+3}]')
                    gate(not PEEL, j); kload(j)
            e('s_add_u32 s52, s52, 1')
        e(f's_cmp_lt_u32 s52, {28 if PEEL else 32}\ns_cbranch_scc1 L_vloop')
        if PEEL:
            assert not LT
            c('---- last four halves: straight line, the last two without loads ----')
            PP = [vPp, 216, 217, 218]; AB = [AA, 212]
            advance()
            if self.prof: e('s_memrealtime s[62:63]')
            e('s_waitcnt lgkmcnt(0)')
            e(f'v_fma_f32 v{vT}, v{vSn}, s53, v{vNM}')
            for k in range(1, 4): e(f'ds_read_b32 v{PP[k]}, v{vSa} offset:{k*256}')
            if self.uq: e(f'ds_read_b32 v{vU}, v{vCnt} offset:24')
            e(f'v_exp_f32 v{vT}, v{vT}')
            halftop(False)
            e(f'v_cvt_pk_bf16_f32 v{vPp}, v{vT}, v{vT}\ns_nop 1')
            def ands(g):
                u, t = (g % 16) // 4, g % 4
                for i in range(4):
                    e(f'v_and_b32_dpp v{AB[g&1]+i}, v{PP[g//16]}, v{MK+i} row_newbcast:{4*t+u} row_mask:0xf bank_mask:0xf')
            def step(g, gated):
                j = g % 32
                if self.wolate > 100 and g == self.wog:
                    assert not gated
                    e(f's_mov_b64 exec, 1\nds_add_u32 v{vCnt}, v{vBig} offset:4\ns_mov_b64 exec, -1')
                if self.prof and g and g % 16 == 0:
                    e(f's_memrealtime s[62:63]\ns_waitcnt lgkmcnt(0)\nv_writelane_b32 v22, s62, {28 + g//16}')
                if g < 63: ands(g + 1)
                else: e('s_nop 0')
                if not gated: e(f's_waitcnt vmcnt({min(31, 63 - g)})')
                e(f'v_mfma_f32_16x16x32_bf16 v[{O}:{O+3}], v[{AB[g&1]}:{AB[g&1]+3}], v[{RING+4*j}:{RING+4*j+3}], v[{O}:{O+3}]')
                if g < 32:
                    if gated: gate(False, j)
                    kload(j)
            ands(0)
            G1 = 2 * self.uq if self.uq else self.peel
            assert 2 <= G1 <= 32
            for g in range(G1):
                if g == 1:
                    e('s_waitcnt lgkmcnt(0)')
                    for k in range(1, 4): e(f'v_fma_f32 v{PP[k]}, v{PP[k]}, s53, v{vNM}')
                    for k in range(1, 4): e(f'v_exp_f32 v{PP[k]}, v{PP[k]}')
                    e(f'v_and_b32 v{vA}, 15, v1\nv_lshlrev_b32 v{vA}, 5, v{vA}\nv_lshrrev_b32 v{vT}, 4, v1\nv_lshl_add_u32 v{vA}, v{vT}, 4, v{vA}')
                    e(f's_lshl_b32 s54, s3, 9\ns_add_u32 s54, s54, {L_DP:#x}\nv_add_u32 v{vA}, s54, v{vA}')
                    for k in range(1, 4): e(f'v_cvt_pk_bf16_f32 v{PP[k]}, v{PP[k]}, v{PP[k]}')
                    self.srd(36, 26, 27, None, W_SIZE)
                if self.uq and g >= 2 and g % 2 == 0:
                    e(f's_waitcnt lgkmcnt(0)\nv_readfirstlane_b32 s57, v{vU}\ns_nop 0')
                    e(f'ds_read_b32 v{vU}, v{vCnt} offset:24')
                    e(f's_cmp_ge_u32 s57, {self.uq - g // 2}\ns_cbranch_scc1 L_fast{g}')
                step(g, True)
            if self.uq:
                e(f's_branch L_fast{G1}')
                for g in range(2, 64):
                    if g % 2 == 0 and g <= G1:
                        e(f'L_fast{g}:')
                        if self.usync and g % 4 == 2 or g == G1 and self.usync: e(f'ds_write_b32 v{vCnt}, v{vBig} offset:24')
                    step(g, False)
            else:
                for g in range(G1, 64): step(g, False)
            e('s_mov_b32 exec_hi, 0\ns_nop 6')
            e(f'ds_write_b128 v{vA}, v[{O}:{O+3}]')
            e('s_mov_b64 exec, -1')
        if self.prof:
            e(f's_memrealtime s[62:63]\ns_add_u32 s96, s26, {W_STAMP+0x10000:#x}\ns_addc_u32 s97, s27, 0\ns_mov_b32 s98, 0x100000\ns_mov_b32 s99, 0x20000')
            e('s_waitcnt lgkmcnt(0)\nv_writelane_b32 v22, s62, 32\nv_writelane_b32 v22, s64, 33')
            e('s_getreg_b32 s54, hwreg(HW_REG_HW_ID)\ns_nop 0\nv_writelane_b32 v22, s54, 34\ns_getreg_b32 s54, hwreg(HW_REG_XCC_ID)\ns_nop 0\nv_writelane_b32 v22, s54, 35')
            e('s_lshl_b32 s54, s2, 2\ns_add_u32 s54, s54, s3\ns_lshl_b32 s54, s54, 8\nv_lshlrev_b32 v23, 2, v1')
            e('buffer_store_dword v22, v23, s[96:99], s54 offen')
        c('---- stream epilogue ----')
        if not PEEL:
            e(f'v_and_b32 v{vA}, 15, v1\nv_lshlrev_b32 v{vA}, 5, v{vA}\nv_lshrrev_b32 v{vT}, 4, v1\nv_lshl_add_u32 v{vA}, v{vT}, 4, v{vA}')
            e(f's_lshl_b32 s54, s3, 9\ns_add_u32 s54, s54, {L_DP:#x}\nv_add_u32 v{vA}, s54, v{vA}')
            e('s_mov_b32 exec_hi, 0')
            e(f'ds_write_b128 v{vA}, v[{O}:{O+3}]')
            e('s_mov_b64 exec, -1')
            self.srd(36, 26, 27, None, W_SIZE)
        e('s_waitcnt lgkmcnt(0)')
        self.stamp(4)
        e('s_barrier')
        e('s_cmp_eq_u32 s3, 0\ns_cbranch_scc1 L_final\ns_cmp_lg_u32 s3, 1\ns_cbranch_scc1 L_end')
        c('---- wave 1: combine o and publish ----')
        e(f'v_lshlrev_b32 v{vA}, 3, v1\nv_add_u32 v{vA}, {L_DP:#x}, v{vA}\nv_mov_b32 v{vB}, {L_FW:#x}')
        e(f'ds_read_b128 v[{Q}:{Q+3}], v{vB}')
        for w in range(4): e(f'ds_read_b64 v[{Q+4+2*w}:{Q+5+2*w}], v{vA} offset:{w*512}')
        e(f's_lshl_b32 s54, s46, 8\ns_add_u32 s54, s54, {W_OX:#x}\nv_lshlrev_b32 v{vT}, 2, v1')
        e('s_waitcnt lgkmcnt(0)')
        e(f'v_mul_f32 v{vA}, v{Q}, v{Q+4}\nv_mul_f32 v{vB}, v{Q}, v{Q+5}')
        for w in range(1, 4): e(f'v_fmac_f32 v{vA}, v{Q+w}, v{Q+4+2*w}\nv_fmac_f32 v{vB}, v{Q+w}, v{Q+5+2*w}')
        e(f'v_cvt_pk_bf16_f32 v{vA}, v{vA}, v{vB}')
        e(f'v_min_u32 v{vA}, 0xfffffffe, v{vA}')
        e(f'buffer_store_dword v{vA}, v{vT}, s[36:39], s54 offen ' + ('nt sc1' if 'oxs' in self.dbg else 'sc1'))
        self.stamp(5)
        c('collect o of the 8 batches of this head')
        R = RING
        e(f's_lshl_b32 s54, s45, 11\ns_add_u32 s54, s54, {W_OX:#x}\nv_lshlrev_b32 v{vT}, 4, v1')
        e(f'v_lshrrev_b32 v{vA}, 4, v1\nv_lshl_add_u32 v{vP}, v{vA}, 4, v{vT}\nv_add_u32 v{vP}, {L_OL:#x}, v{vP}')
        e('s_mov_b64 s[56:57], -1\ns_mov_b64 s[58:59], -1\ns_mov_b32 s55, 0')
        e('L_opoll:')
        for k in range(2):
            e(f's_mov_b64 exec, s[{56+2*k}:{57+2*k}]')
            e(f'buffer_load_dwordx4 v[{R+4*k}:{R+4*k+3}], v{vT}, s[36:39], s54 offen offset:{k*1024} ' + ('nt sc1' if 'oxl' in self.dbg else 'sc1'))
        e('s_mov_b64 exec, -1\ns_add_u32 s55, s55, 1\ns_waitcnt vmcnt(0)')
        e(f'v_max3_u32 v{vA}, v{R}, v{R+1}, v{R+2}\nv_max3_u32 v{vB}, v{R+4}, v{R+5}, v{R+6}\nv_max_u32 v{vA}, v{vA}, v{R+3}\nv_max_u32 v{vB}, v{vB}, v{R+7}')
        e(f'v_cmp_eq_u32 s[56:57], -1, v{vA}\nv_cmp_eq_u32 s[58:59], -1, v{vB}')
        e('s_cmp_ge_u32 s55, 0x10000\ns_cbranch_scc1 L_ogo\ns_or_b64 vcc, s[56:57], s[58:59]\ns_cbranch_scc1 L_opoll\nL_ogo:')
        e(f'ds_write_b128 v{vP}, v[{R}:{R+3}]\nds_write_b128 v{vP}, v[{R+4}:{R+7}] offset:{4*272}')
        e('s_waitcnt lgkmcnt(0)\ns_barrier')
        self.flush_stamps([5], 200)
        e('s_endpgm')
        c('---- wave 0: final reduction ----')
        e('L_final:')
        R = RING
        e(f'v_and_b32 v{vA}, 7, v1\nv_lshlrev_b32 v{vA}, 4, v{vA}\nv_add_u32 v{vA}, {L_FF:#x}, v{vA}')
        e(f'ds_read_b128 v[{Q}:{Q+3}], v{vA}\nds_read_b64 v[{Q+4}:{Q+5}], v{vCnt} offset:{L_NONCE-L_CNT}')
        e(f's_mul_i32 s54, s44, {W_BSTRIDE:#x}\ns_lshl_b32 s55, s45, 12\ns_add_u32 s54, s54, s55\ns_add_u32 s54, s54, {W_AP:#x}')
        e(f'v_lshlrev_b32 v{vT}, 4, v1')
        self.srd(32, 22, 23, None, 0x4000)
        e('s_mov_b32 s55, 0\ns_waitcnt vmcnt(0) lgkmcnt(0)')
        self.tags_from(Q + 4, MK)
        for i in range(4): e(f's_mov_b64 s[{56+2*i}:{57+2*i}], -1')
        def issue(S):
            for i in range(4):
                e(f's_mov_b64 exec, s[{56+2*i}:{57+2*i}]')
                e(f'buffer_load_dwordx4 v[{S+4*i}:{S+4*i+3}], v{vT}, s[36:39], s54 offen offset:{i*1024} ' + ('nt sc1' if 'apl' in self.dbg else 'sc1'))
        def process(S, n):
            for i in range(4):
                e(f's_mov_b64 exec, s[{56+2*i}:{57+2*i}]\ns_waitcnt vmcnt({n+3-i})')
                for k in range(4): e(f'v_xor_b32 v{R+16+4*i+k}, v{S+4*i+k}, v{MK+k}')
                e(f'v_or3_b32 v{vA}, v{R+16+4*i}, v{R+17+4*i}, v{R+18+4*i}\nv_or_b32 v{vA}, v{vA}, v{R+19+4*i}\nv_and_b32 v{vA}, {TMASK:#x}, v{vA}')
                e(f'v_cmp_ne_u32 s[{56+2*i}:{57+2*i}], 0, v{vA}')
            e('s_or_b64 vcc, s[56:57], s[58:59]\ns_or_b64 s[50:51], s[60:61], s[62:63]\ns_or_b64 vcc, vcc, s[50:51]')
        if self.fp2:
            SA = R; SB = R + 32
            if 'early' in self.dbg: issue(SA)
            e('s_barrier')
            if 'early' in self.dbg: process(SA, 0)
            if 'nob4' not in self.dbg: e('s_barrier')
            issue(SA)
            e(f's_sleep {self.fp2}')
            e('L_fpoll:')
            issue(SB); process(SA, 4)
            e('s_cbranch_scc0 L_fgo')
            issue(SA); process(SB, 4)
            e('s_cbranch_scc0 L_fgo')
            e('s_add_u32 s55, s55, 1\ns_cmp_lt_u32 s55, 0x8000\ns_cbranch_scc1 L_fpoll')
            e('L_fgo:\ns_mov_b64 exec, -1')
        elif 'early' in self.dbg:
            issue(R)
            e('s_barrier')
            process(R, 0)
            if 'nob4' not in self.dbg: e('s_barrier')
            e('L_fpoll:')
            issue(R); process(R, 0)
            e('s_cbranch_scc0 L_fgo')
            e('s_add_u32 s55, s55, 1\ns_cmp_lt_u32 s55, 0x10000\ns_cbranch_scc1 L_fpoll')
            e('L_fgo:\ns_mov_b64 exec, -1')
        else:
            e('s_barrier')
            if 'nob4' not in self.dbg: e('s_barrier')
            e('L_fpoll:')
            for i in range(4):
                e(f's_mov_b64 exec, s[{56+2*i}:{57+2*i}]')
                e(f'buffer_load_dwordx4 v[{R+4*i}:{R+4*i+3}], v{vT}, s[36:39], s54 offen offset:{i*1024} ' + ('nt sc1' if 'apl' in self.dbg else 'sc1'))
            e('s_mov_b64 exec, -1\ns_add_u32 s55, s55, 1')
            for i in range(4):
                e(f's_waitcnt vmcnt({3-i})')
                for k in range(4): e(f'v_xor_b32 v{R+16+4*i+k}, v{R+4*i+k}, v{MK+k}')
                e(f'v_or3_b32 v{vA}, v{R+16+4*i}, v{R+17+4*i}, v{R+18+4*i}\nv_or_b32 v{vA}, v{vA}, v{R+19+4*i}\nv_and_b32 v{vA}, {TMASK:#x}, v{vA}')
                e(f'v_cmp_ne_u32 s[{56+2*i}:{57+2*i}], 0, v{vA}')
            e('s_cmp_ge_u32 s55, 0x10000\ns_cbranch_scc1 L_fgo')
            e('s_or_b64 vcc, s[56:57], s[58:59]\ns_or_b64 s[50:51], s[60:61], s[62:63]\ns_or_b64 vcc, vcc, s[50:51]\ns_cbranch_scc1 L_fpoll\nL_fgo:')
        self.stamp(7)
        R = R + 16
        self.colsum(R, 4, vT)
        e('s_waitcnt lgkmcnt(0)')
        for i in range(4): e(f'v_add_f32 v{R+i}, v{Q+i}, v{R+i}')
        e(f'v_cvt_pk_bf16_f32 v{R}, v{R}, v{R+1}\nv_cvt_pk_bf16_f32 v{R+1}, v{R+2}, v{R+3}')
        e(f's_lshl_b32 s54, s2, 6\nv_lshlrev_b32 v{vT}, 3, v1\ns_mov_b64 exec, 0xff')
        e(f'buffer_store_dwordx2 v[{R}:{R+1}], v{vT}, s[32:35], s54 offen')
        e('s_mov_b64 exec, -1')
        self.stamp(6)
        self.flush_stamps([0, 1, 2, 3, 4, 6, 7], 200)
        e('s_endpgm')

    def colsum(self, R, n, vt):
        e = self.e
        for i in range(1, n):
            for k in range(4): e(f'v_add_f32 v{R+k}, v{R+k}, v{R+4*i+k}')
        e('s_nop 1')
        for k in range(4): e(f'v_add_f32_dpp v{R+k}, v{R+k}, v{R+k} row_ror:8 row_mask:0xf bank_mask:0xf')
        for which in (16, 32):
            for k in range(4): e(f'v_mov_b32 v{R+4+k}, v{R+k}')
            e('s_nop 0')
            for k in range(4): e(f'v_permlane{which}_swap_b32 v{R+k}, v{R+4+k}')
            for k in range(4): e(f'v_add_f32 v{R+k}, v{R+k}, v{R+4+k}')

    def tags_from(self, nv, tg):
        self.e(f'v_and_b32 v{tg}, {TMASK:#x}, v{nv}\nv_bfe_u32 v{tg+1}, v{nv}, 16, {TB}\nv_and_b32 v{tg+2}, {TMASK:#x}, v{nv+1}\nv_bfe_u32 v{tg+3}, v{nv+1}, 16, {TB}')
    def untag(self, R, n, tg, t0, t1, mask):
        e = self.e
        for i in range(4 * n): e(f'v_xor_b32 v{R+i}, v{R+i}, v{tg + (i & 3)}')
        e(f'v_or3_b32 v{t0}, v{R}, v{R+1}, v{R+2}\nv_or3_b32 v{t1}, v{R+3}, v{R+4}, v{R+5}')
        i = 6; k = 0
        while i < 4 * n:
            t = (t0, t1)[k & 1]; e(f'v_or3_b32 v{t}, v{t}, v{R+i}, v{R+i+1}'); i += 2; k += 1
        e(f'v_or_b32 v{t0}, v{t0}, v{t1}\nv_and_b32 v{t0}, {mask:#x}, v{t0}\nv_cmp_ne_u32 vcc, 0, v{t0}')

    def aux(self):
        e, c = self.e, self.c
        WP = self.wpol
        vCnt, vT, vT2, vG, vC, vC7, vSt, vTr, vL16, vX = 2, 3, 4, 5, 6, 7, 8, 9, 10, 11
        X = 16
        U = 32
        TG = 64
        XFr = 68
        NV = 28
        c('=== aux waves (4..7) ===')
        e('s_sub_u32 s3, s3, 4')
        e(f'v_mov_b32 v{vCnt}, {L_CNT:#x}')
        e(f'v_lshrrev_b32 v{vG}, 4, v1\nv_and_b32 v{vC}, 15, v1\nv_and_b32 v{vC7}, 7, v1\nv_lshlrev_b32 v{vL16}, 4, v1')
        e(f'v_lshrrev_b32 v{vT}, 5, v1\nv_lshlrev_b32 v{vT}, 11, v{vT}\nv_and_b32 v{vT2}, 31, v1')
        e(f's_lshl_b32 s49, s3, 12\nv_add_u32 v{vT}, s49, v{vT}')
        e(f'v_lshl_add_u32 v{vX}, v{vT2}, 4, v{vT}')
        vWq = 15
        e(f'v_lshrrev_b32 v{vT}, 3, v1\nv_lshlrev_b32 v{vWq}, 13, v{vT}\nv_lshl_add_u32 v{vWq}, v{vC7}, 4, v{vWq}')
        e('s_lshl_b32 s50, s48, 21\ns_lshl_b32 s51, s47, 7\ns_add_u32 s50, s50, s51\ns_sub_u32 s51, 0x800000, s50')
        e('s_lshl_b32 s53, s48, 9')
        e(f's_lshl_b32 s54, s3, 13\ns_add_u32 m0, s54, {L_WQ:#x}\ns_lshl_b32 s55, s3, 19')
        e('s_memrealtime s[62:63]')
        e(f'v_lshrrev_b32 v{vT}, 3, v{vC}\nv_lshlrev_b32 v{vSt}, 6, v{vT}\nv_lshl_add_u32 v{vSt}, v{vG}, 4, v{vSt}\nv_lshl_add_u32 v{vSt}, v{vC7}, 19, v{vSt}')
        e(f'v_mov_b32 v{vT2}, 0')
        e('s_xor_b32 s60, s3, 3\ns_or_b32 s60, s60, s2')
        e('s_waitcnt lgkmcnt(0)')
        self.srd(40, 24, 25, None, 256)
        self.srd(36, 26, 27, None, W_SIZE)
        e('s_cmp_lg_u32 s60, 0\ns_cbranch_scc1 L_a_noz')
        c('workgroup 0: publish the launch nonce: four fields of the clock, field 0 odd, field 1 even')
        e(f's_lshl_b32 s56, s62, 1\ns_or_b32 s56, s56, 1\ns_and_b32 s56, s56, {TMASK:#x}\ns_bfe_u32 s57, s62, {((TB-1) << 16) | (TB-1):#x}\ns_lshl_b32 s57, s57, 17\ns_or_b32 s56, s56, s57')
        e(f's_lshr_b64 s[62:63], s[62:63], {2*TB-2}\ns_and_b32 s57, s62, {TMASK:#x}\ns_bfe_u32 s62, s62, {(TB << 16) | TB:#x}\ns_lshl_b32 s62, s62, 16\ns_or_b32 s57, s57, s62\ns_or_b32 s57, s57, 0x80000000')
        e(f'v_mov_b32 v{TG}, s56\nv_mov_b32 v{TG+1}, s57\ns_mov_b64 exec, 1')
        e(f'buffer_store_dwordx2 v[{TG}:{TG+1}], v{vT2}, s[40:43], 0 offen ' + ('nt sc1' if 'nonnt' in self.dbg else 'sc1') + '\ns_mov_b64 exec, -1')
        if self.ddepth and 'z2' in self.dbg:
            c('zero the progress counters (they only steer queue depth)')
            if 'sh16' in self.dbg: e(f'v_lshlrev_b32 v{vT}, 8, v{vG}\nv_lshl_add_u32 v{vT}, v{vC}, 13, v{vT}')
            elif 'sh4' in self.dbg: e(f'v_lshrrev_b32 v{vT}, 2, v1\nv_lshlrev_b32 v{vT}, 8, v{vT}\nv_and_b32 v{U}, 3, v1\nv_lshl_add_u32 v{vT}, v{U}, 13, v{vT}')
            else: e(f'v_lshrrev_b32 v{vT}, 3, v1\nv_lshlrev_b32 v{vT}, 8, v{vT}\nv_lshl_add_u32 v{vT}, v{vC7}, 13, v{vT}')
            e(f's_mov_b32 s56, {W_CT:#x}\nbuffer_store_dword v{vT2}, v{vT}, s[36:39], s56 offen sc1')
        elif self.ddepth and 'z1' not in self.dbg:
            c('zero the progress counters (they only steer queue depth)')
            e(f'v_lshlrev_b32 v{vT}, 8, v1\ns_mov_b32 s56, {W_CT:#x}')
            nz = 8 if (self.ltab or 'sh16' in self.dbg) else 4
            for i in range(nz):
                e(f'buffer_store_dword v{vT2}, v{vT}, s[36:39], s56 offen sc1')
                if i < nz - 1: e('s_add_u32 s56, s56, 0x4000')
        e('L_a_noz:')
        if 'preap' in self.dbg:
            e(f's_mul_i32 s56, s44, {W_BSTRIDE:#x}\ns_lshl_b32 s57, s45, 12\ns_add_u32 s56, s56, s57\ns_lshl_b32 s57, s3, 10\ns_add_u32 s56, s56, s57\ns_add_u32 s56, s56, {W_AP:#x}')
            e(f'buffer_load_dwordx4 v[116:119], v{vL16}, s[36:39], s56 offen sc1')
        if 'pregu' in self.dbg:
            e(f's_lshl_b32 s56, s46, 12\ns_lshl_b32 s57, s3, 10\ns_add_u32 s56, s56, s57\ns_add_u32 s56, s56, {W_GU:#x}')
            e(f'buffer_load_dwordx4 v[116:119], v{vL16}, s[36:39], s56 offen sc1')
        if 'preq' in self.dbg:
            e('s_cmp_ge_u32 s3, 2\ns_cbranch_scc1 L_a_nopreq')
            e(f's_mul_i32 s56, s44, {W_BSTRIDE:#x}\ns_lshl_b32 s57, s45, 11\ns_add_u32 s56, s56, s57\ns_lshl_b32 s57, s3, 10\ns_add_u32 s56, s56, s57')
            e(f'buffer_load_dwordx4 v[120:123], v{vL16}, s[36:39], s56 offen sc1')
            e('L_a_nopreq:')
        if 'pre' in self.dbg or 'pre1' in self.dbg:
            e('s_cmp_ge_u32 s3, 2\ns_cbranch_scc1 L_a_nopre')
            e(f's_mul_i32 s56, s44, {W_BSTRIDE:#x}\ns_lshl_b32 s57, s45, 11\ns_add_u32 s56, s56, s57\ns_lshl_b32 s57, s3, 10\ns_add_u32 s56, s56, s57')
            if 'pre1' in self.dbg: e('s_mov_b64 exec, 1')
            e(f'buffer_load_dwordx4 v[120:123], v{vL16}, s[36:39], s56 offen sc1')
            e(f's_lshl_b32 s56, s46, 8\ns_lshl_b32 s57, s3, 7\ns_add_u32 s56, s56, s57')
            if 'pre1' in self.dbg: e('s_mov_b64 exec, 0xff\ns_add_u32 s56, s56, 0x10000')
            e(f'buffer_load_dwordx4 v[124:127], v{vSt}, s[36:39], s56 offen sc1')
            if 'pre1' in self.dbg: e('s_mov_b64 exec, -1')
            e('L_a_nopre:')
        self.srd(28, 4, 5, None, 0x4000)
        self.srd(32, 10, 11, 50, size_sgpr=51)
        for i in range(4): e(f'buffer_load_dwordx4 v[{X+4*i}:{X+4*i+3}], v{vX}, s[28:31], 0 offen offset:{i*512}')
        e(f'buffer_load_dwordx4 v[{XFr}:{XFr+3}], v{vX}, s[28:31], s53 offen')
        for i in range(8):
            e(f'buffer_load_dwordx4 v{vWq}, s[32:35], s55 offen {WP} lds')
            if i < 7: e(f's_add_u32 m0, m0, 0x400\ns_add_u32 s55, s55, 0x10000\ns_nop 0')
        if 'lateb0' in self.dbg: e('s_barrier')
        c('a=2: clear own OX slot with the sentinel')
        e('s_cmp_lg_u32 s3, 2\ns_cbranch_scc1 L_a_nocl')
        for k in range(4): e(f'v_mov_b32 v{U+k}, -1')
        e(f's_lshl_b32 s54, s46, 8\ns_add_u32 s54, s54, {W_OX:#x}\ns_mov_b64 exec, 0xffff')
        e(f'buffer_store_dwordx4 v[{U}:{U+3}], v{vL16}, s[36:39], s54 offen ' + ('nt sc1 ' if 'clnt' in self.dbg else 'sc1') + '\ns_mov_b64 exec, -1\ns_nop 0')
        e('L_a_nocl:')
        e(f's_lshl_b32 s61, s44, 14\ns_lshl_b32 s55, s3, 12\ns_add_u32 s61, s61, s55\ns_lshl_b32 s55, s45, 7\ns_add_u32 s61, s61, s55\ns_add_u32 s61, s61, {W_AP:#x}')
        self.stamp(14)
        c('LN stats')
        e('s_waitcnt vmcnt(9)')
        self.stamp(15)
        for i in range(16):
            e(f'v_lshlrev_b32 v{U+2*i}, 16, v{X+i}\nv_and_b32 v{U+2*i+1}, 0xffff0000, v{X+i}')
        S0 = 12
        e(f'v_pk_add_f32 v[{S0}:{S0+1}], v[{U}:{U+1}], v[{U+2}:{U+3}]\nv_pk_add_f32 v[{S0+2}:{S0+3}], v[{U+4}:{U+5}], v[{U+6}:{U+7}]')
        for i in range(4, 16):
            a = S0 + 2 * (i & 1)
            e(f'v_pk_add_f32 v[{a}:{a+1}], v[{a}:{a+1}], v[{U+2*i}:{U+2*i+1}]')
        e(f'v_pk_add_f32 v[{S0}:{S0+1}], v[{S0}:{S0+1}], v[{S0+2}:{S0+3}]\nv_add_f32 v{S0}, v{S0}, v{S0+1}')
        self.ror_reduce('v_add_f32', S0)
        self.swap_reduce('v_add_f32', S0, vT, 16)
        M = X
        e(f'v_mul_f32 v{M}, {f2u(-1.0/1024):#x}, v{S0}\nv_mov_b32 v{M+1}, v{M}')
        for i in range(16): e(f'v_pk_add_f32 v[{U+2*i}:{U+2*i+1}], v[{U+2*i}:{U+2*i+1}], v[{M}:{M+1}]')
        e(f'v_pk_mul_f32 v[{S0}:{S0+1}], v[{U}:{U+1}], v[{U}:{U+1}]\nv_pk_mul_f32 v[{S0+2}:{S0+3}], v[{U+2}:{U+3}], v[{U+2}:{U+3}]')
        for i in range(2, 16):
            a = S0 + 2 * (i & 1)
            e(f'v_pk_fma_f32 v[{a}:{a+1}], v[{U+2*i}:{U+2*i+1}], v[{U+2*i}:{U+2*i+1}], v[{a}:{a+1}]')
        e(f'v_pk_add_f32 v[{S0}:{S0+1}], v[{S0}:{S0+1}], v[{S0+2}:{S0+3}]\nv_add_f32 v{S0}, v{S0}, v{S0+1}')
        self.ror_reduce('v_add_f32', S0)
        self.swap_reduce('v_add_f32', S0, vT, 16)
        RR, RC = S0, S0 + 1
        e(f'v_mul_f32 v{RR}, {f2u(1.0/1024):#x}, v{S0}'); self.rnd_bf16(RR)
        e(f'v_add_f32 v{RR}, {f2u(1e-5):#x}, v{RR}'); self.rnd_bf16(RR)
        e(f'v_sqrt_f32 v{RR}, v{RR}\ns_nop 0'); self.rnd_bf16(RR)
        e(f'v_rcp_f32 v{RC}, v{RR}')
        self.rnd_bf16(M)
        def norm(src, n):
            for i in range(n):
                a, b2, q0, q1 = U, U + 1, U + 2, U + 3
                e(f'v_lshlrev_b32 v{a}, 16, v{src+i}\nv_and_b32 v{b2}, 0xffff0000, v{src+i}')
                e(f'v_add_f32 v{a}, v{a}, v{M}\nv_add_f32 v{b2}, v{b2}, v{M}')
                e(f'v_cvt_pk_bf16_f32 v{b2}, v{a}, v{b2}')
                e(f'v_lshlrev_b32 v{a}, 16, v{b2}\nv_and_b32 v{b2}, 0xffff0000, v{b2}')
                e(f'v_mul_f32 v{q0}, v{a}, v{RC}\nv_mul_f32 v{q1}, v{b2}, v{RC}')
                e(f'v_fma_f32 v{a}, -v{q0}, v{RR}, v{a}\nv_fma_f32 v{b2}, -v{q1}, v{RR}, v{b2}')
                e(f'v_fmac_f32 v{q0}, v{a}, v{RC}\nv_fmac_f32 v{q1}, v{b2}, v{RC}')
                e(f'v_cvt_pk_bf16_f32 v{src+i}, v{q0}, v{q1}')
        e('s_waitcnt vmcnt(8)')
        e('s_cmp_lg_u32 s3, 3\ns_cbranch_scc1 L_a_nn1')
        if 'nonon' in self.dbg: e(f'v_mov_b32 v{NV}, 0x01230457\nv_mov_b32 v{NV+1}, 0x89ab0cde')
        else: e(f'buffer_load_dwordx2 v[{NV}:{NV+1}], v{vT2}, s[40:43], 0 offen ' + ('nt sc1' if 'nolnt' in self.dbg else 'sc1'))
        e('L_a_nn1:')
        norm(XFr, 4)
        e(f's_lshl_b32 s54, s3, 10\ns_add_u32 s54, s54, {L_XF:#x}\nv_add_u32 v{vT}, s54, v{vL16}')
        e(f'ds_write_b128 v{vT}, v[{XFr}:{XFr+3}]')
        e(f'v_bfe_u32 v{vT}, v1, 2, 2\nv_lshl_add_u32 v{vX}, v{vG}, 3, v{vT}')
        vT3 = 15; vBa = 14; vCc = 13
        e(f'v_and_b32 v{vCc}, 3, v1\nv_lshlrev_b32 v{vCc}, 3, v{vCc}')
        e(f'v_lshl_add_u32 v{vTr}, v{vX}, 8, v{vCc}\ns_lshl_b32 s54, s3, 6\nv_add_u32 v{vTr}, s54, v{vTr}')
        e(f'v_lshl_add_u32 v{vT3}, v{vX}, 7, v{vCc}\nv_add_u32 v{vT3}, s54, v{vT3}')
        e('s_mov_b32 s58, 0xff00ff00\ns_mov_b32 s59, 0xff00ff00\ns_mov_b32 s100, 0\ns_mov_b32 s101, -1\ns_mov_b32 s49, ' + hex(0xffffffff ^ TMASK))
        e(f'v_lshlrev_b32 v{vBa}, 9, v{vC7}\nv_lshl_add_u32 v{vBa}, v{vG}, 4, v{vBa}\nv_add_u32 v{vBa}, {L_XF:#x}, v{vBa}')
        e('s_waitcnt vmcnt(0)')
        e('s_cmp_lg_u32 s3, 3\ns_cbranch_scc1 L_a_nn2\ns_mov_b32 s57, 0')
        e('L_npoll:')
        e(f'v_readfirstlane_b32 s56, v{NV+1}\ns_cmp_lg_u32 s56, 0\ns_cbranch_scc1 L_ngo')
        e(f'buffer_load_dwordx2 v[{NV}:{NV+1}], v{vT2}, s[40:43], 0 offen ' + ('nt sc1' if 'nolnt' in self.dbg else 'sc1'))
        e('s_add_u32 s57, s57, 1\ns_waitcnt vmcnt(0)\ns_cmp_lt_u32 s57, 0x10000\ns_cbranch_scc1 L_npoll\nL_ngo:')
        e(f'ds_write_b64 v{vCnt}, v[{NV}:{NV+1}] offset:{L_NONCE-L_CNT}')
        e('L_a_nn2:')
        self.arrive(0, vCnt, vT, 56)
        self.lds_wait(0, 4, vCnt, vT, 56)
        self.stamp(8)
        e(f'ds_read_b64 v[{NV}:{NV+1}], v{vCnt} offset:{L_NONCE-L_CNT}')
        BB = 80; AW = 96; D0 = 72; D1 = 76
        B1 = 80; A1 = 112
        for kk in range(8): e(f'ds_read_b128 v[{B1+4*kk}:{B1+4*kk+3}], v{vBa} offset:{kk*64}')
        def tile128(base, va=vTr):
            for ct in range(2):
                for kk in range(4):
                    for hh in range(2):
                        r = AW + (ct * 4 + kk) * 4 + hh * 2
                        e(f'ds_read_b64_tr_b16 v[{r}:{r+1}], v{va} offset:{base + kk*8192 + hh*1024 + ct*32}')
                if ct == 0: e('s_waitcnt lgkmcnt(6)')
        def mm128(acc=False):
            for kk in range(4):
                for ct in range(2):
                    d = (D0, D1)[ct]; r = AW + (ct * 4 + kk) * 4
                    cc = '0' if kk == 0 and not acc else f'v[{d}:{d+3}]'
                    e(f'v_mfma_f32_16x16x32_bf16 v[{d}:{d+3}], v[{r}:{r+3}], v[{BB+4*kk}:{BB+4*kk+3}], {cc}')
        def merge_tag(da, db, tg, bits, smask):
            for i in range(4): e(f'v_cndmask_b32 v{da+i}, v{da+i}, v{db+i}, s[58:59]')
            for i in range(4): e(f'v_add_u32 v{da+i}, {1 << (bits-1):#x}, v{da+i}')
            for i in range(4): e(f'v_and_or_b32 v{da+i}, v{da+i}, s{smask}, v{tg+i}')
        def pair256(second, tg):
            for mat in range(2):
                for kk in range(8):
                    for hh in range(2):
                        r = A1 + (mat * 8 + kk) * 4 + hh * 2
                        e(f'ds_read_b64_tr_b16 v[{r}:{r+1}], v{vT3} offset:{mat*second + kk*4096 + hh*512}')
                    if kk % 4 == 3: e('s_waitcnt lgkmcnt(0)')
            for kk in range(8):
                for mat in range(2):
                    d = (D0, D1)[mat]; r = A1 + (mat * 8 + kk) * 4
                    cc = '0' if kk == 0 else f'v[{d}:{d+3}]'
                    e(f'v_mfma_f32_16x16x32_bf16 v[{d}:{d+3}], v[{r}:{r+3}], v[{B1+4*kk}:{B1+4*kk+3}], {cc}')
            e('s_nop 7')
            merge_tag(D0, D1, tg, 8, 60)
        def gpoll(name, n, emit_loads, sleep, tg, mask):
            e(f's_mov_b32 s57, 0\n{name}:')
            emit_loads()
            e(f's_add_u32 s57, s57, 1\ns_waitcnt vmcnt(0)')
            self.untag(U, n, tg, vT, vT2, mask)
            e(f's_cbranch_vccz {name}_go')
            if sleep: e(f's_sleep {sleep}')
            e(f's_cmp_lt_u32 s57, 0x10000\ns_cbranch_scc1 {name}\n{name}_go:')
        e('s_waitcnt lgkmcnt(0)')
        self.tags_from(NV, TG)
        TC = 20; TP = 24
        e(f's_mov_b32 s60, 0xffffff00\ns_mov_b32 s50, 0xaaaaaaaa\ns_mov_b32 s51, 0xaaaaaaaa\ns_mov_b32 s52, 0xffff0000\ns_mov_b32 s53, 0xffff0000')
        e(f'v_cndmask_b32 v{TC+3}, v{NV}, v{NV+1}, s[50:51]\nv_cndmask_b32 v{TP+3}, v{NV}, v{NV+1}, s[52:53]')
        for T in (TC, TP):
            e(f'v_and_b32 v{T}, 0xff, v{T+3}\nv_bfe_u32 v{T+1}, v{T+3}, 8, 8\nv_bfe_u32 v{T+2}, v{T+3}, 16, 8\nv_lshrrev_b32 v{T+3}, 24, v{T+3}')
        e('s_cmp_ge_u32 s3, 2\ns_cbranch_scc1 L_a_b1')
        c('q partial (a = 0,1): 32 columns each')
        assert L_WQ == 0
        pair256(32, TP)
        e(f's_lshl_b32 s54, s46, 8\ns_lshl_b32 s55, s3, 7\ns_add_u32 s54, s54, s55')
        e(f'buffer_store_dwordx4 v[{D0}:{D0+3}], v{vSt}, s[36:39], s54 offen {"sc1" if "qsp" in self.dbg else self.qpol} ')
        self.stamp(9)
        e('s_cmp_lg_u32 s3, 0\ns_cbranch_scc1 L_a_b1')
        c('wave a=0: gather q')
        e(f's_mul_i32 s54, s44, {W_BSTRIDE:#x}\ns_lshl_b32 s55, s45, 11\ns_add_u32 s54, s54, s55')
        if self.qj: self.lds_wait(12, 1, vCnt, vT, 56, sleep=2)
        def ql():
            for i in range(2): e(f'buffer_load_dwordx4 v[{U+4*i}:{U+4*i+3}], v{vL16}, s[36:39], s54 offen offset:{i*1024} {self.qpol}')
        gpoll('L_qpoll', 2, ql, self.qsleep, TC, 0xff)
        for k in range(4): e(f'v_permlane32_swap_b32 v{U+k}, v{U+4+k}')
        for k in range(4): e(f'v_add_f32 v{U+k}, v{U+k}, v{U+4+k}')
        for k in range(4): e(f'v_mov_b32 v{U+4+k}, v{U+k}')
        e(f'v_lshrrev_b32 v{vT}, 5, v1\nv_lshlrev_b32 v{vT}, 7, v{vT}\nv_lshl_add_u32 v{vT}, v{vC}, 3, v{vT}\nv_add_u32 v{vT}, {L_QL:#x}, v{vT}')
        for k in range(4): e(f'v_permlane16_swap_b32 v{U+k}, v{U+4+k}')
        for k in range(4): e(f'v_add_f32 v{U+k}, v{U+k}, v{U+4+k}')
        e(f'v_cvt_pk_bf16_f32 v{U}, v{U}, v{U+1}\nv_cvt_pk_bf16_f32 v{U+1}, v{U+2}, v{U+3}')
        e(f'ds_write_b64 v{vT}, v[{U}:{U+1}]')
        e('L_a_b1:')
        e(f's_lshl_b32 s54, s3, 5\ns_sub_u32 s54, {L_GATE:#x}, s54\nv_add_u32 v{vT3}, s54, v{vT3}')
        e('s_waitcnt lgkmcnt(0)')
        self.stamp(10)
        e('s_barrier')
        if self.ddepth and 'z1' in self.dbg:
            c('workgroup 0, a=2: zero the progress counters (they only steer queue depth)')
            e('s_xor_b32 s54, s3, 2\ns_or_b32 s54, s54, s2\ns_cbranch_scc1 L_a_noz1')
            e(f'v_lshrrev_b32 v{vT}, 3, v1\nv_lshlrev_b32 v{vT}, 8, v{vT}\nv_lshl_add_u32 v{vT}, v{vC7}, 13, v{vT}\nv_mov_b32 v{vT2}, 0\ns_mov_b32 s54, {W_CT:#x}')
            e(f'buffer_store_dword v{vT2}, v{vT}, s[36:39], s54 offen nt sc1 \ns_nop 0')
            e('L_a_noz1:')
        c('FFN stage 1')
        e('s_cmp_ge_u32 s46, 224\ns_cbranch_scc1 L_a_s1done')
        if self.skip >= 3: e('s_branch L_a_s1done')
        if 'gustonly' not in self.dbg: pair256(0x8000, TC)
        e(f's_lshl_b32 s54, s46, 12\ns_lshl_b32 s55, s3, 10\ns_add_u32 s54, s54, s55\ns_add_u32 s54, s54, {W_GU:#x}')
        if self.gus:
            S = self.gus
            e(f's_lshr_b32 s54, s46, {S-8}\ns_lshl_b32 s54, s54, {S+4}\ns_and_b32 s55, s46, {(1 << (S-8)) - 1}\ns_lshl_b32 s55, s55, 8\ns_add_u32 s54, s54, s55')
            e(f's_lshl_b32 s55, s3, {S+2}\ns_add_u32 s54, s54, s55\ns_add_u32 s54, s54, {W_GU:#x}')
            e(f'v_lshlrev_b32 v{vT}, {S}, v{vG}\nv_lshl_add_u32 v{vT}, v{vC}, 4, v{vT}')
            e(f'buffer_store_dwordx4 v[{D0}:{D0+3}], v{vT}, s[36:39], s54 offen {self.fst or self.fpol} \ns_nop 1')
        elif 'own' in self.dbg:
            c('the piece this workgroup reduces itself stays in LDS')
            e('s_cmp_eq_u32 s3, s48\ns_cbranch_scc1 L_a_guown')
            e(f'buffer_store_dwordx4 v[{D0}:{D0+3}], v{vL16}, s[36:39], s54 offen {self.fst or self.fpol} ')
            e('s_branch L_a_s1done\nL_a_guown:')
            e(f'v_add_u32 v{vT}, {L_XQ:#x}, v{vL16}\nds_write_b128 v{vT}, v[{D0}:{D0+3}]')
        elif 'nogust' not in self.dbg: e(f'buffer_store_dwordx4 v[{D0}:{D0+3}], v{vL16}, s[36:39], s54 offen {self.fst or self.fpol} ')
        e('L_a_s1done:')
        if 'touch' in self.dbg:
            c('a=3: one small read of the pages that are first used late (wo tile, V)')
            e('s_cmp_lg_u32 s3, 3\ns_cbranch_scc1 L_a_notouch')
            e(f'v_mov_b32 v{vT}, 0\ns_mov_b64 exec, 1')
            if 'touchout' in self.dbg:
                self.srd(32, 22, 23, None, 0x4000)
                e(f's_lshl_b32 s54, s2, 6\nbuffer_load_dword v176, v{vT}, s[32:35], s54 offen')
            self.srd(32, 12, 13, None, 0x800000)
            e(f's_lshl_b32 s54, s45, 18\nbuffer_load_dword v177, v{vT}, s[32:35], s54 offen nt')
            e('s_lshl_b32 s54, s2, 20')
            self.srd(32, 8, 9, 54, 0x100000)
            e(f'buffer_load_dword v178, v{vT}, s[32:35], 0 offen nt')
            e('s_mov_b64 exec, -1')
            e('L_a_notouch:')
        self.arrive(2, vCnt, vT, 56)
        self.lds_wait(2, 4, vCnt, vT, 56)
        def wodma():
            c('wo tile DMA')
            e('s_lshl_b32 s50, s45, 18\ns_lshl_b32 s51, s44, 8\ns_add_u32 s50, s50, s51\ns_sub_u32 s51, 0x800000, s50')
            self.srd(32, 12, 13, 50, size_sgpr=51)
            e(f'v_lshlrev_b32 v{vT}, 11, v{vG}\nv_lshl_add_u32 v{vT}, v{vC}, 4, v{vT}')
            e(f's_lshl_b32 s54, s3, 13\ns_add_u32 m0, s54, {L_WO:#x}\ns_lshl_b32 s55, s3, 16\ns_nop 0')
            for i in range(8 if self.skip < 4 else 0):
                if self.wod and i >= self.wod: e(f's_waitcnt vmcnt({self.wod-1})')
                e(f'buffer_load_dwordx4 v{vT}, s[32:35], s55 offen {WP} lds')
                if i < 7: e(f's_add_u32 m0, m0, 0x400\ns_add_u32 s55, s55, 0x2000\ns_nop 0')
        if not self.wolate: wodma()
        c('down tile operands')
        e(f'v_add_u32 v{vT3}, {L_DOWN:#x}, v{vTr}')
        tile128(0, vT3)
        e(f'v_lshrrev_b32 v{vT}, 5, v1\nv_lshlrev_b32 v{vBa}, 8, v{vT}\nv_lshl_add_u32 v{vBa}, v{vC7}, 5, v{vBa}\nv_and_b32 v{vT}, 1, v{vG}\nv_lshl_add_u32 v{vBa}, v{vT}, 4, v{vBa}\nv_add_u32 v{vBa}, {L_HL:#x}, v{vBa}')
        e('s_waitcnt lgkmcnt(0)')
        for ct in range(2):
            for i in range(4):
                r = AW + (ct * 4 + 3) * 4 + i
                e(f'v_cndmask_b32 v{r}, v{r}, 0, s[100:101]')
        e('s_cmp_lg_u32 s3, 0\ns_cbranch_scc1 L_a_hw')
        c('wave a=0: reduce one 16-column piece of g,u -> h ; then fetch the 7 pieces this workgroup needs')
        if self.skip >= 2: e('s_branch L_a_hdone')
        e('s_cmp_ge_u32 s46, 224\ns_cbranch_scc1 L_a_s15done')
        if self.gwait: self.lds_wait(8, self.gwait, vCnt, vT, 56, sleep=8)
        e(f's_lshl_b32 s54, s47, 14\ns_lshl_b32 s55, s48, 10\ns_add_u32 s54, s54, s55\ns_add_u32 s54, s54, {W_GU:#x}')
        if 'own' in self.dbg:
            for i, so in enumerate((55, 50, 51)):
                e(f's_add_u32 s{so}, s48, {i+1}\ns_and_b32 s{so}, s{so}, 3\ns_lshl_b32 s{so}, s{so}, 12\ns_add_u32 s{so}, s{so}, s54')
            e(f'v_add_u32 v{vCc}, {L_XQ:#x}, v{vL16}')
        else: e('s_add_u32 s55, s54, 0x1000\ns_add_u32 s50, s54, 0x2000\ns_add_u32 s51, s54, 0x3000')
        def gl():
            for k, so in enumerate((54, 55, 50, 51)):
                if k == 0 and 'own' in self.dbg: e(f'ds_read_b128 v[{U}:{U+3}], v{vCc}')
                else: e(f'buffer_load_dwordx4 v[{U+4*k}:{U+4*k+3}], v{vL16}, s[36:39], s{so} offen {self.fpol}')
            if 'own' in self.dbg: e('s_waitcnt lgkmcnt(0)')
        gpoll('L_gpoll', 4, gl, 32, TC, 0xff)
        e(f'v_lshlrev_b32 v{vT}, 6, v{vC7}\nv_lshl_add_u32 v{vT}, v{vG}, 4, v{vT}\ns_lshl_b32 s54, s46, 9\ns_add_u32 s54, s54, {W_H:#x}')
        for i in range(1, 4):
            for k in range(4): e(f'v_add_f32 v{U+k}, v{U+k}, v{U+4*i+k}')
        for k in range(4): self.rnd_bf16(U + k)
        e('s_nop 1')
        for k in range(4): e(f'v_mul_f32_dpp v{U+4+k}, v{U+k}, v{U+k} row_ror:8 row_mask:0xf bank_mask:0xf')
        for k in range(4): self.rnd_bf16(U + 4 + k)
        for k in range(4): e(f'v_or_b32 v{U+4+k}, v{U+4+k}, v{TG+k}')
        e('s_not_b64 exec, s[58:59]')
        e(f'buffer_store_dwordx4 v[{U+4}:{U+7}], v{vT}, s[36:39], s54 offen {self.fpol}\ns_mov_b64 exec, -1')
        e('L_a_s15done:')
        if self.hwait: self.lds_wait(8, self.hwait, vCnt, vT, 56, sleep=8)
        e(f's_mul_i32 s54, s45, {7*512}\ns_add_u32 s54, s54, {W_H:#x}\nv_and_b32 v{vCc}, 0x1ff, v{vL16}')
        def hl():
            for k in range(3): e(f'buffer_load_dwordx4 v[{U+4*k}:{U+4*k+3}], v{vL16}, s[36:39], s54 offen offset:{k*1024} {self.fpol}')
            e(f'buffer_load_dwordx4 v[{U+12}:{U+15}], v{vCc}, s[36:39], s54 offen offset:3072 {self.fpol}')
        gpoll('L_hpoll', 4, hl, 32, TG, TMASK)
        e(f'v_lshlrev_b32 v{vT}, 3, v1\nv_add_u32 v{vT}, {L_HL:#x}, v{vT}')
        for k in range(4):
            e(f'v_cvt_pk_bf16_f32 v{U+4*k}, v{U+4*k}, v{U+4*k+1}\nv_cvt_pk_bf16_f32 v{U+4*k+1}, v{U+4*k+2}, v{U+4*k+3}')
            e(f'ds_write_b64 v{vT}, v[{U+4*k}:{U+4*k+1}] offset:{k*512}')
        e('L_a_hdone:')
        self.arrive(3, vCnt, vT, 56)
        e('L_a_hw:')
        self.lds_wait(3, 1, vCnt, vT, 56, sleep=8)
        for kk in range(4): e(f'ds_read_b128 v[{BB+4*kk}:{BB+4*kk+3}], v{vBa} offset:{kk*512}')
        e('s_waitcnt lgkmcnt(0)')
        mm128()
        def woops():
            e('s_waitcnt vmcnt(0)')
            self.arrive(4, vCnt, vT, 56)
            self.lds_wait(4, 4, vCnt, vT, 56)
            c('preload wo operands')
            tile128(L_WO)
        if not self.wolate: woops()
        self.stamp(11)
        e('s_cmp_eq_u32 s3, 1\ns_cbranch_scc1 L_a_stats\ns_cmp_eq_u32 s3, 2\ns_cbranch_scc1 L_a_ctl\ns_cmp_lg_u32 s3, 0\ns_cbranch_scc1 L_a_b2')
        c('wave a=0: residual input')
        e(f's_lshl_b32 s54, s2, 6\nv_lshlrev_b32 v{vT}, 3, v{vC7}')
        e(f'buffer_load_dwordx2 v[{U}:{U+1}], v{vT}, s[28:31], s54 offen')
        e(f'v_lshlrev_b32 v{vT}, 4, v{vC7}\nv_add_u32 v{vT}, {L_FF:#x}, v{vT}\ns_waitcnt vmcnt(0)')
        e(f'v_lshlrev_b32 v{U+4}, 16, v{U}\nv_and_b32 v{U+5}, 0xffff0000, v{U}\nv_lshlrev_b32 v{U+6}, 16, v{U+1}\nv_and_b32 v{U+7}, 0xffff0000, v{U+1}')
        e(f'ds_write_b128 v{vT}, v[{U+4}:{U+7}]')
        self.stamp(12)
        e('s_branch L_a_b2')
        c('wave a=2: queue-depth controller (rank of this workgroup at each checkpoint)')
        e('L_a_ctl:')
        if self.ddepth:
            if 'sh1' in self.dbg: e(f's_mov_b32 s55, {W_CT:#x}')
            elif 'sh2' in self.dbg: e(f's_bfe_u32 s55, s2, 0x10007\ns_lshl_b32 s55, s55, 13\ns_add_u32 s55, s55, {W_CT:#x}')
            elif 'sh4' in self.dbg:
                e(f's_bfe_u32 s55, s2, 0x20006\ns_lshl_b32 s55, s55, 13\ns_add_u32 s55, s55, {W_CT:#x}')
            elif 'sh16' in self.dbg:
                e(f's_bfe_u32 s55, s2, 0x10003\ns_bfe_u32 s54, s2, 0x30005\ns_lshl_b32 s54, s54, 1\ns_or_b32 s55, s55, s54\ns_lshl_b32 s55, s55, 13\ns_add_u32 s55, s55, {W_CT:#x}')
            else:
                e(f's_bfe_u32 s55, s2, 0x10003\ns_bfe_u32 s54, s2, 0x20006\ns_lshl_b32 s54, s54, 1\ns_or_b32 s55, s55, s54\ns_lshl_b32 s55, s55, 13\ns_add_u32 s55, s55, {W_CT:#x}')
            tab = 0
            for r, dty in enumerate(self.table): tab |= dty << (4 * r)
            e(f's_mov_b32 s50, {tab & 0xffffffff:#x}\ns_mov_b32 s51, {tab >> 32:#x}')
            cps = self.cps or list(range(self.cstart, self.usw - 1, self.cper))
            e(f's_mov_b32 s57, 0\ns_mov_b32 s53, 0\nv_mov_b32 v{vT2}, 0\ns_mov_b64 exec, 1')
            for ci, cp in enumerate(cps + ([self.fcp] if self.fcp else [])):
                slot = ci if ('z1' in self.dbg or 'z2' in self.dbg) else cp
                assert slot < (4 if 'z2' in self.dbg and 'sh16' in self.dbg else 8 if ('z1' in self.dbg or 'z2' in self.dbg) else 32)
                fin = self.fcp and cp == self.fcp
                lw = self.lab('L_ctl'); lg = self.lab('L_ctl_go')
                e(f'{lw}:')
                e(f's_cmp_ge_u32 s57, 0x100000\ns_cbranch_scc1 L_ctl_done')
                e(f'ds_read_b32 v{vT}, v{vCnt} offset:32\ns_add_u32 s57, s57, 1\ns_waitcnt lgkmcnt(0)\nv_readfirstlane_b32 s56, v{vT}')
                e(f's_cmp_ge_u32 s56, {cp}\ns_cbranch_scc1 {lg}\ns_sleep {self.csleep}\ns_branch {lw}')
                e(f'{lg}:')
                e(f's_add_u32 s54, s55, {slot << 8:#x}\nv_mov_b32 v{vT}, 1')
                if 'noat' not in self.dbg: e(f'buffer_atomic_add v{vT}, v{vT2}, s[36:39], s54 offen sc0 sc1' + (' nt' if 'atnt' in self.dbg else ''))
                if fin:
                    ut = 0
                    for r, dty in enumerate(self.utab): ut |= dty << (4 * r)
                    e(f's_mov_b32 s50, {ut & 0xffffffff:#x}\ns_mov_b32 s51, {ut >> 32:#x}')
                rk = 's_and_b32 s54, s54, 0xf0\ns_lshr_b32 s54, s54, 2' if 'sh1' in self.dbg else 's_and_b32 s54, s54, 0x78\ns_lshr_b32 s54, s54, 1' if 'sh2' in self.dbg else 's_and_b32 s54, s54, 60' if 'sh4' in self.dbg else 's_and_b32 s54, s54, 15\ns_lshl_b32 s54, s54, 2' if 'sh16' in self.dbg else 's_and_b32 s54, s54, 30\ns_lshl_b32 s54, s54, 1'
                e(f's_waitcnt vmcnt(0)\nv_readfirstlane_b32 s54, v{vT}\n{rk}\ns_lshr_b64 s[62:63], s[50:51], s54\ns_and_b32 s54, s62, 15')
                if fin:
                    e(f'v_mov_b32 v{vT}, s54\nds_max_u32 v{vCnt}, v{vT} offset:24')
                else:
                    if self.leak:
                        e(f's_lshr_b32 s53, s53, {self.leak}\ns_add_u32 s54, s54, s53\ns_min_u32 s54, s54, 4\ns_mov_b32 s53, s54')
                    e(f's_add_u32 s56, s54, {cp + 2}\ns_cmp_eq_u32 s54, 0\ns_cselect_b32 s56, 0, s56\nv_mov_b32 v{vT}, s56')
                    e(f'ds_write_b32 v{vCnt}, v{vT} offset:20')
            e('L_ctl_done:\ns_mov_b64 exec, -1')
        e('s_branch L_a_b2')
        c('wave a=1: softmax statistics')
        e('L_a_stats:')
        self.lds_wait(7, 4, vCnt, vT, 56, sleep=32)
        SV = 128
        e(f'v_mov_b32 v{vT}, {L_MW:#x}\nds_read_b128 v[{U}:{U+3}], v{vT}')
        vSl = vL16
        for i in range(16):
            e(f'ds_read_b128 v[{SV+4*i}:{SV+4*i+3}], v{vSl} offset:{L_S + i*1024}')
            if i % 8 == 7: e('s_waitcnt lgkmcnt(0)')
        e(f'v_max3_f32 v{vT}, v{U}, v{U+1}, v{U+2}\nv_max_f32 v{vT}, v{vT}, v{U+3}')
        e(f'v_mul_f32 v{vT}, {f2u(-1.4426950408889634):#x}, v{vT}\ns_mov_b32 s53, {f2u(1.4426950408889634):#x}')
        for i in range(64): e(f'v_fma_f32 v{SV+i}, v{SV+i}, s53, v{vT}')
        for i in range(64): e(f'v_exp_f32 v{SV+i}, v{SV+i}')
        for k in range(4): e(f'v_fma_f32 v{U+k}, v{U+k}, s53, v{vT}')
        for k in range(4): e(f'v_exp_f32 v{U+k}, v{U+k}')
        n = 32
        while n >= 2:
            for i in range(0, n, 2): e(f'v_pk_add_f32 v[{SV+i}:{SV+i+1}], v[{SV+i}:{SV+i+1}], v[{SV+n+i}:{SV+n+i+1}]')
            n //= 2
        e(f'v_add_f32 v{SV}, v{SV}, v{SV+1}')
        self.ror_reduce('v_add_f32', SV)
        self.swap_reduce('v_add_f32', SV, vT, 16)
        self.swap_reduce('v_add_f32', SV, vT, 32)
        e(f'v_rcp_f32 v{SV}, v{SV}\ns_nop 0')
        for k in range(4): e(f'v_mul_f32 v{U+k}, v{U+k}, v{SV}')
        e(f'v_mov_b32 v{vT}, {L_FW:#x}\nds_write_b128 v{vT}, v[{U}:{U+3}]')
        e('L_a_b2:')
        e(f'v_mul_u32_u24 v{vBa}, 272, v{vC7}\nv_lshl_add_u32 v{vBa}, v{vG}, 4, v{vBa}\nv_add_u32 v{vBa}, {L_OL:#x}, v{vBa}')
        if self.wolate:
            if self.wolate == 99: self.lds_wait(6, 64, vCnt, vT, 56, sleep=4)
            elif self.wolate > 100:
                self.lds_wait(8, 28, vCnt, vT, 56, sleep=8)
                self.lds_wait(1, 64 * (self.wolate - 100), vCnt, vT, 56, sleep=1)
            else: self.lds_wait(8, self.wolate, vCnt, vT, 56, sleep=4)
            wodma()
        e('s_waitcnt lgkmcnt(0)')
        e('s_barrier')
        if self.wolate: woops()
        e('s_barrier')
        if 'st3' in self.dbg: self.stamp(12)
        for kk in range(4): e(f'ds_read_b128 v[{BB+4*kk}:{BB+4*kk+3}], v{vBa} offset:{kk*64}')
        e('s_waitcnt lgkmcnt(0)')
        mm128(True)
        e('s_nop 7')
        merge_tag(D0, D1, TG, TB, 49)
        e(f'buffer_store_dwordx4 v[{D0}:{D0+3}], v{vSt}, s[36:39], s61 offen ' + ('nt sc1' if 'aps' in self.dbg else 'sc1'))
        if 'b4x' in self.dbg: e('s_barrier')
        if self.stamps:
            self.stamp(13)
            e('s_cmp_lg_u32 s3, 0\ns_cbranch_scc1 L_end')
            self.flush_stamps([8, 9, 10, 11, 12, 13, 14, 15], 200)

if __name__ == '__main__':
    import argparse
    ap = argparse.ArgumentParser()
    ap.add_argument('out'); ap.add_argument('--depth', type=int, default=5); ap.add_argument('--pdepth', type=int, default=5)
    ap.add_argument('--stamps', action='store_true'); ap.add_argument('--wpol', default='nt')
    ap.add_argument('--edepth', type=int, default=31); ap.add_argument('--usw', type=int, default=28); ap.add_argument('--ddepth', type=int, default=0); ap.add_argument('--thr', type=int, default=48); ap.add_argument('--cstart', type=int, default=6); ap.add_argument('--dbg', default=''); ap.add_argument('--cper', type=int, default=4); ap.add_argument('--table', default='0000000000112234'); ap.add_argument('--qsleep', type=int, default=0); ap.add_argument('--gwait', type=int, default=2); ap.add_argument('--hwait', type=int, default=4); ap.add_argument('--csleep', type=int, default=4); ap.add_argument('--burst', type=int, default=0); ap.add_argument('--xs', default='sc1'); ap.add_argument('--qj', type=int, default=0); ap.add_argument('--qpol', default='sc1'); ap.add_argument('--fpol', default='sc1'); ap.add_argument('--xl', default='sc1'); ap.add_argument('--prio', type=int, default=0); ap.add_argument('--prof', action='store_true'); ap.add_argument('--skip', type=int, default=0); ap.add_argument('--pmask', type=lambda x: int(x, 16), default=0); ap.add_argument('--ppol', default='none'); ap.add_argument('--cps', default=''); ap.add_argument('--fcp', type=int, default=0); ap.add_argument('--utab', default='0000000000000000'); ap.add_argument('--uq', type=int, default=0); ap.add_argument('--usync', type=int, default=0); ap.add_argument('--leak', type=int, default=0); ap.add_argument('--amap', default='12,14'); ap.add_argument('--bmap', default=''); ap.add_argument('--xr', default=''); ap.add_argument('--dpat', default=''); ap.add_argument('--ppat', default=''); ap.add_argument('--epat', default=''); ap.add_argument('--ltab', default=''); ap.add_argument('--lq', type=int, default=2); ap.add_argument('--fp2', type=int, default=0); ap.add_argument('--gdepth', default=''); ap.add_argument('--wod', type=int, default=0); ap.add_argument('--wqd', type=int, default=0); ap.add_argument('--peel', type=int, default=-1); ap.add_argument('--wolate', type=int, default=0); ap.add_argument('--wog', type=int, default=32); ap.add_argument('--d0', type=int, default=0); ap.add_argument('--fst', default=''); ap.add_argument('--gus', type=int, default=0)
    a = ap.parse_args()
    open(a.out, 'w').write(Gen(a.depth, a.pdepth, a.stamps, a.wpol.replace('none', ''), a.edepth, a.usw, a.prio, a.prof, a.skip, a.ddepth, a.thr, a.cstart, a.dbg, a.cper, a.table, a.qsleep, a.gwait, a.hwait, a.csleep, a.burst, a.xs, a.xl, a.qj, a.qpol, a.fpol, a.pmask, a.ppol, a.cps, a.fcp, a.utab, a.uq, a.usync, a.leak, a.amap, a.bmap, a.xr, a.dpat, a.ppat, a.epat, a.ltab, a.lq, a.fp2, a.gdepth, a.wod, a.wqd, a.peel, a.wolate, a.wog, a.d0, a.fst, a.gus).build())
```

```python
import sys, struct
KN = 'parallel_sum__mha_block_cached__glu_gated_bilinear__decode_kernel'

def f2u(x): return struct.unpack('<I', struct.pack('<f', x))[0]

L_WQ = 0x00000
L_S = 0x00000
L_GATE = 0x08000
L_WO = 0x08000
L_UP = 0x10000
L_DOWN = 0x18000
L_XQ = 0x20000
L_XF = 0x20800
L_OL = 0x20800
L_QL = 0x21800
L_HL = 0x21900
L_DP = 0x22100
L_MW = 0x22900
L_FW = 0x22910
L_FF = 0x22920
L_CNT = 0x229a0
L_ZERO = 0x229e0
L_NONCE = 0x22a20
LDS_SIZE = 0x22a80
W_BSTRIDE = 0x80000
W_QP = 0x00000
W_AP = 0x20000
W_GU = 0x400000
W_OX = 0x500000
W_H = 0x520000
W_CT = 0x540000
W_CL = 0x550000
W_SIZE = 0x600000
W_STAMP = 0x20000000

TB = 12
TMASK = (1 << TB) - 1

class Gen:
    def __init__(self, depth=5, pdepth=5, stamps=False, wpol='nt', edepth=31, usw=28, prio=0, prof=False, skip=0, ddepth=0, thr=48, cstart=6, dbg='', cper=4, table='0000000000112234', qsleep=0, gwait=2, hwait=4, csleep=4, burst=0, xs='sc1', xl='sc1', qj=0, qpol='sc1', fpol='sc1', pmask=0, ppol='', cps='', fcp=0, utab='', uq=0, usync=0, leak=0, amap='12,14', bmap='', xr='', dpat='', ppat='', epat='', ltab='', lq=2, fp2=0, gdepth='', wod=0, wqd=0, peel=-1, wolate=0, wog=32, d0=0, fst='', gus=0, osl=0, fsl=0, sld=0, stab='', drd=0):
        self.drd = drd
        self.stab = [int(ch, 16) for ch in stab]
        self.sld = sld
        self.osl = osl; self.fsl = fsl
        self.gus = gus
        self.fst = fst.replace('+', ' ').replace('none', ' ')
        self.d0 = d0
        self.wog = wog
        self.wolate = wolate
        self.peel = peel
        self.wod = wod; self.wqd = wqd
        self.gdepth = [int(x) for x in gdepth]
        self.fp2 = fp2
        self.ltab = [int(ch, 16) for ch in ltab]; self.lq = lq
        self.dpat = [int(x) for x in dpat] or [depth]; self.ppat = [int(x) for x in ppat] or [pdepth]; self.epat = [int(x, 16) for x in epat] or [ddepth]; self.pc = 0
        self.bmap = [int(x) for x in bmap.split(',')] if bmap else None; self.xr = [int(x, 0) for x in xr.split(',')] if xr else None
        self.pw, self.pu = [int(x) for x in amap.split(',')]
        self.cps = [int(x) for x in cps.split(',')] if cps else None; self.fcp = fcp; self.utab = [int(ch, 16) for ch in utab]; self.uq = uq; self.usync = usync; self.leak = leak
        self.pmask = pmask; self.ppol = ppol.replace('+', ' ').replace('none', '')
        self.qj = qj; self.qpol = qpol.replace('+', ' '); self.fpol = fpol.replace('+', ' ')
        self.xs = xs.replace('+', ' '); self.xl = xl.replace('+', ' ')
        self.burst = burst
        self.qsleep = qsleep; self.gwait = gwait; self.hwait = hwait; self.csleep = csleep
        self.cper = cper; self.table = [int(ch, 16) for ch in table]
        self.dbg = set(dbg.split(','))
        self.skip = skip; self.ddepth = ddepth; self.thr = thr; self.cstart = cstart
        self.edepth = edepth; self.usw = usw; self.prio = prio; self.prof = prof
        self.L = []; self.depth = depth; self.pdepth = pdepth; self.stamps = stamps; self.uid = 0; self.wpol = wpol
    def e(self, s):
        for l in s.split('\n'): self.L.append('    ' + l.strip() if not l.strip().endswith(':') else l.strip())
    def c(self, s): self.L.append('    ; ' + s)
    def lab(self, p='L'):
        self.uid += 1; return f'{p}_{self.uid}'
    def srd(self, d, plo, phi, off_lo=None, size=None, size_sgpr=None):
        e = self.e
        if off_lo is None:
            e(f's_mov_b32 s{d}, s{plo}\ns_mov_b32 s{d+1}, s{phi}')
        else:
            e(f's_add_u32 s{d}, s{plo}, s{off_lo}\ns_addc_u32 s{d+1}, s{phi}, 0')
        if size_sgpr is not None: e(f's_mov_b32 s{d+2}, s{size_sgpr}')
        else: e(f's_mov_b32 s{d+2}, {size:#x}')
        e(f's_mov_b32 s{d+3}, 0x20000')
    def stamp(self, idx):
        if self.stamps:
            self.e(f's_memrealtime s[{64+2*idx}:{65+2*idx}]\ns_waitcnt lgkmcnt(0)')
    def flush_stamps(self, idxs, vt):
        if not self.stamps: return
        e = self.e
        e(f's_add_u32 s96, s26, {W_STAMP:#x}\ns_addc_u32 s97, s27, 0\ns_mov_b32 s98, 0x10000\ns_mov_b32 s99, 0x20000')
        e(f's_lshl_b32 s60, s2, 7\nv_mov_b32 v{vt+2}, s60')
        for i in idxs:
            e(f'v_mov_b32 v{vt}, s{64+2*i}\nv_mov_b32 v{vt+1}, s{65+2*i}')
            e(f'buffer_store_dwordx2 v[{vt}:{vt+1}], v{vt+2}, s[96:99], 0 offen offset:{i*8}\ns_nop 1')
    def ror_reduce(self, op, v, steps=(8, 4, 2, 1)):
        for s in steps:
            self.e(f's_nop 1\n{op}_dpp v{v}, v{v}, v{v} row_ror:{s} row_mask:0xf bank_mask:0xf')
    def swap_reduce(self, op, v, t, which):
        self.e(f'v_mov_b32 v{t}, v{v}\ns_nop 1\nv_permlane{which}_swap_b32 v{v}, v{t}\ns_nop 0\n{op} v{v}, v{v}, v{t}')
    def rnd_bf16(self, v, t=None):
        self.e(f'v_cvt_pk_bf16_f32 v{v}, v{v}, v{v}\nv_and_b32 v{v}, 0xffff0000, v{v}')
    def arrive(self, cnt, vaddr_zero, vt, sret):
        e = self.e
        e(f's_mov_b64 exec, 1\nv_mov_b32 v{vt}, 1')
        e(f'ds_add_rtn_u32 v{vt}, v{vaddr_zero}, v{vt} offset:{cnt*4}')
        e(f's_waitcnt lgkmcnt(0)\nv_readfirstlane_b32 s{sret}, v{vt}\ns_mov_b64 exec, -1')
    def lds_wait(self, cnt, target, vaddr_zero, vt, st, sleep=0):
        e = self.e; l = self.lab('L_w'); d = self.lab('L_wd')
        e(f's_mov_b32 s{st+1}, 0')
        e(f'{l}:')
        e(f'ds_read_b32 v{vt}, v{vaddr_zero} offset:{cnt*4}')
        e(f's_waitcnt lgkmcnt(0)\nv_readfirstlane_b32 s{st}, v{vt}')
        e(f's_cmp_ge_u32 s{st}, {target}\ns_cbranch_scc1 {d}')
        if sleep: e(f's_sleep {sleep}')
        e(f's_add_u32 s{st+1}, s{st+1}, 1\ns_cmp_lt_u32 s{st+1}, 0x100000\ns_cbranch_scc1 {l}')
        e(f'{d}:')

    def build(self):
        e, c = self.e, self.c
        D = self.depth; PD = self.pdepth; WP = self.wpol
        hdr = open('parallel_sum__mha_block_cached__glu_gated_bilinear__decode.s.ref').read().split('; @launch')[0]
        self.L.append(hdr.rstrip('\n'))
        self.L.append(f'; @launch grid=(256,1,1) block=(512,1,1) lds={LDS_SIZE}')
        self.L.append('.amdgcn_target "amdgcn-amd-amdhsa--gfx950"\n.text')
        self.L.append(f'.globl {KN}\n.p2align 8\n.type {KN},@function\n{KN}:')
        e('s_cmp_ge_u32 s2, 256\ns_cbranch_scc1 L_end')
        if self.stamps: e('s_memrealtime s[64:65]')
        e('s_load_dwordx16 s[4:19], s[0:1], 0\ns_load_dwordx8 s[20:27], s[0:1], 64')
        e('v_cmp_gt_u32 vcc, 32, v0\ns_cbranch_vccz L_nozero')
        e(f'v_lshlrev_b32 v1, 2, v0\nv_and_b32 v1, 63, v1\nv_mov_b32 v2, 0\nds_write_b32 v1, v2 offset:{L_CNT & 0xffff}' if False else
          f'v_lshlrev_b32 v1, 2, v0\nv_and_b32 v1, 127, v1\nv_add_u32 v1, {L_CNT:#x}, v1\nv_mov_b32 v2, 0\nds_write_b32 v1, v2\ns_waitcnt lgkmcnt(0)')
        e('L_nozero:')
        e('v_and_b32 v1, 63, v0\nv_lshrrev_b32 v2, 6, v0')
        e('s_lshr_b32 s44, s2, 5\ns_and_b32 s45, s2, 31')
        e('v_readfirstlane_b32 s3, v2')
        e('s_lshl_b32 s46, s45, 3\ns_add_u32 s46, s46, s44\ns_lshr_b32 s47, s46, 2\ns_and_b32 s48, s46, 3')
        if 'lateb0' not in self.dbg: e('s_barrier')
        e('s_cmp_ge_u32 s3, 4\ns_cbranch_scc1 L_aux')
        self.stream()
        e('L_aux:')
        self.aux()
        e('L_end:\ns_endpgm')
        self.L.append('.section .rodata,"a"\n.p2align 6')
        self.L.append(f'.amdhsa_kernel {KN}\n  .amdhsa_next_free_vgpr 256\n  .amdhsa_next_free_sgpr 102\n  .amdhsa_accum_offset 256')
        self.L.append('  .amdhsa_group_segment_fixed_size 0\n  .amdhsa_kernarg_size 96\n  .amdhsa_user_sgpr_count 2\n  .amdhsa_user_sgpr_kernarg_segment_ptr 1\n  .amdhsa_system_sgpr_workgroup_id_x 1\n.end_amdhsa_kernel')
        out = []
        for l in '\n'.join(self.L).split('\n'):
            if 's[36:39]' in l and l.rstrip().endswith(' sc1') and 'atomic' not in l and ' nt ' not in l:
                if 'store' in l: l = l.rstrip()[:-4] + ' ' + self.xs
                else: l = l.rstrip()[:-4] + ' ' + self.xl
            out.append(l)
        return '\n'.join(out) + '\n'

    def stream(self):
        e, c = self.e, self.c
        D = self.depth; PD = self.pdepth; WP = self.wpol; DP = self.ddepth
        vP, vV, vGU, vDN, vSa, vMax, vS, vA, vB, vT, vNM, vSn, vPp = 2, 6, 10, 11, 12, 13, 14, 15, 16, 17, 18, 19, 20
        vCnt = 21; vDec = 10; vPr = 11; vIt = 60
        DD = [24, 28]; Q = 32; MK = 48; AA = 52; O = 56; RING = 64
        NS = 32
        c('=== stream waves (0..3) ===')
        if self.prio: e(f's_setprio {self.prio}')
        e(f'v_mov_b32 v{vCnt}, {L_CNT:#x}')
        e(f'v_and_b32 v{vP}, 3, v1\nv_lshlrev_b32 v{vP}, 4, v{vP}')
        e(f'v_bfe_u32 v{vT}, v1, 2, 2\nv_lshl_add_u32 v{vP}, v{vT}, 8, v{vP}')
        e(f'v_lshrrev_b32 v{vT}, 4, v1\nv_lshl_add_u32 v{vP}, v{vT}, 6, v{vP}')
        AM = 0xff000 & ~(3 << self.pw) & ~(3 << self.pu)
        assert bin(AM).count('1') == 4
        HB = AM & -AM; AM2 = AM ^ HB; PB = AM2 & -AM2
        def advance():
            if AM2 == PB * 7: e(f's_add_u32 s51, s51, {PB:#x}\ns_add_u32 s55, s55, {PB:#x}')
            else: e(f's_or_b32 s51, s51, {0xffffffff ^ AM2:#x}\ns_add_u32 s51, s51, {PB:#x}\ns_and_b32 s51, s51, {AM2:#x}\ns_or_b32 s55, s51, {HB:#x}')
        P16 = 192
        if self.bmap:
            bm = self.bmap; assert sorted(bm) == list(range(10, 16))
            HB = 0x10000
            def advance():
                e('s_add_u32 s100, s100, 0x20000\ns_xor_b32 s51, s100, s101\ns_xor_b32 s55, s51, 0x10000')
            e(f's_lshl_b32 s49, s3, 12\ns_and_b32 s53, s3, 1\ns_lshl_b32 s53, s53, {bm[4]}\ns_lshr_b32 s54, s3, 1\ns_lshl_b32 s54, s54, {bm[5]}\ns_or_b32 s53, s53, s54')
            if self.xr:
                e(f's_mul_i32 s54, s2, {self.xr[0]}\ns_lshl_b32 s54, s54, {self.xr[1]}\ns_and_b32 s54, s54, {self.xr[2]:#x}')
                e('s_and_b32 s101, s54, 0xf0000\ns_and_b32 s54, s54, 0xfc00\ns_xor_b32 s53, s53, s54')
            else: e('s_mov_b32 s101, 0')
            e(f'v_xor_b32 v{vP}, s53, v{vP}')
            for j in range(16):
                cj = sum(((j >> i) & 1) << bm[i] for i in range(4))
                e(f'v_xor_b32 v{P16+j}, {cj:#x}, v{vP}')
            e('s_lshl_b32 s50, s2, 20\ns_mov_b32 s100, 0\ns_mov_b32 s51, s101\ns_xor_b32 s55, s101, 0x10000')
        else:
            e(f's_lshl_b32 s49, s3, 12\ns_lshl_b32 s53, s3, {self.pw}')
            e(f'v_add_u32 v{vP}, s53, v{vP}')
            for u in range(1, 4): e(f'v_add_u32 v{vP+u}, {u << self.pu:#x}, v{vP}')
            e('s_lshl_b32 s50, s2, 20')
            e(f's_mov_b32 s51, 0\ns_mov_b32 s55, {HB:#x}')
        e('s_waitcnt lgkmcnt(0)')
        self.srd(40, 6, 7, 50, 0x100000)
        def kload(j):
            so = 's51' if j < 16 else 's55'
            if self.bmap:
                e(f'buffer_load_dwordx4 v[{RING+4*j}:{RING+4*j+3}], v{P16+j%16}, s[40:43], {so} offen nt'); return
            e(f'buffer_load_dwordx4 v[{RING+4*j}:{RING+4*j+3}], v{vP+(j%16)//4}, s[40:43], {so} offen offset:{(j%4)*1024} ' + (self.ppol if (self.pmask >> j) & 1 else 'nt'))
        def pst(i):
            if self.prof: e(f's_memrealtime s[62:63]\ns_waitcnt lgkmcnt(0)\nv_writelane_b32 v22, s62, {36+i}')
        B0 = self.burst or PD
        pst(0)
        for j in range(B0): kload(j)
        if 'lateb0' in self.dbg: e('s_barrier')
        pst(1)
        if self.bmap:
            e(f'v_lshlrev_b32 v{vV}, 4, v1\nv_xor_b32 v{vV}, v{vP}, v{vV}\nv_and_b32 v{vV}, 0x3ff, v{vV}')
        else:
            e(f'v_lshlrev_b32 v{vV}, 4, v1\nv_add_u32 v{vV}, s53, v{vV}')
            for u in range(1, 4): e(f'v_add_u32 v{vV+u}, {u << self.pu:#x}, v{vV}')
        def pwait():
            e(f's_waitcnt vmcnt({self.ppat[self.pc % len(self.ppat)]-1})'); self.pc += 1
        def dma(srd, vo, n, step):
            for i in range(n):
                if self.gdepth: e(f's_waitcnt vmcnt({self.gdepth[(srd-28)//4]-1})')
                else: pwait()
                e(f'buffer_load_dwordx4 v{vo}, s[{srd}:{srd+3}], s54 offen {WP} lds')
                if i < n - 1: e(f's_add_u32 m0, m0, 0x400\ns_add_u32 s54, s54, {step}')
        e('s_cmp_ge_u32 s46, 224\ns_cbranch_scc1 L_s_nodma')
        e(f'v_lshrrev_b32 v{vT}, 3, v1\nv_mul_u32_u24 v{vGU}, 7168, v{vT}\nv_and_b32 v{vT}, 7, v1\nv_lshl_add_u32 v{vGU}, v{vT}, 4, v{vGU}')
        e(f's_mul_i32 s52, s48, {256*7168}\ns_lshl_b32 s53, s47, 7\ns_add_u32 s52, s52, s53\ns_sub_u32 s53, {1024*7168}, s52')
        if 'cgu' in self.dbg:
            e(f'v_lshlrev_b32 v{vGU}, 4, v1\ns_lshl_b32 s52, s46, 15\ns_sub_u32 s53, {1024*7168}, s52')
        self.srd(28, 16, 17, 52, size_sgpr=53)
        self.srd(32, 18, 19, 52, size_sgpr=53)
        e(f's_lshl_b32 s56, s3, 13')
        for (srd, lbase) in ((28, L_GATE), (32, L_UP)):
            if 'cgu' in self.dbg:
                e(f's_add_u32 m0, s56, {lbase:#x}\ns_mul_i32 s54, s3, 8192')
                dma(srd, vGU, 8, 1024)
                continue
            e(f's_add_u32 m0, s56, {lbase:#x}\ns_mul_i32 s54, s3, {64*7168}')
            dma(srd, vGU, 8, 8*7168)
            pst(2 if srd == 28 else 3)
        e('L_s_nodma:')
        e(f'v_lshrrev_b32 v{vT}, 4, v1\nv_lshlrev_b32 v{vDN}, 11, v{vT}\nv_and_b32 v{vT}, 15, v1\nv_lshl_add_u32 v{vDN}, v{vT}, 4, v{vDN}')
        e(f's_mul_i32 s52, s45, {112*2048}\ns_lshl_b32 s53, s44, 8\ns_add_u32 s52, s52, s53\ns_sub_u32 s53, {3584*2048}, s52')
        if 'cdn' in self.dbg:
            e(f'v_lshlrev_b32 v{vDN}, 4, v1\ns_mul_i32 s52, s2, 28672\ns_sub_u32 s53, {3584*2048}, s52')
            self.srd(36, 20, 21, 52, size_sgpr=53)
            e(f's_mul_i32 s56, s3, 7168\ns_add_u32 m0, s56, {L_DOWN:#x}\ns_mul_i32 s54, s3, 7168')
            dma(36, vDN, 7, 1024)
        else:
            self.srd(36, 20, 21, 52, size_sgpr=53)
            e(f's_mul_i32 s56, s3, 7168\ns_add_u32 m0, s56, {L_DOWN:#x}\ns_mul_i32 s54, s3, {28*2048}')
            dma(36, vDN, 7, 4*2048)
        pst(4)
        for u in range(1, 4):
            m = 0x11111111 << u
            e(f's_mov_b32 s{54+2*u}, {m:#x}\ns_mov_b32 s{55+2*u}, {m:#x}')
        e(f'v_and_b32 v{vT}, 1, v1\nv_cmp_eq_u32 vcc, 1, v{vT}\nv_mov_b32 v{vA}, 0xffff\nv_mov_b32 v{vB}, 0xffff0000')
        e(f'v_cndmask_b32 v{vA}, v{vA}, v{vB}, vcc')
        e(f'v_bfe_u32 v{vT}, v1, 1, 3')
        for i in range(4):
            e(f'v_cmp_eq_u32 vcc, {i}, v{vT}\ns_nop 1\nv_cndmask_b32 v{MK+i}, 0, v{vA}, vcc')
        e(f'v_lshlrev_b32 v{vSa}, 2, v1\nv_add_u32 v{vSa}, s49, v{vSa}')
        if L_S: e(f'v_add_u32 v{vSa}, {L_S:#x}, v{vSa}')
        e(f'v_mov_b32 v{vMax}, 0xff800000')
        for i in range(4): e(f'v_mov_b32 v{O+i}, 0')
        e(f'v_mov_b32 v{vDec}, {self.d0}\ns_lshl_b32 s54, s3, 2\nv_add_u32 v{vPr}, s54, v{vCnt}')
        if self.d0: e(f'ds_write_b32 v{vCnt}, v{vDec} offset:20')
        e(f'v_and_b32 v{vA}, 3, v1\nv_lshrrev_b32 v{vT}, 4, v1\nv_lshl_add_u32 v{vA}, v{vT}, 2, v{vA}\nv_lshlrev_b32 v{vA}, 4, v{vA}\nv_add_u32 v{vA}, {L_QL:#x}, v{vA}')
        e(f'v_bfe_u32 v{vT}, v1, 2, 2\nv_mov_b32 v{vB}, {L_ZERO:#x}')
        for t in range(4):
            e(f'v_cmp_eq_u32 vcc, {t}, v{vT}\ns_nop 1\nv_cndmask_b32 v{AA+t}, v{vB}, v{vA}, vcc')
        for j in range(B0, NS):
            pwait(); kload(j)
            if j == 19: pst(5)
            if j == self.qj: e(f'ds_write_b32 v{vPr}, v{vCnt} offset:48')
        if self.ltab:
            assert not self.uq and DP
            lt = 0
            for r, dty in enumerate(self.ltab): lt |= dty << (4 * r)
            self.srd(36, 26, 27, None, W_SIZE)
            e(f's_mov_b32 s28, 0\ns_mov_b32 s29, 0\ns_mov_b32 s32, {lt & 0xffffffff:#x}\ns_mov_b32 s33, {lt >> 32:#x}\nv_mov_b32 v209, 0')
            e(f's_getreg_b32 s30, hwreg(HW_REG_XCC_ID, 0, 3)\ns_lshl_b32 s30, s30, 13\ns_add_u32 s30, s30, {W_CL:#x}')
        pst(6)
        self.stamp(1)
        e('s_barrier')
        for t in range(4): e(f'ds_read_b128 v[{Q+4*t}:{Q+4*t+3}], v{AA+t}')
        e('s_waitcnt lgkmcnt(0)')
        self.stamp(2)
        e('s_mov_b32 s52, 0')
        vR = 208; vZ = 209; LT = self.ltab
        def qtop(isv, u):
            if not LT: return
            if u == self.lq:
                e(f'v_readfirstlane_b32 s31, v{vR}\ns_nop 0\ns_bfe_u32 s31, s31, 0x40003\ns_lshl_b32 s31, s31, 2\ns_lshr_b64 s[34:35], s[32:33], s31\ns_and_b32 s31, s34, 15')
                e('s_add_u32 s31, s31, s28\ns_max_u32 s29, s29, s31')
            e('s_cmp_lt_u32 s28, s29\ns_cselect_b64 vcc, -1, 0\ns_add_u32 s28, s28, 1')
            if isv: e(f's_cmp_ge_u32 s52, {self.usw}')
        def halftop(isv):
            if self.prof: e('s_mov_b32 m0, s52\ns_nop 0\nv_writelane_b32 v22, s62, m0')
            e(f'v_mov_b32 v{vIt}, s52\nds_write_b32 v{vPr}, v{vIt} offset:32')
            if DP:
                e(f'v_readfirstlane_b32 s54, v{vDec}\ns_nop 0')
                if not self.drd: e(f'ds_read_b32 v{vDec}, v{vCnt} offset:20')
                if LT:
                    e('s_lshl_b32 s54, s54, 2\ns_max_u32 s29, s29, s54')
                    e(f'v_mov_b32 v{vR}, 1\ns_mov_b64 exec, 1')
                    e(f'buffer_atomic_add v{vR}, v{vZ}, s[36:39], s30 offen sc0')
                    e('s_mov_b64 exec, -1\ns_add_u32 s30, s30, 0x100')
                    return
                if self.stab:
                    e('s_and_b32 s28, s54, 0xff\ns_lshr_b32 s54, s54, 8\ns_cmp_lt_u32 s52, s28\ns_cselect_b64 vcc, -1, 0\ns_cmp_lt_u32 s52, s54')
                    return
                e('s_cmp_lt_u32 s52, s54\ns_cselect_b64 vcc, -1, 0')
            if isv and not self.uq: e(f's_cmp_ge_u32 s52, {self.usw}')
        def gate(isv, j, sh=True):
            D = self.dpat[j % len(self.dpat)]; DP = self.epat[j % len(self.epat)]
            if LT:
                if j % 16 < D: D += 1
                if j % 16 < DP: DP += 1
            if self.drd and sh and j % 16 == self.drd: e(f'ds_read_b32 v{vDec}, v{vCnt} offset:20')
            lm = self.lab('L_m'); lx = self.lab('L_x')
            if isv: e(f's_cbranch_scc1 {lx}')
            if DP: e(f's_cbranch_vccnz {lm}')
            if self.stab and sh:
                assert not isv
                e(f's_cbranch_scc0 {lx}\ns_waitcnt vmcnt({D-2})\n{lx}:')
            e(f's_waitcnt vmcnt({D-1})')
            if DP: e(f'{lm}:\ns_waitcnt vmcnt({DP-1})')
            if isv: e(f'{lx}:\ns_waitcnt vmcnt({self.edepth-1})')
        c('---- K loop ----')
        e('L_kloop:')
        advance()
        e('s_cmp_lg_u32 s52, 14\ns_cbranch_scc1 L_k_go')
        if self.bmap:
            e('s_add_u32 s40, s8, s50\ns_addc_u32 s41, s9, 0\ns_mov_b32 s100, 0\ns_mov_b32 s51, s101\ns_xor_b32 s55, s101, 0x10000')
            for j in range(16): e(f'v_xor_b32 v{P16+j}, v{vV}, v{P16+j}')
        else:
            e(f's_add_u32 s40, s8, s50\ns_addc_u32 s41, s9, 0\ns_mov_b32 s51, 0\ns_mov_b32 s55, {HB:#x}')
            for u in range(4): e(f'v_mov_b32 v{vP+u}, v{vV+u}')
        e('L_k_go:')
        def reduce(u):
            d = DD[u & 1]
            q1, q2, q3 = (u + 1) & 3, (u + 2) & 3, (u + 3) & 3
            e(f'v_add_f32_dpp v{vA}, v{d+q1}, v{d+q2} quad_perm:[{q1},{q1},{q1},{q1}] row_mask:0xf bank_mask:0xf')
            e(f'v_add_f32_dpp v{vB}, v{d+q3}, v{d+u} quad_perm:[{q3},{q3},{q3},{q3}] row_mask:0xf bank_mask:0xf')
            e('s_nop 0')
            dst = vS if u == 0 else vB
            e(f'v_add_f32_dpp v{dst}, v{vA}, v{vB} quad_perm:[{q2},{q2},{q2},{q2}] row_mask:0xf bank_mask:0xf')
            if u: e(f'v_cndmask_b32 v{vS}, v{vS}, v{vB}, s[{54+2*u}:{55+2*u}]')
        for hf in range(2):
            if self.prof: e('s_memrealtime s[62:63]')
            if DP or self.prof: e('s_waitcnt lgkmcnt(0)')
            halftop(False)
            for u in range(4):
                d = DD[u & 1]
                qtop(False, u)
                for t in range(4):
                    j = 16 * hf + 4 * u + t
                    cc = '0' if t == 0 else f'v[{d}:{d+3}]'
                    e(f'v_mfma_f32_16x16x32_bf16 v[{d}:{d+3}], v[{RING+4*j}:{RING+4*j+3}], v[{Q+4*t}:{Q+4*t+3}], {cc}')
                    if t == 2 and u > 0: reduce(u - 1)
                    gate(False, j); kload(j)
            e('s_nop 5')
            reduce(3)
            e(f'v_cvt_pk_bf16_f32 v{vS}, v{vS}, v{vS}\nv_lshlrev_b32 v{vS}, 16, v{vS}\nv_mul_f32 v{vS}, {f2u(128.0**-0.5):#x}, v{vS}')
            self.rnd_bf16(vS)
            e(f'v_max_f32 v{vMax}, v{vMax}, v{vS}\nds_write_b32 v{vSa}, v{vS}\nv_add_u32 v{vSa}, 0x100, v{vSa}')
            e('s_add_u32 s52, s52, 1')
        e('s_cmp_lt_u32 s52, 16\ns_cbranch_scc1 L_kloop')
        c('---- transition ----')
        e(f'v_add_u32 v{vSa}, -4096, v{vSa}')
        e(f'ds_read_b32 v{vSn}, v{vSa}')
        self.ror_reduce('v_max_f32', vMax)
        self.swap_reduce('v_max_f32', vMax, vT, 16)
        self.swap_reduce('v_max_f32', vMax, vT, 32)
        LOG2E = f2u(1.4426950408889634)
        e(f's_mov_b32 s53, {LOG2E:#x}')
        e(f'v_mul_f32 v{vNM}, {f2u(-1.4426950408889634):#x}, v{vMax}')
        e(f's_lshl_b32 s54, s3, 2\ns_add_u32 s54, s54, {L_MW:#x}\nv_mov_b32 v{vT}, s54')
        e(f'ds_write_b32 v{vT}, v{vMax}')
        e(f's_mov_b64 exec, 1\nv_mov_b32 v{vT}, 1\nds_add_u32 v{vCnt}, v{vT} offset:{7*4}\ns_mov_b64 exec, -1')
        self.stamp(3)
        c('---- V loop ----')
        assert self.edepth <= NS - 1
        vU = 61; vBig = 62
        if self.uq: e(f's_mov_b32 s56, 64\nv_mov_b32 v{vU}, 0\nv_mov_b32 v{vBig}, 64')
        e('L_vloop:')
        advance()
        PEEL = self.peel >= 0
        if not PEEL: e('s_cmp_eq_u32 s52, 30\ns_cselect_b32 s42, 0, s42')
        for hf in range(2):
            if self.prof: e('s_memrealtime s[62:63]')
            e(f'v_add_u32 v{vSa}, 0x100, v{vSa}')
            e('s_waitcnt lgkmcnt(0)')
            e(f'v_fma_f32 v{vT}, v{vSn}, s53, v{vNM}')
            e(f'ds_read_b32 v{vSn}, v{vSa}')
            e(f'v_exp_f32 v{vT}, v{vT}')
            halftop(not PEEL)
            e(f'v_cvt_pk_bf16_f32 v{vPp}, v{vT}, v{vT}\ns_nop 1')
            for u in range(4):
                qtop(True, u)
                if self.uq and not PEEL:
                    if u: e('s_waitcnt lgkmcnt(0)')
                    e(f'v_readfirstlane_b32 s57, v{vU}\ns_add_u32 s56, s56, 1')
                    e(f'ds_read_b32 v{vU}, v{vCnt} offset:24')
                    e(f's_add_u32 s57, s57, s56\ns_cmp_gt_u32 s57, {self.uq}')
                    if self.usync:
                        lq = self.lab('L_q')
                        e(f's_cbranch_scc0 {lq}\nds_write_b32 v{vCnt}, v{vBig} offset:24\n{lq}:')
                for t in range(4):
                    j = 16 * hf + 4 * u + t
                    for i in range(4):
                        e(f'v_and_b32_dpp v{AA+i}, v{vPp}, v{MK+i} row_newbcast:{4*t+u} row_mask:0xf bank_mask:0xf')
                    e('s_nop 1')
                    e(f'v_mfma_f32_16x16x32_bf16 v[{O}:{O+3}], v[{AA}:{AA+3}], v[{RING+4*j}:{RING+4*j+3}], v[{O}:{O+3}]')
                    gate(not PEEL, j); kload(j)
            e('s_add_u32 s52, s52, 1')
        e(f's_cmp_lt_u32 s52, {28 if PEEL else 32}\ns_cbranch_scc1 L_vloop')
        if PEEL:
            assert not LT
            c('---- last four halves: straight line, the last two without loads ----')
            PP = [vPp, 216, 217, 218]; AB = [AA, 212]
            advance()
            if self.prof: e('s_memrealtime s[62:63]')
            e('s_waitcnt lgkmcnt(0)')
            e(f'v_fma_f32 v{vT}, v{vSn}, s53, v{vNM}')
            for k in range(1, 4): e(f'ds_read_b32 v{PP[k]}, v{vSa} offset:{k*256}')
            if self.uq: e(f'ds_read_b32 v{vU}, v{vCnt} offset:24')
            e(f'v_exp_f32 v{vT}, v{vT}')
            halftop(False)
            e(f'v_cvt_pk_bf16_f32 v{vPp}, v{vT}, v{vT}\ns_nop 1')
            def ands(g):
                u, t = (g % 16) // 4, g % 4
                for i in range(4):
                    e(f'v_and_b32_dpp v{AB[g&1]+i}, v{PP[g//16]}, v{MK+i} row_newbcast:{4*t+u} row_mask:0xf bank_mask:0xf')
            def step(g, gated):
                j = g % 32
                if self.wolate > 100 and g == self.wog:
                    pass
                    e(f's_mov_b64 exec, 1\nds_add_u32 v{vCnt}, v{vBig} offset:4\ns_mov_b64 exec, -1')
                if self.prof and g and g % 16 == 0:
                    e(f's_memrealtime s[62:63]\ns_waitcnt lgkmcnt(0)\nv_writelane_b32 v22, s62, {28 + g//16}')
                if g < 63: ands(g + 1)
                else: e('s_nop 0')
                if not gated: e(f's_waitcnt vmcnt({min(31, 63 - g)})')
                e(f'v_mfma_f32_16x16x32_bf16 v[{O}:{O+3}], v[{AB[g&1]}:{AB[g&1]+3}], v[{RING+4*j}:{RING+4*j+3}], v[{O}:{O+3}]')
                if g < 32:
                    if gated: gate(False, j, False)
                    kload(j)
            ands(0)
            G1 = 2 * self.uq if self.uq else self.peel
            assert 2 <= G1 <= 32
            for g in range(G1):
                if g == 1:
                    e('s_waitcnt lgkmcnt(0)')
                    for k in range(1, 4): e(f'v_fma_f32 v{PP[k]}, v{PP[k]}, s53, v{vNM}')
                    for k in range(1, 4): e(f'v_exp_f32 v{PP[k]}, v{PP[k]}')
                    e(f'v_and_b32 v{vA}, 15, v1\nv_lshlrev_b32 v{vA}, 5, v{vA}\nv_lshrrev_b32 v{vT}, 4, v1\nv_lshl_add_u32 v{vA}, v{vT}, 4, v{vA}')
                    e(f's_lshl_b32 s54, s3, 9\ns_add_u32 s54, s54, {L_DP:#x}\nv_add_u32 v{vA}, s54, v{vA}')
                    for k in range(1, 4): e(f'v_cvt_pk_bf16_f32 v{PP[k]}, v{PP[k]}, v{PP[k]}')
                    self.srd(36, 26, 27, None, W_SIZE)
                if self.uq and g >= 2 and g % 2 == 0:
                    e(f's_waitcnt lgkmcnt(0)\nv_readfirstlane_b32 s57, v{vU}\ns_nop 0')
                    e(f'ds_read_b32 v{vU}, v{vCnt} offset:24')
                    e(f's_cmp_ge_u32 s57, {self.uq - g // 2}\ns_cbranch_scc1 L_fast{g}')
                step(g, True)
            if self.uq:
                e(f's_branch L_fast{G1}')
                for g in range(2, 64):
                    if g % 2 == 0 and g <= G1:
                        e(f'L_fast{g}:')
                        if self.usync and g % 4 == 2 or g == G1 and self.usync: e(f'ds_write_b32 v{vCnt}, v{vBig} offset:24')
                    step(g, False)
            else:
                for g in range(G1, 64): step(g, False)
            e('s_mov_b32 exec_hi, 0\ns_nop 6')
            e(f'ds_write_b128 v{vA}, v[{O}:{O+3}]')
            e('s_mov_b64 exec, -1')
        if self.prof:
            e(f's_memrealtime s[62:63]\ns_add_u32 s96, s26, {W_STAMP+0x10000:#x}\ns_addc_u32 s97, s27, 0\ns_mov_b32 s98, 0x100000\ns_mov_b32 s99, 0x20000')
            e('s_waitcnt lgkmcnt(0)\nv_writelane_b32 v22, s62, 32\nv_writelane_b32 v22, s64, 33')
            e('s_getreg_b32 s54, hwreg(HW_REG_HW_ID)\ns_nop 0\nv_writelane_b32 v22, s54, 34\ns_getreg_b32 s54, hwreg(HW_REG_XCC_ID)\ns_nop 0\nv_writelane_b32 v22, s54, 35')
            e('s_lshl_b32 s54, s2, 2\ns_add_u32 s54, s54, s3\ns_lshl_b32 s54, s54, 8\nv_lshlrev_b32 v23, 2, v1')
            e('buffer_store_dword v22, v23, s[96:99], s54 offen')
        c('---- stream epilogue ----')
        if not PEEL:
            e(f'v_and_b32 v{vA}, 15, v1\nv_lshlrev_b32 v{vA}, 5, v{vA}\nv_lshrrev_b32 v{vT}, 4, v1\nv_lshl_add_u32 v{vA}, v{vT}, 4, v{vA}')
            e(f's_lshl_b32 s54, s3, 9\ns_add_u32 s54, s54, {L_DP:#x}\nv_add_u32 v{vA}, s54, v{vA}')
            e('s_mov_b32 exec_hi, 0')
            e(f'ds_write_b128 v{vA}, v[{O}:{O+3}]')
            e('s_mov_b64 exec, -1')
            self.srd(36, 26, 27, None, W_SIZE)
        e('s_waitcnt lgkmcnt(0)')
        self.stamp(4)
        e('s_barrier')
        e('s_cmp_eq_u32 s3, 0\ns_cbranch_scc1 L_final\ns_cmp_lg_u32 s3, 1\ns_cbranch_scc1 L_end')
        c('---- wave 1: combine o and publish ----')
        e(f'v_lshlrev_b32 v{vA}, 3, v1\nv_add_u32 v{vA}, {L_DP:#x}, v{vA}\nv_mov_b32 v{vB}, {L_FW:#x}')
        e(f'ds_read_b128 v[{Q}:{Q+3}], v{vB}')
        for w in range(4): e(f'ds_read_b64 v[{Q+4+2*w}:{Q+5+2*w}], v{vA} offset:{w*512}')
        e(f's_lshl_b32 s54, s46, 8\ns_add_u32 s54, s54, {W_OX:#x}\nv_lshlrev_b32 v{vT}, 2, v1')
        e('s_waitcnt lgkmcnt(0)')
        e(f'v_mul_f32 v{vA}, v{Q}, v{Q+4}\nv_mul_f32 v{vB}, v{Q}, v{Q+5}')
        for w in range(1, 4): e(f'v_fmac_f32 v{vA}, v{Q+w}, v{Q+4+2*w}\nv_fmac_f32 v{vB}, v{Q+w}, v{Q+5+2*w}')
        e(f'v_cvt_pk_bf16_f32 v{vA}, v{vA}, v{vB}')
        e(f'v_min_u32 v{vA}, 0xfffffffe, v{vA}')
        e(f'buffer_store_dword v{vA}, v{vT}, s[36:39], s54 offen ' + ('nt sc1' if 'oxs' in self.dbg else 'sc1'))
        self.stamp(5)
        c('collect o of the 8 batches of this head')
        R = RING
        e(f's_lshl_b32 s54, s45, 11\ns_add_u32 s54, s54, {W_OX:#x}\nv_lshlrev_b32 v{vT}, 4, v1')
        e(f'v_lshrrev_b32 v{vA}, 4, v1\nv_lshl_add_u32 v{vP}, v{vA}, 4, v{vT}\nv_add_u32 v{vP}, {L_OL:#x}, v{vP}')
        e('s_mov_b64 s[56:57], -1\ns_mov_b64 s[58:59], -1\ns_mov_b32 s55, 0')
        e('L_opoll:')
        for k in range(2):
            e(f's_mov_b64 exec, s[{56+2*k}:{57+2*k}]')
            e(f'buffer_load_dwordx4 v[{R+4*k}:{R+4*k+3}], v{vT}, s[36:39], s54 offen offset:{k*1024} ' + ('nt sc1' if 'oxl' in self.dbg else 'sc1'))
        e('s_mov_b64 exec, -1\ns_add_u32 s55, s55, 1\ns_waitcnt vmcnt(0)')
        e(f'v_max3_u32 v{vA}, v{R}, v{R+1}, v{R+2}\nv_max3_u32 v{vB}, v{R+4}, v{R+5}, v{R+6}\nv_max_u32 v{vA}, v{vA}, v{R+3}\nv_max_u32 v{vB}, v{vB}, v{R+7}')
        e(f'v_cmp_eq_u32 s[56:57], -1, v{vA}\nv_cmp_eq_u32 s[58:59], -1, v{vB}')
        if self.osl: e(f's_cmp_ge_u32 s55, 0x10000\ns_cbranch_scc1 L_ogo\ns_or_b64 vcc, s[56:57], s[58:59]\ns_cbranch_scc0 L_ogo\ns_sleep {self.osl}\ns_branch L_opoll\nL_ogo:')
        else: e('s_cmp_ge_u32 s55, 0x10000\ns_cbranch_scc1 L_ogo\ns_or_b64 vcc, s[56:57], s[58:59]\ns_cbranch_scc1 L_opoll\nL_ogo:')
        e(f'ds_write_b128 v{vP}, v[{R}:{R+3}]\nds_write_b128 v{vP}, v[{R+4}:{R+7}] offset:{4*272}')
        e('s_waitcnt lgkmcnt(0)\ns_barrier')
        self.flush_stamps([5], 200)
        e('s_endpgm')
        c('---- wave 0: final reduction ----')
        e('L_final:')
        R = RING
        e(f'v_and_b32 v{vA}, 7, v1\nv_lshlrev_b32 v{vA}, 4, v{vA}\nv_add_u32 v{vA}, {L_FF:#x}, v{vA}')
        e(f'ds_read_b128 v[{Q}:{Q+3}], v{vA}\nds_read_b64 v[{Q+4}:{Q+5}], v{vCnt} offset:{L_NONCE-L_CNT}')
        e(f's_mul_i32 s54, s44, {W_BSTRIDE:#x}\ns_lshl_b32 s55, s45, 12\ns_add_u32 s54, s54, s55\ns_add_u32 s54, s54, {W_AP:#x}')
        e(f'v_lshlrev_b32 v{vT}, 4, v1')
        self.srd(32, 22, 23, None, 0x4000)
        e('s_mov_b32 s55, 0\ns_waitcnt vmcnt(0) lgkmcnt(0)')
        self.tags_from(Q + 4, MK)
        for i in range(4): e(f's_mov_b64 s[{56+2*i}:{57+2*i}], -1')
        def issue(S):
            for i in range(4):
                e(f's_mov_b64 exec, s[{56+2*i}:{57+2*i}]')
                e(f'buffer_load_dwordx4 v[{S+4*i}:{S+4*i+3}], v{vT}, s[36:39], s54 offen offset:{i*1024} ' + ('nt sc1' if 'apl' in self.dbg else 'sc1'))
        def process(S, n):
            for i in range(4):
                e(f's_mov_b64 exec, s[{56+2*i}:{57+2*i}]\ns_waitcnt vmcnt({n+3-i})')
                for k in range(4): e(f'v_xor_b32 v{R+16+4*i+k}, v{S+4*i+k}, v{MK+k}')
                e(f'v_or3_b32 v{vA}, v{R+16+4*i}, v{R+17+4*i}, v{R+18+4*i}\nv_or_b32 v{vA}, v{vA}, v{R+19+4*i}\nv_and_b32 v{vA}, {TMASK:#x}, v{vA}')
                e(f'v_cmp_ne_u32 s[{56+2*i}:{57+2*i}], 0, v{vA}')
            e('s_or_b64 vcc, s[56:57], s[58:59]\ns_or_b64 s[50:51], s[60:61], s[62:63]\ns_or_b64 vcc, vcc, s[50:51]')
        if self.fp2:
            SA = R; SB = R + 32
            if 'early' in self.dbg: issue(SA)
            e('s_barrier')
            if 'early' in self.dbg: process(SA, 0)
            if 'nob4' not in self.dbg: e('s_barrier')
            issue(SA)
            e(f's_sleep {self.fp2}')
            e('L_fpoll:')
            issue(SB); process(SA, 4)
            e('s_cbranch_scc0 L_fgo')
            issue(SA); process(SB, 4)
            e('s_cbranch_scc0 L_fgo')
            e('s_add_u32 s55, s55, 1\ns_cmp_lt_u32 s55, 0x8000\ns_cbranch_scc1 L_fpoll')
            e('L_fgo:\ns_mov_b64 exec, -1')
        elif 'early' in self.dbg:
            issue(R)
            e('s_barrier')
            process(R, 0)
            if 'nob4' not in self.dbg: e('s_barrier')
            e('L_fpoll:')
            issue(R); process(R, 0)
            e('s_cbranch_scc0 L_fgo')
            e('s_add_u32 s55, s55, 1\ns_cmp_lt_u32 s55, 0x10000\ns_cbranch_scc1 L_fpoll')
            e('L_fgo:\ns_mov_b64 exec, -1')
        else:
            e('s_barrier')
            if 'nob4' not in self.dbg: e('s_barrier')
            e('L_fpoll:')
            for i in range(4):
                e(f's_mov_b64 exec, s[{56+2*i}:{57+2*i}]')
                e(f'buffer_load_dwordx4 v[{R+4*i}:{R+4*i+3}], v{vT}, s[36:39], s54 offen offset:{i*1024} ' + ('nt sc1' if 'apl' in self.dbg else 'sc1'))
            e('s_mov_b64 exec, -1\ns_add_u32 s55, s55, 1')
            for i in range(4):
                e(f's_waitcnt vmcnt({3-i})')
                for k in range(4): e(f'v_xor_b32 v{R+16+4*i+k}, v{R+4*i+k}, v{MK+k}')
                e(f'v_or3_b32 v{vA}, v{R+16+4*i}, v{R+17+4*i}, v{R+18+4*i}\nv_or_b32 v{vA}, v{vA}, v{R+19+4*i}\nv_and_b32 v{vA}, {TMASK:#x}, v{vA}')
                e(f'v_cmp_ne_u32 s[{56+2*i}:{57+2*i}], 0, v{vA}')
            e('s_cmp_ge_u32 s55, 0x10000\ns_cbranch_scc1 L_fgo')
            e('s_or_b64 vcc, s[56:57], s[58:59]\ns_or_b64 s[50:51], s[60:61], s[62:63]\ns_or_b64 vcc, vcc, s[50:51]\n' + (f's_cbranch_scc0 L_fgo\ns_sleep {self.fsl}\ns_branch L_fpoll\nL_fgo:' if self.fsl else 's_cbranch_scc1 L_fpoll\nL_fgo:'))
        self.stamp(7)
        R = R + 16
        self.colsum(R, 4, vT)
        e('s_waitcnt lgkmcnt(0)')
        for i in range(4): e(f'v_add_f32 v{R+i}, v{Q+i}, v{R+i}')
        e(f'v_cvt_pk_bf16_f32 v{R}, v{R}, v{R+1}\nv_cvt_pk_bf16_f32 v{R+1}, v{R+2}, v{R+3}')
        e(f's_lshl_b32 s54, s2, 6\nv_lshlrev_b32 v{vT}, 3, v1\ns_mov_b64 exec, 0xff')
        e(f'buffer_store_dwordx2 v[{R}:{R+1}], v{vT}, s[32:35], s54 offen')
        e('s_mov_b64 exec, -1')
        self.stamp(6)
        self.flush_stamps([0, 1, 2, 3, 4, 6, 7], 200)
        e('s_endpgm')

    def colsum(self, R, n, vt):
        e = self.e
        for i in range(1, n):
            for k in range(4): e(f'v_add_f32 v{R+k}, v{R+k}, v{R+4*i+k}')
        e('s_nop 1')
        for k in range(4): e(f'v_add_f32_dpp v{R+k}, v{R+k}, v{R+k} row_ror:8 row_mask:0xf bank_mask:0xf')
        for which in (16, 32):
            for k in range(4): e(f'v_mov_b32 v{R+4+k}, v{R+k}')
            e('s_nop 0')
            for k in range(4): e(f'v_permlane{which}_swap_b32 v{R+k}, v{R+4+k}')
            for k in range(4): e(f'v_add_f32 v{R+k}, v{R+k}, v{R+4+k}')

    def tags_from(self, nv, tg):
        self.e(f'v_and_b32 v{tg}, {TMASK:#x}, v{nv}\nv_bfe_u32 v{tg+1}, v{nv}, 16, {TB}\nv_and_b32 v{tg+2}, {TMASK:#x}, v{nv+1}\nv_bfe_u32 v{tg+3}, v{nv+1}, 16, {TB}')
    def untag(self, R, n, tg, t0, t1, mask):
        e = self.e
        for i in range(4 * n): e(f'v_xor_b32 v{R+i}, v{R+i}, v{tg + (i & 3)}')
        e(f'v_or3_b32 v{t0}, v{R}, v{R+1}, v{R+2}\nv_or3_b32 v{t1}, v{R+3}, v{R+4}, v{R+5}')
        i = 6; k = 0
        while i < 4 * n:
            t = (t0, t1)[k & 1]; e(f'v_or3_b32 v{t}, v{t}, v{R+i}, v{R+i+1}'); i += 2; k += 1
        e(f'v_or_b32 v{t0}, v{t0}, v{t1}\nv_and_b32 v{t0}, {mask:#x}, v{t0}\nv_cmp_ne_u32 vcc, 0, v{t0}')

    def aux(self):
        e, c = self.e, self.c
        WP = self.wpol
        vCnt, vT, vT2, vG, vC, vC7, vSt, vTr, vL16, vX = 2, 3, 4, 5, 6, 7, 8, 9, 10, 11
        X = 16
        U = 32
        TG = 64
        XFr = 68
        NV = 28
        c('=== aux waves (4..7) ===')
        e('s_sub_u32 s3, s3, 4')
        e(f'v_mov_b32 v{vCnt}, {L_CNT:#x}')
        e(f'v_lshrrev_b32 v{vG}, 4, v1\nv_and_b32 v{vC}, 15, v1\nv_and_b32 v{vC7}, 7, v1\nv_lshlrev_b32 v{vL16}, 4, v1')
        e(f'v_lshrrev_b32 v{vT}, 5, v1\nv_lshlrev_b32 v{vT}, 11, v{vT}\nv_and_b32 v{vT2}, 31, v1')
        e(f's_lshl_b32 s49, s3, 12\nv_add_u32 v{vT}, s49, v{vT}')
        e(f'v_lshl_add_u32 v{vX}, v{vT2}, 4, v{vT}')
        vWq = 15
        e(f'v_lshrrev_b32 v{vT}, 3, v1\nv_lshlrev_b32 v{vWq}, 13, v{vT}\nv_lshl_add_u32 v{vWq}, v{vC7}, 4, v{vWq}')
        e('s_lshl_b32 s50, s48, 21\ns_lshl_b32 s51, s47, 7\ns_add_u32 s50, s50, s51\ns_sub_u32 s51, 0x800000, s50')
        e('s_lshl_b32 s53, s48, 9')
        e(f's_lshl_b32 s54, s3, 13\ns_add_u32 m0, s54, {L_WQ:#x}\ns_lshl_b32 s55, s3, 19')
        e('s_memrealtime s[62:63]')
        e(f'v_lshrrev_b32 v{vT}, 3, v{vC}\nv_lshlrev_b32 v{vSt}, 6, v{vT}\nv_lshl_add_u32 v{vSt}, v{vG}, 4, v{vSt}\nv_lshl_add_u32 v{vSt}, v{vC7}, 19, v{vSt}')
        e(f'v_mov_b32 v{vT2}, 0')
        e('s_xor_b32 s60, s3, 3\ns_or_b32 s60, s60, s2')
        e('s_waitcnt lgkmcnt(0)')
        self.srd(40, 24, 25, None, 256)
        self.srd(36, 26, 27, None, W_SIZE)
        e('s_cmp_lg_u32 s60, 0\ns_cbranch_scc1 L_a_noz')
        c('workgroup 0: publish the launch nonce: four fields of the clock, field 0 odd, field 1 even')
        e(f's_lshl_b32 s56, s62, 1\ns_or_b32 s56, s56, 1\ns_and_b32 s56, s56, {TMASK:#x}\ns_bfe_u32 s57, s62, {((TB-1) << 16) | (TB-1):#x}\ns_lshl_b32 s57, s57, 17\ns_or_b32 s56, s56, s57')
        e(f's_lshr_b64 s[62:63], s[62:63], {2*TB-2}\ns_and_b32 s57, s62, {TMASK:#x}\ns_bfe_u32 s62, s62, {(TB << 16) | TB:#x}\ns_lshl_b32 s62, s62, 16\ns_or_b32 s57, s57, s62\ns_or_b32 s57, s57, 0x80000000')
        e(f'v_mov_b32 v{TG}, s56\nv_mov_b32 v{TG+1}, s57\ns_mov_b64 exec, 1')
        e(f'buffer_store_dwordx2 v[{TG}:{TG+1}], v{vT2}, s[40:43], 0 offen ' + ('nt sc1' if 'nonnt' in self.dbg else 'sc1') + '\ns_mov_b64 exec, -1')
        if self.ddepth and 'z2' in self.dbg:
            c('zero the progress counters (they only steer queue depth)')
            if 'sh16' in self.dbg: e(f'v_lshlrev_b32 v{vT}, 8, v{vG}\nv_lshl_add_u32 v{vT}, v{vC}, 13, v{vT}')
            elif 'sh4' in self.dbg: e(f'v_lshrrev_b32 v{vT}, 2, v1\nv_lshlrev_b32 v{vT}, 8, v{vT}\nv_and_b32 v{U}, 3, v1\nv_lshl_add_u32 v{vT}, v{U}, 13, v{vT}')
            else: e(f'v_lshrrev_b32 v{vT}, 3, v1\nv_lshlrev_b32 v{vT}, 8, v{vT}\nv_lshl_add_u32 v{vT}, v{vC7}, 13, v{vT}')
            e(f's_mov_b32 s56, {W_CT:#x}\nbuffer_store_dword v{vT2}, v{vT}, s[36:39], s56 offen sc1')
        elif self.ddepth and 'z1' not in self.dbg:
            c('zero the progress counters (they only steer queue depth)')
            e(f'v_lshlrev_b32 v{vT}, 8, v1\ns_mov_b32 s56, {W_CT:#x}')
            nz = 8 if (self.ltab or 'sh16' in self.dbg) else 4
            for i in range(nz):
                e(f'buffer_store_dword v{vT2}, v{vT}, s[36:39], s56 offen sc1')
                if i < nz - 1: e('s_add_u32 s56, s56, 0x4000')
        e('L_a_noz:')
        if 'preap' in self.dbg:
            e(f's_mul_i32 s56, s44, {W_BSTRIDE:#x}\ns_lshl_b32 s57, s45, 12\ns_add_u32 s56, s56, s57\ns_lshl_b32 s57, s3, 10\ns_add_u32 s56, s56, s57\ns_add_u32 s56, s56, {W_AP:#x}')
            e(f'buffer_load_dwordx4 v[116:119], v{vL16}, s[36:39], s56 offen sc1')
        if 'pregu' in self.dbg:
            e(f's_lshl_b32 s56, s46, 12\ns_lshl_b32 s57, s3, 10\ns_add_u32 s56, s56, s57\ns_add_u32 s56, s56, {W_GU:#x}')
            e(f'buffer_load_dwordx4 v[116:119], v{vL16}, s[36:39], s56 offen sc1')
        if 'preq' in self.dbg:
            e('s_cmp_ge_u32 s3, 2\ns_cbranch_scc1 L_a_nopreq')
            e(f's_mul_i32 s56, s44, {W_BSTRIDE:#x}\ns_lshl_b32 s57, s45, 11\ns_add_u32 s56, s56, s57\ns_lshl_b32 s57, s3, 10\ns_add_u32 s56, s56, s57')
            e(f'buffer_load_dwordx4 v[120:123], v{vL16}, s[36:39], s56 offen sc1')
            e('L_a_nopreq:')
        if 'pre' in self.dbg or 'pre1' in self.dbg:
            e('s_cmp_ge_u32 s3, 2\ns_cbranch_scc1 L_a_nopre')
            e(f's_mul_i32 s56, s44, {W_BSTRIDE:#x}\ns_lshl_b32 s57, s45, 11\ns_add_u32 s56, s56, s57\ns_lshl_b32 s57, s3, 10\ns_add_u32 s56, s56, s57')
            if 'pre1' in self.dbg: e('s_mov_b64 exec, 1')
            e(f'buffer_load_dwordx4 v[120:123], v{vL16}, s[36:39], s56 offen sc1')
            e(f's_lshl_b32 s56, s46, 8\ns_lshl_b32 s57, s3, 7\ns_add_u32 s56, s56, s57')
            if 'pre1' in self.dbg: e('s_mov_b64 exec, 0xff\ns_add_u32 s56, s56, 0x10000')
            e(f'buffer_load_dwordx4 v[124:127], v{vSt}, s[36:39], s56 offen sc1')
            if 'pre1' in self.dbg: e('s_mov_b64 exec, -1')
            e('L_a_nopre:')
        self.srd(28, 4, 5, None, 0x4000)
        self.srd(32, 10, 11, 50, size_sgpr=51)
        for i in range(4): e(f'buffer_load_dwordx4 v[{X+4*i}:{X+4*i+3}], v{vX}, s[28:31], 0 offen offset:{i*512}')
        e(f'buffer_load_dwordx4 v[{XFr}:{XFr+3}], v{vX}, s[28:31], s53 offen')
        for i in range(8):
            e(f'buffer_load_dwordx4 v{vWq}, s[32:35], s55 offen {WP} lds')
            if i < 7: e(f's_add_u32 m0, m0, 0x400\ns_add_u32 s55, s55, 0x10000\ns_nop 0')
        if 'lateb0' in self.dbg: e('s_barrier')
        c('a=2: clear own OX slot with the sentinel')
        e('s_cmp_lg_u32 s3, 2\ns_cbranch_scc1 L_a_nocl')
        for k in range(4): e(f'v_mov_b32 v{U+k}, -1')
        e(f's_lshl_b32 s54, s46, 8\ns_add_u32 s54, s54, {W_OX:#x}\ns_mov_b64 exec, 0xffff')
        e(f'buffer_store_dwordx4 v[{U}:{U+3}], v{vL16}, s[36:39], s54 offen ' + ('nt sc1 ' if 'clnt' in self.dbg else 'sc1') + '\ns_mov_b64 exec, -1\ns_nop 0')
        e('L_a_nocl:')
        e(f's_lshl_b32 s61, s44, 14\ns_lshl_b32 s55, s3, 12\ns_add_u32 s61, s61, s55\ns_lshl_b32 s55, s45, 7\ns_add_u32 s61, s61, s55\ns_add_u32 s61, s61, {W_AP:#x}')
        self.stamp(14)
        c('LN stats')
        e('s_waitcnt vmcnt(9)')
        self.stamp(15)
        for i in range(16):
            e(f'v_lshlrev_b32 v{U+2*i}, 16, v{X+i}\nv_and_b32 v{U+2*i+1}, 0xffff0000, v{X+i}')
        S0 = 12
        e(f'v_pk_add_f32 v[{S0}:{S0+1}], v[{U}:{U+1}], v[{U+2}:{U+3}]\nv_pk_add_f32 v[{S0+2}:{S0+3}], v[{U+4}:{U+5}], v[{U+6}:{U+7}]')
        for i in range(4, 16):
            a = S0 + 2 * (i & 1)
            e(f'v_pk_add_f32 v[{a}:{a+1}], v[{a}:{a+1}], v[{U+2*i}:{U+2*i+1}]')
        e(f'v_pk_add_f32 v[{S0}:{S0+1}], v[{S0}:{S0+1}], v[{S0+2}:{S0+3}]\nv_add_f32 v{S0}, v{S0}, v{S0+1}')
        self.ror_reduce('v_add_f32', S0)
        self.swap_reduce('v_add_f32', S0, vT, 16)
        M = X
        e(f'v_mul_f32 v{M}, {f2u(-1.0/1024):#x}, v{S0}\nv_mov_b32 v{M+1}, v{M}')
        for i in range(16): e(f'v_pk_add_f32 v[{U+2*i}:{U+2*i+1}], v[{U+2*i}:{U+2*i+1}], v[{M}:{M+1}]')
        e(f'v_pk_mul_f32 v[{S0}:{S0+1}], v[{U}:{U+1}], v[{U}:{U+1}]\nv_pk_mul_f32 v[{S0+2}:{S0+3}], v[{U+2}:{U+3}], v[{U+2}:{U+3}]')
        for i in range(2, 16):
            a = S0 + 2 * (i & 1)
            e(f'v_pk_fma_f32 v[{a}:{a+1}], v[{U+2*i}:{U+2*i+1}], v[{U+2*i}:{U+2*i+1}], v[{a}:{a+1}]')
        e(f'v_pk_add_f32 v[{S0}:{S0+1}], v[{S0}:{S0+1}], v[{S0+2}:{S0+3}]\nv_add_f32 v{S0}, v{S0}, v{S0+1}')
        self.ror_reduce('v_add_f32', S0)
        self.swap_reduce('v_add_f32', S0, vT, 16)
        RR, RC = S0, S0 + 1
        e(f'v_mul_f32 v{RR}, {f2u(1.0/1024):#x}, v{S0}'); self.rnd_bf16(RR)
        e(f'v_add_f32 v{RR}, {f2u(1e-5):#x}, v{RR}'); self.rnd_bf16(RR)
        e(f'v_sqrt_f32 v{RR}, v{RR}\ns_nop 0'); self.rnd_bf16(RR)
        e(f'v_rcp_f32 v{RC}, v{RR}')
        self.rnd_bf16(M)
        def norm(src, n):
            for i in range(n):
                a, b2, q0, q1 = U, U + 1, U + 2, U + 3
                e(f'v_lshlrev_b32 v{a}, 16, v{src+i}\nv_and_b32 v{b2}, 0xffff0000, v{src+i}')
                e(f'v_add_f32 v{a}, v{a}, v{M}\nv_add_f32 v{b2}, v{b2}, v{M}')
                e(f'v_cvt_pk_bf16_f32 v{b2}, v{a}, v{b2}')
                e(f'v_lshlrev_b32 v{a}, 16, v{b2}\nv_and_b32 v{b2}, 0xffff0000, v{b2}')
                e(f'v_mul_f32 v{q0}, v{a}, v{RC}\nv_mul_f32 v{q1}, v{b2}, v{RC}')
                e(f'v_fma_f32 v{a}, -v{q0}, v{RR}, v{a}\nv_fma_f32 v{b2}, -v{q1}, v{RR}, v{b2}')
                e(f'v_fmac_f32 v{q0}, v{a}, v{RC}\nv_fmac_f32 v{q1}, v{b2}, v{RC}')
                e(f'v_cvt_pk_bf16_f32 v{src+i}, v{q0}, v{q1}')
        e('s_waitcnt vmcnt(8)')
        e('s_cmp_lg_u32 s3, 3\ns_cbranch_scc1 L_a_nn1')
        if 'nonon' in self.dbg: e(f'v_mov_b32 v{NV}, 0x01230457\nv_mov_b32 v{NV+1}, 0x89ab0cde')
        elif 'nopl' in self.dbg: e(f'buffer_load_dwordx2 v[{NV}:{NV+1}], v{vT2}, s[40:43], 0 offen')
        else: e(f'buffer_load_dwordx2 v[{NV}:{NV+1}], v{vT2}, s[40:43], 0 offen ' + ('nt sc1' if 'nolnt' in self.dbg else 'sc1'))
        e('L_a_nn1:')
        norm(XFr, 4)
        e(f's_lshl_b32 s54, s3, 10\ns_add_u32 s54, s54, {L_XF:#x}\nv_add_u32 v{vT}, s54, v{vL16}')
        e(f'ds_write_b128 v{vT}, v[{XFr}:{XFr+3}]')
        e(f'v_bfe_u32 v{vT}, v1, 2, 2\nv_lshl_add_u32 v{vX}, v{vG}, 3, v{vT}')
        vT3 = 15; vBa = 14; vCc = 13
        e(f'v_and_b32 v{vCc}, 3, v1\nv_lshlrev_b32 v{vCc}, 3, v{vCc}')
        e(f'v_lshl_add_u32 v{vTr}, v{vX}, 8, v{vCc}\ns_lshl_b32 s54, s3, 6\nv_add_u32 v{vTr}, s54, v{vTr}')
        e(f'v_lshl_add_u32 v{vT3}, v{vX}, 7, v{vCc}\nv_add_u32 v{vT3}, s54, v{vT3}')
        e('s_mov_b32 s58, 0xff00ff00\ns_mov_b32 s59, 0xff00ff00\ns_mov_b32 s100, 0\ns_mov_b32 s101, -1\ns_mov_b32 s49, ' + hex(0xffffffff ^ TMASK))
        e(f'v_lshlrev_b32 v{vBa}, 9, v{vC7}\nv_lshl_add_u32 v{vBa}, v{vG}, 4, v{vBa}\nv_add_u32 v{vBa}, {L_XF:#x}, v{vBa}')
        e('s_waitcnt vmcnt(0)')
        e('s_cmp_lg_u32 s3, 3\ns_cbranch_scc1 L_a_nn2\ns_mov_b32 s57, 0')
        e('L_npoll:')
        e(f'v_readfirstlane_b32 s56, v{NV+1}\ns_cmp_lg_u32 s56, 0\ns_cbranch_scc1 L_ngo')
        e(f'buffer_load_dwordx2 v[{NV}:{NV+1}], v{vT2}, s[40:43], 0 offen ' + ('nt sc1' if 'nolnt' in self.dbg else 'sc1'))
        e('s_add_u32 s57, s57, 1\ns_waitcnt vmcnt(0)\ns_cmp_lt_u32 s57, 0x10000\ns_cbranch_scc1 L_npoll\nL_ngo:')
        e(f'ds_write_b64 v{vCnt}, v[{NV}:{NV+1}] offset:{L_NONCE-L_CNT}')
        e('L_a_nn2:')
        self.arrive(0, vCnt, vT, 56)
        self.lds_wait(0, 4, vCnt, vT, 56)
        self.stamp(8)
        e(f'ds_read_b64 v[{NV}:{NV+1}], v{vCnt} offset:{L_NONCE-L_CNT}')
        BB = 80; AW = 96; D0 = 72; D1 = 76
        B1 = 80; A1 = 112
        for kk in range(8): e(f'ds_read_b128 v[{B1+4*kk}:{B1+4*kk+3}], v{vBa} offset:{kk*64}')
        def tile128(base, va=vTr):
            for ct in range(2):
                for kk in range(4):
                    for hh in range(2):
                        r = AW + (ct * 4 + kk) * 4 + hh * 2
                        e(f'ds_read_b64_tr_b16 v[{r}:{r+1}], v{va} offset:{base + kk*8192 + hh*1024 + ct*32}')
                if ct == 0: e('s_waitcnt lgkmcnt(6)')
        def mm128(acc=False):
            for kk in range(4):
                for ct in range(2):
                    d = (D0, D1)[ct]; r = AW + (ct * 4 + kk) * 4
                    cc = '0' if kk == 0 and not acc else f'v[{d}:{d+3}]'
                    e(f'v_mfma_f32_16x16x32_bf16 v[{d}:{d+3}], v[{r}:{r+3}], v[{BB+4*kk}:{BB+4*kk+3}], {cc}')
        def merge_tag(da, db, tg, bits, smask):
            for i in range(4): e(f'v_cndmask_b32 v{da+i}, v{da+i}, v{db+i}, s[58:59]')
            for i in range(4): e(f'v_add_u32 v{da+i}, {1 << (bits-1):#x}, v{da+i}')
            for i in range(4): e(f'v_and_or_b32 v{da+i}, v{da+i}, s{smask}, v{tg+i}')
        def pair256(second, tg):
            for mat in range(2):
                for kk in range(8):
                    for hh in range(2):
                        r = A1 + (mat * 8 + kk) * 4 + hh * 2
                        e(f'ds_read_b64_tr_b16 v[{r}:{r+1}], v{vT3} offset:{mat*second + kk*4096 + hh*512}')
                    if kk % 4 == 3: e('s_waitcnt lgkmcnt(0)')
            for kk in range(8):
                for mat in range(2):
                    d = (D0, D1)[mat]; r = A1 + (mat * 8 + kk) * 4
                    cc = '0' if kk == 0 else f'v[{d}:{d+3}]'
                    e(f'v_mfma_f32_16x16x32_bf16 v[{d}:{d+3}], v[{r}:{r+3}], v[{B1+4*kk}:{B1+4*kk+3}], {cc}')
            e('s_nop 7')
            merge_tag(D0, D1, tg, 8, 60)
        def gpoll(name, n, emit_loads, sleep, tg, mask):
            e(f's_mov_b32 s57, 0\n{name}:')
            emit_loads()
            e(f's_add_u32 s57, s57, 1\ns_waitcnt vmcnt(0)')
            self.untag(U, n, tg, vT, vT2, mask)
            e(f's_cbranch_vccz {name}_go')
            if sleep: e(f's_sleep {sleep}')
            e(f's_cmp_lt_u32 s57, 0x10000\ns_cbranch_scc1 {name}\n{name}_go:')
        e('s_waitcnt lgkmcnt(0)')
        self.tags_from(NV, TG)
        TC = 20; TP = 24
        e(f's_mov_b32 s60, 0xffffff00\ns_mov_b32 s50, 0xaaaaaaaa\ns_mov_b32 s51, 0xaaaaaaaa\ns_mov_b32 s52, 0xffff0000\ns_mov_b32 s53, 0xffff0000')
        e(f'v_cndmask_b32 v{TC+3}, v{NV}, v{NV+1}, s[50:51]\nv_cndmask_b32 v{TP+3}, v{NV}, v{NV+1}, s[52:53]')
        for T in (TC, TP):
            e(f'v_and_b32 v{T}, 0xff, v{T+3}\nv_bfe_u32 v{T+1}, v{T+3}, 8, 8\nv_bfe_u32 v{T+2}, v{T+3}, 16, 8\nv_lshrrev_b32 v{T+3}, 24, v{T+3}')
        e('s_cmp_ge_u32 s3, 2\ns_cbranch_scc1 L_a_b1')
        c('q partial (a = 0,1): 32 columns each')
        assert L_WQ == 0
        pair256(32, TP)
        e(f's_lshl_b32 s54, s46, 8\ns_lshl_b32 s55, s3, 7\ns_add_u32 s54, s54, s55')
        e(f'buffer_store_dwordx4 v[{D0}:{D0+3}], v{vSt}, s[36:39], s54 offen {"sc1" if "qsp" in self.dbg else self.qpol} ')
        self.stamp(9)
        e('s_cmp_lg_u32 s3, 0\ns_cbranch_scc1 L_a_b1')
        c('wave a=0: gather q')
        e(f's_mul_i32 s54, s44, {W_BSTRIDE:#x}\ns_lshl_b32 s55, s45, 11\ns_add_u32 s54, s54, s55')
        if self.qj: self.lds_wait(12, 1, vCnt, vT, 56, sleep=2)
        def ql():
            for i in range(2): e(f'buffer_load_dwordx4 v[{U+4*i}:{U+4*i+3}], v{vL16}, s[36:39], s54 offen offset:{i*1024} {self.qpol}')
        gpoll('L_qpoll', 2, ql, self.qsleep, TC, 0xff)
        for k in range(4): e(f'v_permlane32_swap_b32 v{U+k}, v{U+4+k}')
        for k in range(4): e(f'v_add_f32 v{U+k}, v{U+k}, v{U+4+k}')
        for k in range(4): e(f'v_mov_b32 v{U+4+k}, v{U+k}')
        e(f'v_lshrrev_b32 v{vT}, 5, v1\nv_lshlrev_b32 v{vT}, 7, v{vT}\nv_lshl_add_u32 v{vT}, v{vC}, 3, v{vT}\nv_add_u32 v{vT}, {L_QL:#x}, v{vT}')
        for k in range(4): e(f'v_permlane16_swap_b32 v{U+k}, v{U+4+k}')
        for k in range(4): e(f'v_add_f32 v{U+k}, v{U+k}, v{U+4+k}')
        e(f'v_cvt_pk_bf16_f32 v{U}, v{U}, v{U+1}\nv_cvt_pk_bf16_f32 v{U+1}, v{U+2}, v{U+3}')
        e(f'ds_write_b64 v{vT}, v[{U}:{U+1}]')
        e('L_a_b1:')
        e(f's_lshl_b32 s54, s3, 5\ns_sub_u32 s54, {L_GATE:#x}, s54\nv_add_u32 v{vT3}, s54, v{vT3}')
        e('s_waitcnt lgkmcnt(0)')
        self.stamp(10)
        e('s_barrier')
        if self.ddepth and 'z1' in self.dbg:
            c('workgroup 0, a=2: zero the progress counters (they only steer queue depth)')
            e('s_xor_b32 s54, s3, 2\ns_or_b32 s54, s54, s2\ns_cbranch_scc1 L_a_noz1')
            e(f'v_lshrrev_b32 v{vT}, 3, v1\nv_lshlrev_b32 v{vT}, 8, v{vT}\nv_lshl_add_u32 v{vT}, v{vC7}, 13, v{vT}\nv_mov_b32 v{vT2}, 0\ns_mov_b32 s54, {W_CT:#x}')
            e(f'buffer_store_dword v{vT2}, v{vT}, s[36:39], s54 offen nt sc1 \ns_nop 0')
            e('L_a_noz1:')
        c('FFN stage 1')
        e('s_cmp_ge_u32 s46, 224\ns_cbranch_scc1 L_a_s1done')
        if self.skip >= 3: e('s_branch L_a_s1done')
        if 'gustonly' not in self.dbg: pair256(0x8000, TC)
        e(f's_lshl_b32 s54, s46, 12\ns_lshl_b32 s55, s3, 10\ns_add_u32 s54, s54, s55\ns_add_u32 s54, s54, {W_GU:#x}')
        if self.gus:
            S = self.gus
            e(f's_lshr_b32 s54, s46, {S-8}\ns_lshl_b32 s54, s54, {S+4}\ns_and_b32 s55, s46, {(1 << (S-8)) - 1}\ns_lshl_b32 s55, s55, 8\ns_add_u32 s54, s54, s55')
            e(f's_lshl_b32 s55, s3, {S+2}\ns_add_u32 s54, s54, s55\ns_add_u32 s54, s54, {W_GU:#x}')
            e(f'v_lshlrev_b32 v{vT}, {S}, v{vG}\nv_lshl_add_u32 v{vT}, v{vC}, 4, v{vT}')
            e(f'buffer_store_dwordx4 v[{D0}:{D0+3}], v{vT}, s[36:39], s54 offen {self.fst or self.fpol} \ns_nop 1')
        elif 'own' in self.dbg:
            c('the piece this workgroup reduces itself stays in LDS')
            e('s_cmp_eq_u32 s3, s48\ns_cbranch_scc1 L_a_guown')
            e(f'buffer_store_dwordx4 v[{D0}:{D0+3}], v{vL16}, s[36:39], s54 offen {self.fst or self.fpol} ')
            e('s_branch L_a_s1done\nL_a_guown:')
            e(f'v_add_u32 v{vT}, {L_XQ:#x}, v{vL16}\nds_write_b128 v{vT}, v[{D0}:{D0+3}]')
        elif 'nogust' not in self.dbg: e(f'buffer_store_dwordx4 v[{D0}:{D0+3}], v{vL16}, s[36:39], s54 offen {self.fst or self.fpol} ')
        e('L_a_s1done:')
        if 'touch' in self.dbg:
            c('a=3: one small read of the pages that are first used late (wo tile, V)')
            e('s_cmp_lg_u32 s3, 3\ns_cbranch_scc1 L_a_notouch')
            e(f'v_mov_b32 v{vT}, 0\ns_mov_b64 exec, 1')
            if 'touchout' in self.dbg:
                self.srd(32, 22, 23, None, 0x4000)
                e(f's_lshl_b32 s54, s2, 6\nbuffer_load_dword v176, v{vT}, s[32:35], s54 offen')
            self.srd(32, 12, 13, None, 0x800000)
            e(f's_lshl_b32 s54, s45, 18\nbuffer_load_dword v177, v{vT}, s[32:35], s54 offen nt')
            e('s_lshl_b32 s54, s2, 20')
            self.srd(32, 8, 9, 54, 0x100000)
            e(f'buffer_load_dword v178, v{vT}, s[32:35], 0 offen nt')
            e('s_mov_b64 exec, -1')
            e('L_a_notouch:')
        self.arrive(2, vCnt, vT, 56)
        self.lds_wait(2, 4, vCnt, vT, 56)
        def wodma():
            c('wo tile DMA')
            e('s_lshl_b32 s50, s45, 18\ns_lshl_b32 s51, s44, 8\ns_add_u32 s50, s50, s51\ns_sub_u32 s51, 0x800000, s50')
            self.srd(32, 12, 13, 50, size_sgpr=51)
            e(f'v_lshlrev_b32 v{vT}, 11, v{vG}\nv_lshl_add_u32 v{vT}, v{vC}, 4, v{vT}')
            e(f's_lshl_b32 s54, s3, 13\ns_add_u32 m0, s54, {L_WO:#x}\ns_lshl_b32 s55, s3, 16\ns_nop 0')
            for i in range(8 if self.skip < 4 else 0):
                if self.wod and i >= self.wod: e(f's_waitcnt vmcnt({self.wod-1})')
                e(f'buffer_load_dwordx4 v{vT}, s[32:35], s55 offen {WP} lds')
                if i < 7: e(f's_add_u32 m0, m0, 0x400\ns_add_u32 s55, s55, 0x2000\ns_nop 0')
        if not self.wolate: wodma()
        c('down tile operands')
        e(f'v_add_u32 v{vT3}, {L_DOWN:#x}, v{vTr}')
        tile128(0, vT3)
        e(f'v_lshrrev_b32 v{vT}, 5, v1\nv_lshlrev_b32 v{vBa}, 8, v{vT}\nv_lshl_add_u32 v{vBa}, v{vC7}, 5, v{vBa}\nv_and_b32 v{vT}, 1, v{vG}\nv_lshl_add_u32 v{vBa}, v{vT}, 4, v{vBa}\nv_add_u32 v{vBa}, {L_HL:#x}, v{vBa}')
        e('s_waitcnt lgkmcnt(0)')
        for ct in range(2):
            for i in range(4):
                r = AW + (ct * 4 + 3) * 4 + i
                e(f'v_cndmask_b32 v{r}, v{r}, 0, s[100:101]')
        e('s_cmp_lg_u32 s3, 0\ns_cbranch_scc1 L_a_hw')
        c('wave a=0: reduce one 16-column piece of g,u -> h ; then fetch the 7 pieces this workgroup needs')
        if self.skip >= 2: e('s_branch L_a_hdone')
        e('s_cmp_ge_u32 s46, 224\ns_cbranch_scc1 L_a_s15done')
        if self.gwait: self.lds_wait(8, self.gwait, vCnt, vT, 56, sleep=8)
        e(f's_lshl_b32 s54, s47, 14\ns_lshl_b32 s55, s48, 10\ns_add_u32 s54, s54, s55\ns_add_u32 s54, s54, {W_GU:#x}')
        if 'own' in self.dbg:
            for i, so in enumerate((55, 50, 51)):
                e(f's_add_u32 s{so}, s48, {i+1}\ns_and_b32 s{so}, s{so}, 3\ns_lshl_b32 s{so}, s{so}, 12\ns_add_u32 s{so}, s{so}, s54')
            e(f'v_add_u32 v{vCc}, {L_XQ:#x}, v{vL16}')
        else: e('s_add_u32 s55, s54, 0x1000\ns_add_u32 s50, s54, 0x2000\ns_add_u32 s51, s54, 0x3000')
        def gl():
            for k, so in enumerate((54, 55, 50, 51)):
                if k == 0 and 'own' in self.dbg: e(f'ds_read_b128 v[{U}:{U+3}], v{vCc}')
                else: e(f'buffer_load_dwordx4 v[{U+4*k}:{U+4*k+3}], v{vL16}, s[36:39], s{so} offen {self.fpol}')
            if 'own' in self.dbg: e('s_waitcnt lgkmcnt(0)')
        gpoll('L_gpoll', 4, gl, 32, TC, 0xff)
        e(f'v_lshlrev_b32 v{vT}, 6, v{vC7}\nv_lshl_add_u32 v{vT}, v{vG}, 4, v{vT}\ns_lshl_b32 s54, s46, 9\ns_add_u32 s54, s54, {W_H:#x}')
        for i in range(1, 4):
            for k in range(4): e(f'v_add_f32 v{U+k}, v{U+k}, v{U+4*i+k}')
        for k in range(4): self.rnd_bf16(U + k)
        e('s_nop 1')
        for k in range(4): e(f'v_mul_f32_dpp v{U+4+k}, v{U+k}, v{U+k} row_ror:8 row_mask:0xf bank_mask:0xf')
        for k in range(4): self.rnd_bf16(U + 4 + k)
        for k in range(4): e(f'v_or_b32 v{U+4+k}, v{U+4+k}, v{TG+k}')
        e('s_not_b64 exec, s[58:59]')
        e(f'buffer_store_dwordx4 v[{U+4}:{U+7}], v{vT}, s[36:39], s54 offen {self.fpol}\ns_mov_b64 exec, -1')
        e('L_a_s15done:')
        if self.hwait: self.lds_wait(8, self.hwait, vCnt, vT, 56, sleep=8)
        e(f's_mul_i32 s54, s45, {7*512}\ns_add_u32 s54, s54, {W_H:#x}\nv_and_b32 v{vCc}, 0x1ff, v{vL16}')
        def hl():
            for k in range(3): e(f'buffer_load_dwordx4 v[{U+4*k}:{U+4*k+3}], v{vL16}, s[36:39], s54 offen offset:{k*1024} {self.fpol}')
            e(f'buffer_load_dwordx4 v[{U+12}:{U+15}], v{vCc}, s[36:39], s54 offen offset:3072 {self.fpol}')
        gpoll('L_hpoll', 4, hl, 32, TG, TMASK)
        e(f'v_lshlrev_b32 v{vT}, 3, v1\nv_add_u32 v{vT}, {L_HL:#x}, v{vT}')
        for k in range(4):
            e(f'v_cvt_pk_bf16_f32 v{U+4*k}, v{U+4*k}, v{U+4*k+1}\nv_cvt_pk_bf16_f32 v{U+4*k+1}, v{U+4*k+2}, v{U+4*k+3}')
            e(f'ds_write_b64 v{vT}, v[{U+4*k}:{U+4*k+1}] offset:{k*512}')
        e('L_a_hdone:')
        self.arrive(3, vCnt, vT, 56)
        e('L_a_hw:')
        self.lds_wait(3, 1, vCnt, vT, 56, sleep=8)
        for kk in range(4): e(f'ds_read_b128 v[{BB+4*kk}:{BB+4*kk+3}], v{vBa} offset:{kk*512}')
        e('s_waitcnt lgkmcnt(0)')
        mm128()
        def woops():
            e('s_waitcnt vmcnt(0)')
            self.arrive(4, vCnt, vT, 56)
            self.lds_wait(4, 4, vCnt, vT, 56)
            c('preload wo operands')
            tile128(L_WO)
        if not self.wolate: woops()
        self.stamp(11)
        e('s_cmp_eq_u32 s3, 1\ns_cbranch_scc1 L_a_stats\ns_cmp_eq_u32 s3, 2\ns_cbranch_scc1 L_a_ctl\ns_cmp_lg_u32 s3, 0\ns_cbranch_scc1 L_a_b2')
        c('wave a=0: residual input')
        e(f's_lshl_b32 s54, s2, 6\nv_lshlrev_b32 v{vT}, 3, v{vC7}')
        e(f'buffer_load_dwordx2 v[{U}:{U+1}], v{vT}, s[28:31], s54 offen')
        e(f'v_lshlrev_b32 v{vT}, 4, v{vC7}\nv_add_u32 v{vT}, {L_FF:#x}, v{vT}\ns_waitcnt vmcnt(0)')
        e(f'v_lshlrev_b32 v{U+4}, 16, v{U}\nv_and_b32 v{U+5}, 0xffff0000, v{U}\nv_lshlrev_b32 v{U+6}, 16, v{U+1}\nv_and_b32 v{U+7}, 0xffff0000, v{U+1}')
        e(f'ds_write_b128 v{vT}, v[{U+4}:{U+7}]')
        self.stamp(12)
        e('s_branch L_a_b2')
        c('wave a=2: queue-depth controller (rank of this workgroup at each checkpoint)')
        e('L_a_ctl:')
        if self.ddepth:
            if 'sh1' in self.dbg: e(f's_mov_b32 s55, {W_CT:#x}')
            elif 'sh2' in self.dbg: e(f's_bfe_u32 s55, s2, 0x10007\ns_lshl_b32 s55, s55, 13\ns_add_u32 s55, s55, {W_CT:#x}')
            elif 'sh4' in self.dbg:
                e(f's_bfe_u32 s55, s2, 0x20006\ns_lshl_b32 s55, s55, 13\ns_add_u32 s55, s55, {W_CT:#x}')
            elif 'sh16' in self.dbg:
                e(f's_bfe_u32 s55, s2, 0x10003\ns_bfe_u32 s54, s2, 0x30005\ns_lshl_b32 s54, s54, 1\ns_or_b32 s55, s55, s54\ns_lshl_b32 s55, s55, 13\ns_add_u32 s55, s55, {W_CT:#x}')
            else:
                e(f's_bfe_u32 s55, s2, 0x10003\ns_bfe_u32 s54, s2, 0x20006\ns_lshl_b32 s54, s54, 1\ns_or_b32 s55, s55, s54\ns_lshl_b32 s55, s55, 13\ns_add_u32 s55, s55, {W_CT:#x}')
            tab = 0
            for r, dty in enumerate(self.table): tab |= dty << (4 * r)
            e(f's_mov_b32 s50, {tab & 0xffffffff:#x}\ns_mov_b32 s51, {tab >> 32:#x}')
            cps = self.cps or list(range(self.cstart, self.usw - 1, self.cper))
            e(f's_mov_b32 s57, 0\ns_mov_b32 s53, 0\nv_mov_b32 v{vT2}, 0\ns_mov_b64 exec, 1')
            for ci, cp in enumerate(cps + ([self.fcp] if self.fcp else [])):
                slot = ci if ('z1' in self.dbg or 'z2' in self.dbg) else cp
                assert slot < (4 if 'z2' in self.dbg and 'sh16' in self.dbg else 8 if ('z1' in self.dbg or 'z2' in self.dbg) else 32)
                fin = self.fcp and cp == self.fcp
                lw = self.lab('L_ctl'); lg = self.lab('L_ctl_go')
                e(f'{lw}:')
                e(f's_cmp_ge_u32 s57, 0x100000\ns_cbranch_scc1 L_ctl_done')
                e(f'ds_read_b32 v{vT}, v{vCnt} offset:32\ns_add_u32 s57, s57, 1\ns_waitcnt lgkmcnt(0)\nv_readfirstlane_b32 s56, v{vT}')
                e(f's_cmp_ge_u32 s56, {cp}\ns_cbranch_scc1 {lg}\ns_sleep {self.csleep}\ns_branch {lw}')
                e(f'{lg}:')
                e(f's_add_u32 s54, s55, {slot << 8:#x}\nv_mov_b32 v{vT}, 1')
                if self.sld:
                    e(f'buffer_atomic_add v{vT}, v{vT2}, s[36:39], s54 offen sc1 nt\ns_sleep {self.sld}')
                    e(f's_load_dword s54, s[26:27], s54 glc\ns_waitcnt lgkmcnt(0)\ns_sub_u32 s54, s54, 1\ns_max_i32 s54, s54, 0\nv_mov_b32 v{vT}, s54')
                elif 'noat' not in self.dbg: e(f'buffer_atomic_add v{vT}, v{vT2}, s[36:39], s54 offen sc0 sc1' + (' nt' if 'atnt' in self.dbg else ''))
                if fin:
                    ut = 0
                    for r, dty in enumerate(self.utab): ut |= dty << (4 * r)
                    e(f's_mov_b32 s50, {ut & 0xffffffff:#x}\ns_mov_b32 s51, {ut >> 32:#x}')
                rk = 's_and_b32 s54, s54, 0xf0\ns_lshr_b32 s54, s54, 2' if 'sh1' in self.dbg else 's_and_b32 s54, s54, 0x78\ns_lshr_b32 s54, s54, 1' if 'sh2' in self.dbg else 's_and_b32 s54, s54, 60' if 'sh4' in self.dbg else 's_and_b32 s54, s54, 15\ns_lshl_b32 s54, s54, 2' if 'sh16' in self.dbg else 's_and_b32 s54, s54, 30\ns_lshl_b32 s54, s54, 1'
                e(('' if self.sld else f's_waitcnt vmcnt(0)\nv_readfirstlane_b32 s54, v{vT}\n') + f'{rk}\n' + ('s_mov_b32 s53, s54\n' if self.stab else '') + f's_lshr_b64 s[62:63], s[50:51], s54\ns_and_b32 s54, s62, 15')
                if 'ulast' in self.dbg and cp == cps[-1]:
                    ut = 0
                    for r, dty in enumerate(self.utab): ut |= dty << (4 * r)
                    e(f'v_readfirstlane_b32 s52, v{vT}\ns_mov_b32 s50, {ut & 0xffffffff:#x}\ns_mov_b32 s51, {ut >> 32:#x}')
                    e(rk.replace('s54', 's52') + f'\ns_lshr_b64 s[62:63], s[50:51], s52\ns_and_b32 s52, s62, 15\nv_mov_b32 v{vT}, s52\nds_max_u32 v{vCnt}, v{vT} offset:24\ns_nop 0')
                if fin:
                    e(f'v_mov_b32 v{vT}, s54\nds_max_u32 v{vCnt}, v{vT} offset:24')
                else:
                    if self.leak:
                        e(f's_lshr_b32 s53, s53, {self.leak}\ns_add_u32 s54, s54, s53\ns_min_u32 s54, s54, 8\ns_mov_b32 s53, s54')
                    e(f's_add_u32 s56, s54, {cp + (1 if self.drd else 2)}\ns_cmp_eq_u32 s54, 0\ns_cselect_b32 s56, 0, s56')
                    if self.stab:
                        st = 0
                        for r, dty in enumerate(self.stab): st |= dty << (4 * r)
                        e(f's_mov_b32 s62, {st & 0xffffffff:#x}\ns_mov_b32 s63, {st >> 32:#x}\ns_lshr_b64 s[62:63], s[62:63], s53\ns_and_b32 s54, s62, 15')
                        e(f's_add_u32 s52, s54, {cp + (1 if self.drd else 2)}\ns_lshl_b32 s52, s52, 8\ns_cmp_eq_u32 s54, 0\ns_cselect_b32 s52, 0, s52\ns_or_b32 s56, s56, s52')
                    e(f'v_mov_b32 v{vT}, s56')
                    e(f'ds_write_b32 v{vCnt}, v{vT} offset:20')
            e('L_ctl_done:\ns_mov_b64 exec, -1')
        e('s_branch L_a_b2')
        c('wave a=1: softmax statistics')
        e('L_a_stats:')
        self.lds_wait(7, 4, vCnt, vT, 56, sleep=32)
        SV = 128
        e(f'v_mov_b32 v{vT}, {L_MW:#x}\nds_read_b128 v[{U}:{U+3}], v{vT}')
        vSl = vL16
        for i in range(16):
            e(f'ds_read_b128 v[{SV+4*i}:{SV+4*i+3}], v{vSl} offset:{L_S + i*1024}')
            if i % 8 == 7: e('s_waitcnt lgkmcnt(0)')
        e(f'v_max3_f32 v{vT}, v{U}, v{U+1}, v{U+2}\nv_max_f32 v{vT}, v{vT}, v{U+3}')
        e(f'v_mul_f32 v{vT}, {f2u(-1.4426950408889634):#x}, v{vT}\ns_mov_b32 s53, {f2u(1.4426950408889634):#x}')
        for i in range(64): e(f'v_fma_f32 v{SV+i}, v{SV+i}, s53, v{vT}')
        for i in range(64): e(f'v_exp_f32 v{SV+i}, v{SV+i}')
        for k in range(4): e(f'v_fma_f32 v{U+k}, v{U+k}, s53, v{vT}')
        for k in range(4): e(f'v_exp_f32 v{U+k}, v{U+k}')
        n = 32
        while n >= 2:
            for i in range(0, n, 2): e(f'v_pk_add_f32 v[{SV+i}:{SV+i+1}], v[{SV+i}:{SV+i+1}], v[{SV+n+i}:{SV+n+i+1}]')
            n //= 2
        e(f'v_add_f32 v{SV}, v{SV}, v{SV+1}')
        self.ror_reduce('v_add_f32', SV)
        self.swap_reduce('v_add_f32', SV, vT, 16)
        self.swap_reduce('v_add_f32', SV, vT, 32)
        e(f'v_rcp_f32 v{SV}, v{SV}\ns_nop 0')
        for k in range(4): e(f'v_mul_f32 v{U+k}, v{U+k}, v{SV}')
        e(f'v_mov_b32 v{vT}, {L_FW:#x}\nds_write_b128 v{vT}, v[{U}:{U+3}]')
        e('L_a_b2:')
        e(f'v_mul_u32_u24 v{vBa}, 272, v{vC7}\nv_lshl_add_u32 v{vBa}, v{vG}, 4, v{vBa}\nv_add_u32 v{vBa}, {L_OL:#x}, v{vBa}')
        if self.wolate:
            if self.wolate == 99: self.lds_wait(6, 64, vCnt, vT, 56, sleep=4)
            elif self.wolate > 100:
                self.lds_wait(8, 28, vCnt, vT, 56, sleep=8)
                self.lds_wait(1, 64 * (self.wolate - 100), vCnt, vT, 56, sleep=1)
            else: self.lds_wait(8, self.wolate, vCnt, vT, 56, sleep=4)
            wodma()
        e('s_waitcnt lgkmcnt(0)')
        e('s_barrier')
        if self.wolate: woops()
        e('s_barrier')
        if 'st3' in self.dbg: self.stamp(12)
        for kk in range(4): e(f'ds_read_b128 v[{BB+4*kk}:{BB+4*kk+3}], v{vBa} offset:{kk*64}')
        e('s_waitcnt lgkmcnt(0)')
        mm128(True)
        e('s_nop 7')
        merge_tag(D0, D1, TG, TB, 49)
        e(f'buffer_store_dwordx4 v[{D0}:{D0+3}], v{vSt}, s[36:39], s61 offen ' + ('nt sc1' if 'aps' in self.dbg else 'sc1'))
        if 'b4x' in self.dbg: e('s_barrier')
        if self.stamps:
            self.stamp(13)
            e('s_cmp_lg_u32 s3, 0\ns_cbranch_scc1 L_end')
            self.flush_stamps([8, 9, 10, 11, 12, 13, 14, 15], 200)

if __name__ == '__main__':
    import argparse
    ap = argparse.ArgumentParser()
    ap.add_argument('out'); ap.add_argument('--depth', type=int, default=5); ap.add_argument('--pdepth', type=int, default=5)
    ap.add_argument('--stamps', action='store_true'); ap.add_argument('--wpol', default='nt')
    ap.add_argument('--edepth', type=int, default=31); ap.add_argument('--usw', type=int, default=28); ap.add_argument('--ddepth', type=int, default=0); ap.add_argument('--thr', type=int, default=48); ap.add_argument('--cstart', type=int, default=6); ap.add_argument('--dbg', default=''); ap.add_argument('--cper', type=int, default=4); ap.add_argument('--table', default='0000000000112234'); ap.add_argument('--qsleep', type=int, default=0); ap.add_argument('--gwait', type=int, default=2); ap.add_argument('--hwait', type=int, default=4); ap.add_argument('--csleep', type=int, default=4); ap.add_argument('--burst', type=int, default=0); ap.add_argument('--xs', default='sc1'); ap.add_argument('--qj', type=int, default=0); ap.add_argument('--qpol', default='sc1'); ap.add_argument('--fpol', default='sc1'); ap.add_argument('--xl', default='sc1'); ap.add_argument('--prio', type=int, default=0); ap.add_argument('--prof', action='store_true'); ap.add_argument('--skip', type=int, default=0); ap.add_argument('--pmask', type=lambda x: int(x, 16), default=0); ap.add_argument('--ppol', default='none'); ap.add_argument('--cps', default=''); ap.add_argument('--fcp', type=int, default=0); ap.add_argument('--utab', default='0000000000000000'); ap.add_argument('--uq', type=int, default=0); ap.add_argument('--usync', type=int, default=0); ap.add_argument('--leak', type=int, default=0); ap.add_argument('--amap', default='12,14'); ap.add_argument('--bmap', default=''); ap.add_argument('--xr', default=''); ap.add_argument('--dpat', default=''); ap.add_argument('--ppat', default=''); ap.add_argument('--epat', default=''); ap.add_argument('--ltab', default=''); ap.add_argument('--lq', type=int, default=2); ap.add_argument('--fp2', type=int, default=0); ap.add_argument('--gdepth', default=''); ap.add_argument('--wod', type=int, default=0); ap.add_argument('--wqd', type=int, default=0); ap.add_argument('--peel', type=int, default=-1); ap.add_argument('--wolate', type=int, default=0); ap.add_argument('--wog', type=int, default=32); ap.add_argument('--d0', type=int, default=0); ap.add_argument('--fst', default=''); ap.add_argument('--gus', type=int, default=0); ap.add_argument('--osl', type=int, default=0); ap.add_argument('--fsl', type=int, default=0); ap.add_argument('--sld', type=int, default=0); ap.add_argument('--stab', default=''); ap.add_argument('--drd', type=int, default=0)
    a = ap.parse_args()
    open(a.out, 'w').write(Gen(a.depth, a.pdepth, a.stamps, a.wpol.replace('none', ''), a.edepth, a.usw, a.prio, a.prof, a.skip, a.ddepth, a.thr, a.cstart, a.dbg, a.cper, a.table, a.qsleep, a.gwait, a.hwait, a.csleep, a.burst, a.xs, a.xl, a.qj, a.qpol, a.fpol, a.pmask, a.ppol, a.cps, a.fcp, a.utab, a.uq, a.usync, a.leak, a.amap, a.bmap, a.xr, a.dpat, a.ppat, a.epat, a.ltab, a.lq, a.fp2, a.gdepth, a.wod, a.wqd, a.peel, a.wolate, a.wog, a.d0, a.fst, a.gus, a.osl, a.fsl, a.sld, a.stab, a.drd).build())
```
